```python
import torch

def _softmax(x, axis=-1):
    return torch.softmax(x, dim=axis)
def _gelu(x):
    return torch.nn.functional.gelu(x, approximate="tanh")
def _silu(x):
    return torch.nn.functional.silu(x)
def _sigmoid(x):
    return torch.sigmoid(x)
def _layernorm(x, axis=-1, eps=1e-5):
    m = x.mean(dim=axis, keepdim=True)
    v = x.var(dim=axis, keepdim=True, unbiased=False)
    return (x - m) / torch.sqrt(v + eps)
def _scatter_add(tgt, idx, src, axis=0):
    return tgt.clone().index_add_(axis, idx, src)
def _segment_sum(src, seg, n):
    out = torch.zeros((n,) + src.shape[1:], dtype=src.dtype)
    return out.index_add_(0, seg, src)
def _pad(x, pw):
    flat = tuple(v for pair in reversed(pw) for v in pair)
    return torch.nn.functional.pad(x, flat)

kernel_name = 'gated_mix__mha_block__dense_activation_squared_relu__prompt'

def setup_inputs():

    _w = (lambda a: (lambda t: t.to(torch.bfloat16) if t.is_floating_point() else t)(torch.as_tensor(a)))
    def _A_setup():
        B, S, D, H = 1, 2048, 640, 32
        return {
            "x": _w((lambda *s: torch.randn(*s, dtype=torch.bfloat16) * 0.05)(B, S, D)),
            "wqkv": _w((lambda *s: torch.randn(*s, dtype=torch.bfloat16) * 0.8)(D, 3 * D)),
            "wo": _w((lambda *s: torch.randn(*s, dtype=torch.bfloat16) * 0.1)(D, D)),
        }
    _A_in = _A_setup()

    def _B_setup():
        B, S, D, F = 1, 2048, 640, 1728
        return {
            "x": _w((lambda *s: torch.randn(*s, dtype=torch.bfloat16) * 0.05)(B, S, D)),
            "w1": _w((lambda *s: torch.randn(*s, dtype=torch.bfloat16) * 0.1)(D, F)),
            "b1": _w((lambda *s: torch.randn(*s, dtype=torch.bfloat16) * 0.1)(F)),
            "w2": _w((lambda *s: torch.randn(*s, dtype=torch.bfloat16) * 0.1)(F, D)),
            "b2": _w((lambda *s: torch.randn(*s, dtype=torch.bfloat16) * 0.05)(D)),
        }
    _B_in = _B_setup()

    return {
        "A_x": _A_in["x"],
        "A_wqkv": _A_in["wqkv"],
        "A_wo": _A_in["wo"],
        "B_x": _B_in["x"],
        "B_w1": _B_in["w1"],
        "B_b1": _B_in["b1"],
        "B_w2": _B_in["w2"],
        "B_b2": _B_in["b2"],
        "gate_w": _w((lambda *s: torch.randn(*s, dtype=torch.bfloat16) * 0.05)(640) * 16.0),
    }

def reference(A_x, A_wqkv, A_wo, B_x, B_w1, B_b1, B_w2, B_b2, gate_w):
    def _A_ref(x, wqkv, wo):
        B, S, D = x.shape
        H = 32
        Dh = D // H
        qkv = (lambda x, *d: x.permute(*d))((x @ wqkv).reshape(B, S, 3, H, Dh), 2, 0, 3, 1, 4)
        q, k, v = qkv[0], qkv[1], qkv[2]
        scores = torch.einsum("bhqd,bhkd->bhqk", q, k) * (Dh ** -0.5)
        p = _softmax(scores, axis=-1)
        o = torch.einsum("bhqk,bhkd->bhqd", p, v)
        return (lambda x, *d: x.permute(*d))(o, 0, 2, 1, 3).reshape(B, S, D) @ wo

    def _B_ref(x, w1, b1, w2, b2):
        h = torch.einsum("bsd,df->bsf", x, w1) + b1
        zero = torch.zeros_like(h)
        r = torch.where(h > zero, h, zero)
        h = r * r
        out = torch.einsum("bsf,fd->bsd", h, w2) + b2
        return out

    x = A_x
    g = _sigmoid((x * gate_w).sum(-1, keepdims=True))
    a = _A_ref(x, A_wqkv, A_wo)
    b = _B_ref(x, B_w1, B_b1, B_w2, B_b2)
    return g * a + (1 - g) * b
```

```python
import re


class Stream:
    def __init__(self):
        self.lines = []
        self.vm = []
        self.lg = []
        self.vm_done = 0
        self.lg_done = 0

    def __call__(self, s):
        for l in s.split("\n"):
            l = l.strip()
            if l:
                self.lines.append(l)

    def label(self, name):
        self.lines.append(name + ":")

    def vmem(self, s, tag=None):
        self(s)
        self.vm.append(tag)

    def lds(self, s, tag=None):
        self(s)
        self.lg.append(tag)

    def _need(self, lst, tags):
        if not isinstance(tags, (list, tuple, set)) or isinstance(tags, tuple):
            tags = [tags]
        last = -1
        for t in tags:
            idx = [i for i, x in enumerate(lst) if x == t]
            assert idx, f"tag {t} never issued"
            last = max(last, idx[-1])
        return last + 1

    def wait(self, vm=None, lg=None):
        parts = []
        if vm is not None:
            need = len(self.vm) if vm == "all" else self._need(self.vm, vm)
            if need > self.vm_done:
                n = min(len(self.vm) - need, 63)
                parts.append(f"vmcnt({n})")
                self.vm_done = len(self.vm) - n
        if lg is not None:
            need = len(self.lg) if lg == "all" else self._need(self.lg, lg)
            if need > self.lg_done:
                n = min(len(self.lg) - need, 15)
                parts.append(f"lgkmcnt({n})")
                self.lg_done = len(self.lg) - n
        if parts:
            self("s_waitcnt " + " ".join(parts))
        return bool(parts)

    def state(self):
        return (list(self.vm), list(self.lg), self.vm_done, self.lg_done)

    def restore(self, st):
        self.vm, self.lg, self.vm_done, self.lg_done = list(st[0]), list(st[1]), st[2], st[3]

    def drained(self):
        self.vm_done = len(self.vm)
        self.lg_done = len(self.lg)

    def text(self):
        out = []
        for l in self.lines:
            out.append(l if l.endswith(":") or l.startswith(".") else "    " + l)
        return "\n".join(out) + "\n"


def vr(a, n=1):
    return f"v{a}" if n == 1 else f"v[{a}:{a+n-1}]"


def sr(a, n=1):
    return f"s{a}" if n == 1 else f"s[{a}:{a+n-1}]"


_REG = re.compile(r"\b([vsa])(?:(\d+)|\[(\d+):(\d+)\])")


def regs(op):
    out = set()
    for m in _REG.finditer(op):
        k = m.group(1)
        if m.group(2) is not None:
            out.add((k, int(m.group(2))))
        else:
            out.update((k, i) for i in range(int(m.group(3)), int(m.group(4)) + 1))
    for nm in ("vcc", "exec", "m0"):
        if re.search(r"\b" + nm + r"\b", op):
            out.add((nm, 0))
    return out


TRANS = ("v_exp_", "v_log_", "v_rcp_", "v_rsq_", "v_sqrt_", "v_sin_", "v_cos_")


def _passes(mn):
    if "16x16x32" in mn or "16x16x64" in mn or "16x16x16" in mn:
        return 4
    if "32x32x4_2b" in mn:
        return 16
    return 8


def parse(l):
    l = l.split(";")[0].strip()
    mn, _, rest = l.partition(" ")
    ops = [o.strip() for o in rest.split(",")] if rest else []
    d = dict(mn=mn, text=l, w=set(), r=set(), kind="other", srcc=set(), ab=set(), states=1)
    if mn == "s_nop":
        d["states"] = int(ops[0], 0) + 1
    elif mn.startswith("v_mfma") or mn.startswith("v_smfmac"):
        d["kind"] = "mfma"
        d["w"] = regs(ops[0])
        d["ab"] = regs(ops[1]) | regs(ops[2])
        if mn.startswith("v_smfmac"):
            d["srcc"] = regs(ops[0])
            d["ab"] |= regs(ops[3].split(" ")[0])
        else:
            d["srcc"] = regs(ops[3].split(" ")[0])
        d["r"] = d["ab"] | d["srcc"]
        d["p"] = _passes(mn)
    elif mn.startswith("v_"):
        d["kind"] = "valu"
        nw = 1
        if mn.startswith(("v_add_co", "v_addc_co", "v_sub_co")):
            nw = 2
        for o in ops[:nw]:
            d["w"] |= regs(o)
        for o in ops[nw:]:
            d["r"] |= regs(o)
        if mn.startswith(("v_fmac", "v_dot2c")):
            d["r"] |= regs(ops[0])
        if "permlane" in mn or mn.startswith("v_swap"):
            d["w"] |= regs(ops[1]); d["r"] |= regs(ops[0])
        d["trans"] = mn.startswith(TRANS)
    elif mn.startswith("buffer_") or mn.startswith("global_"):
        d["kind"] = "vmem"
        allr = set()
        for o in ops:
            allr |= regs(o.split(" ")[0])
        if "load" in mn and " lds" not in l:
            d["w"] = regs(ops[0]); d["r"] = set().union(*[regs(o.split(" ")[0]) for o in ops[1:]])
        else:
            d["r"] = allr
        if " lds" in l:
            d["r"].add(("m0", 0))
        if "store" in mn:
            d["sdata"] = regs(ops[0]) if ("x4" in mn or "x3" in mn) else set()
    elif mn.startswith("ds_"):
        d["kind"] = "ds"
        if "read" in mn or "bpermute" in mn:
            d["w"] = regs(ops[0]); d["r"] = set().union(*[regs(o.split(" ")[0]) for o in ops[1:]])
        else:
            d["r"] = set().union(*[regs(o.split(" ")[0]) for o in ops])
    elif mn.startswith("s_"):
        d["kind"] = "salu"
        if ops and not mn.startswith(("s_cmp", "s_waitcnt", "s_cbranch", "s_branch", "s_barrier", "s_setprio", "s_sleep", "s_bitcmp")):
            d["w"] = regs(ops[0])
            for o in ops[1:]:
                d["r"] |= regs(o)
            if "saveexec" in mn:
                d["w"].add(("exec", 0))
        else:
            for o in ops:
                d["r"] |= regs(o)
    return d


def hazard_check(lines):
    ins = [parse(l) for l in lines if not l.endswith(":") and not l.startswith(".") and not l.startswith(";")]
    bad = []
    for i, c in enumerate(ins):
        dist = 0
        for j in range(i - 1, max(-1, i - 24), -1):
            p = ins[j]
            if p["mn"] in ("s_branch", "s_endpgm", "s_setpc_b64"):
                break
            need = 0
            pv = {x for x in p["w"] if x[0] in "va" and len(x[0]) == 1}
            ps = {x for x in p["w"] if x[0] == "s" or x[0] == "vcc"}
            if p["kind"] == "valu":
                if c["kind"] == "mfma" and pv & c["r"]:
                    need = max(need, 2)
                if c["kind"] == "valu" and p.get("trans") and not c.get("trans") and pv & c["r"]:
                    need = max(need, 1)
                if c["kind"] == "valu" and "permlane" in c["mn"] and pv & c["r"]:
                    need = max(need, 2)
                if c["kind"] == "valu" and ("readfirstlane" in c["mn"] or "readlane" in c["mn"]) and pv & c["r"]:
                    need = max(need, 1)
                if c["kind"] == "valu" and "dpp" in c["text"] and pv & c["r"]:
                    need = max(need, 2)
                if c["kind"] == "vmem" and ps & c["r"]:
                    need = max(need, 5)
                if c["kind"] == "valu" and ps & c["r"]:
                    need = max(need, 2)
            if p["kind"] == "mfma":
                P = p["p"]
                long_ = {4: 8, 8: 12, 16: 20}[P]
                if c["kind"] == "mfma":
                    if pv & c["ab"]:
                        need = max(need, long_)
                    if pv & c["srcc"] and not (pv == c["srcc"] and c["p"] == P):
                        need = max(need, {4: 6, 8: 10, 16: 18}[P])
                elif c["kind"] in ("valu", "vmem", "ds"):
                    if pv & (c["r"] | c["w"]):
                        need = max(need, long_)
                if c["kind"] == "valu" and p["srcc"] & c["w"]:
                    need = max(need, {4: 3, 8: 7, 16: 15}[P])
            if p["kind"] == "salu" and ("m0", 0) in p["w"] and c["kind"] == "vmem" and ("m0", 0) in c["r"]:
                need = max(need, 1)
            if p["kind"] == "vmem" and p.get("sdata") and p["sdata"] & c["w"]:
                need = max(need, 2)
            if need > dist:
                bad.append(f"need {need} have {dist}: [{p['text']}] -> [{c['text']}]")
            dist += p["states"]
            if dist >= 20:
                break
    return bad
```

```python
from asmlib import *
from gen import *

SB = (64, 80, 96, 112)
OA = (128, 144)
QM = (32, 36)
QR = (40, 42)
KM = (44, 48)
KR = (52, 56)
VF = (160, 168)
vIDX, vKm, vKr, vV0, vV1, vG, vL16 = 60, 61, 62, 63, 12, 10, 9


def rec(t):
    return (t % NREC) * REC


def s_mfmas(n, dst=None):
    qt, t = n & 1, n >> 1
    d = SB[n % 4] if dst is None else dst
    kr = KR[(t >> 1) & 1] + 2 * (t & 1)
    return [f"v_mfma_f32_32x32x8_bf16 {vr(d, 16)}, {vr(kr, 2)}, {vr(QR[qt], 2)}, 0",
            f"v_mfma_f32_32x32x16_bf16 {vr(d, 16)}, {vr(KM[t & 1], 4)}, {vr(QM[qt], 4)}, {vr(d, 16)}"]


def pv_mfmas(n):
    qt, t = n & 1, n >> 1
    p, v = SB[n % 4], VF[t & 1]
    return [f"v_smfmac_f32_32x32x32_bf16 {vr(OA[qt], 16)}, {vr(v + 4 * u, 4)}, {vr(p + 8 * u, 8)}, {vr(vIDX)}" for u in range(2)]


def koff_code(g, dst, t0, t1):
    g(f"""
    v_bfe_u32 {vr(t0)}, v0, 3, 2
    v_and_b32 {vr(t1)}, 3, v0
    v_lshl_add_u32 {vr(t0)}, {vr(t0)}, 2, {vr(t1)}
    v_bfe_u32 {vr(t1)}, v0, 2, 1
    v_lshlrev_b32 {vr(t1)}, 3, {vr(t1)}
    v_lshl_add_u32 {vr(dst)}, {vr(t0)}, 4, {vr(t1)}
    """)


def row_max(g, src, dst, tmp):
    g(f"v_max3_f32 {vr(dst)}, {vr(src)}, {vr(src + 1)}, {vr(src + 2)}")
    for r in range(3, 15, 2):
        g(f"v_max3_f32 {vr(dst)}, {vr(dst)}, {vr(src + r)}, {vr(src + r + 1)}")
    g(f"v_max_f32 {vr(dst)}, {vr(dst)}, {vr(src + 15)}")


def both_halves(g, a, b):
    g(f"v_mov_b32 {vr(b)}, {vr(a)}\ns_nop 1\nv_permlane32_swap_b32 {vr(a)}, {vr(b)}")


def attention(G):
    g, o = G.g, G.o
    split = [int(x) for x in o.split.split(",")]
    sQ = sA
    g(f"""
    s_mul_i32 {sr(sT0)}, {sr(sH)}, 5
    s_add_u32 {sr(sT1)}, {sr(sT0)}, 4
    s_lshr_b32 {sr(sT0)}, {sr(sT0)}, 5
    s_lshr_b32 {sr(sT1)}, {sr(sT1)}, 5
    s_lshl_b32 {sr(sT2)}, {sr(sJ)}, 1
    s_lshr_b32 {sr(sT3)}, {sr(sW)}, 1
    s_add_u32 {sr(sT2)}, {sr(sT2)}, {sr(sT3)}
    v_mov_b32 v2, 15
    v_writelane_b32 v2, {sr(sT0)}, 0
    v_writelane_b32 v2, {sr(sT1)}, 1
    v_lshlrev_b32 v2, 4, v2
    v_add_u32 v2, {sr(sT2)}, v2
    v_lshlrev_b32 v2, 7, v2
    v_lshlrev_b32 {vr(vL16)}, 4, v0
    v_lshrrev_b32 v4, 5, v0
    v_and_b32 v5, 15, v0
    v_bfe_u32 v6, v0, 4, 1
    v_lshlrev_b32 v7, 4, v5
    v_lshl_add_u32 v7, v6, 3, v7
    v_lshl_add_u32 v8, v4, 8, v7
    s_lshl_b32 {sr(sT0)}, {sr(sH)}, 6
    s_lshl_b32 {sr(sT1)}, {sr(sJ)}, 3
    s_lshl_b32 {sr(sT2)}, {sr(sW)}, 1
    s_add_u32 {sr(sT1)}, {sr(sT1)}, {sr(sT2)}
    s_add_u32 {sr(sT0)}, {sr(sT0)}, {sr(sT1)}
    s_mul_i32 {sr(sQ)}, {sr(sT0)}, 1280
    s_add_u32 {sr(sQ)}, {sr(sQ)}, {QOFF}
    s_lshl_b32 {sr(sT4)}, {sr(sT1)}, 7
    s_add_u32 {sr(sT4)}, {sr(sT4)}, {GOFF}
    v_and_b32 v13, 31, v0
    v_lshlrev_b32 v14, 2, v13
    """)
    G.poll(2, 3)
    G.stamp(4)
    for qt in range(2):
        for u in range(2):
            g.vmem(f"buffer_load_dwordx2 {vr(QM[qt] + 2 * u, 2)}, v8, {sr(SWS, 4)}, {sr(sQ)} offen offset:{qt * 1280 + u * 512} sc1", "q")
        g.vmem(f"buffer_load_dwordx2 {vr(QR[qt], 2)}, v7, {sr(SWS, 4)}, {sr(sQ)} offen offset:{qt * 1280 + 1024} sc1", "q")
        g.vmem(f"buffer_load_dword {vr(vG + qt)}, v14, {sr(SWS, 4)}, {sr(sT4)} offen offset:{qt * 128} sc1", "q")
    G.h_stores(vL16)
    koff_code(g, 2, 3, 15)
    g(f"""
    v_lshl_add_u32 {vr(vKm)}, v4, 8, v2
    v_cmp_gt_u32 vcc, 32, v0
    v_add_u32 v2, 1024, v2
    v_mov_b32 v3, {2560 + 256 + 64}
    v_cndmask_b32 {vr(vKr)}, v3, v2, vcc
    v_mov_b32 {vr(vIDX)}, 0xdddddddd
    """)
    for u, dst in enumerate((vV0, vV1)):
        g(f"""
        v_add_u32 v2, {2 * u}, v4
        v_mul_u32_u24 v3, 320, v2
        v_lshl_add_u32 v3, v13, 4, v3
        v_add_u32 v3, 1280, v3
        v_lshlrev_b32 v2, 2, v2
        v_add_u32 v2, 12, v2
        v_and_b32 v2, 15, v2
        v_lshlrev_b32 v2, 4, v2
        v_add_u32 v2, 2560, v2
        v_cmp_gt_u32 vcc, 28, v13
        v_mov_b32 v15, {2560 + (9 if u == 0 else 1) * 16}
        v_mov_b32 v1, {2560 + 256 + (8 if u == 0 else 0) * 16}
        v_cndmask_b32 v2, v2, v15, vcc
        v_cmp_eq_u32 vcc, 20, v13
        s_nop 1
        v_cndmask_b32 v2, v2, v1, vcc
        v_cmp_gt_u32 vcc, 20, v13
        s_nop 1
        v_cndmask_b32 {vr(dst)}, v2, v3, vcc
        """)
    for r in range(32):
        g(f"v_mov_b32 {vr(OA[0] + r)}, 0")
    g.wait(vm="q")
    g("s_mov_b32 exec_lo, 0")
    for r in range(4):
        g(f"v_mov_b32 {vr(QR[0] + r)}, 0")
    g("s_mov_b32 exec_lo, -1")
    g("s_waitcnt lgkmcnt(0)\ns_barrier")
    G.stamp(5)
    if o.prio:
        g(f"s_setprio {o.prio}")

    def rdKm(t):
        b = rec(t) // 512
        g.lds(f"ds_read2st64_b64 {vr(KM[t & 1], 4)}, {vr(vKm)} offset0:{b} offset1:{b + 1}", ("km", t))

    def rdKr(t):
        b = rec(t) // 512
        g.lds(f"ds_read2st64_b64 {vr(KR[(t >> 1) & 1], 4)}, {vr(vKr)} offset0:{b} offset1:{b + 6}", ("kr", t))

    def rdV(t, u):
        g.lds(f"ds_read_b128 {vr(VF[t & 1] + 4 * u, 4)}, {vr((vV0, vV1)[u])} offset:{rec(t)}", ("v", t))

    rdKr(0); rdKm(0); rdKm(1)
    g.wait(lg=("km", 0))
    a0, a1 = s_mfmas(0), s_mfmas(1)
    g(a0[0]); g(a1[0]); g(a0[1]); g(a1[1])
    g("s_nop 10")
    for qt in range(2):
        row_max(g, SB[qt], 2 + 2 * qt, None)
    for qt in range(2):
        both_halves(g, 2 + 2 * qt, 3 + 2 * qt)
    for qt in range(2):
        g(f"v_max_f32 {vr(2 + 2 * qt)}, {vr(2 + 2 * qt)}, {vr(3 + 2 * qt)}")
    g("s_mov_b32 exec_lo, 0")
    for qt in range(2):
        g(f"v_cvt_pk_bf16_f32 {vr(QR[qt])}, -{vr(2 + 2 * qt)}, 0")
    g("s_mov_b32 exec_lo, -1\ns_nop 0")
    g(a0[0]); g(a0[1])
    g("s_nop 11")
    for n in range(128):
        qt, t = n & 1, n >> 1
        cur = SB[n % 4]
        m = (s_mfmas(n + 1) if n < 127 else [None, None]) + (pv_mfmas(n - 1) if n > 0 else [None, None])
        ex = [[], [], [], []]
        if qt == 0:
            ex[1].append(lambda: rdV(t, 0))
            ex[2].append(lambda: rdV(t, 1))
            if t + 1 < 64:
                ex[3].append(lambda: g.wait(lg=[("km", t + 1), ("kr", (t + 1) & ~1)]))
        else:
            ex[1].append(lambda: g.wait(lg=("v", t)))
            if t + 2 < 64:
                if (t + 2) % 8 == 0:
                    def bar():
                        if t + 2 == 16:
                            g.wait(vm="all")
                        g("s_barrier")
                    ex[1].append(bar)
                ex[1].append(lambda: rdKm(t + 2))
                if t % 2 == 0:
                    ex[2].append(lambda: rdKr(t + 2))
        e = 0
        for i in range(4):
            if m[i]:
                g(m[i])
            for f in ex[i]:
                f()
            for _ in range(split[i]):
                g(f"v_exp_f32 {vr(cur + e)}, {vr(cur + e)}"); e += 1
    m = pv_mfmas(127)
    g(m[0]); g("s_nop 0"); g(m[1])
    g("s_setprio 0")
    G.stamp(6)
    g(f"""
    v_and_b32 v5, 15, v0
    v_bfe_u32 v6, v0, 4, 1
    v_lshrrev_b32 v4, 5, v0
    v_mul_u32_u24 v6, 20480, v6
    v_lshl_add_u32 v6, v4, 7, v6
    v_lshl_add_u32 v6, v5, 3, v6
    s_lshl_b32 {sr(sT2)}, {sr(sJ)}, 2
    s_add_u32 {sr(sT2)}, {sr(sT2)}, {sr(sW)}
    s_mul_i32 {sr(sT3)}, {sr(sT2)}, {4 * 20480}
    s_mul_i32 {sr(sT4)}, {sr(sH)}, 640
    s_add_u32 {sr(sT3)}, {sr(sT3)}, {sr(sT4)}
    s_add_u32 {sr(sT3)}, {sr(sT3)}, {OOFF}
    s_add_u32 {sr(sT4)}, {sr(sT3)}, {2 * 20480}
    """)
    g("v_mov_b32 v8, 0")
    for qt in range(2):
        g(f"v_mov_b32 {vr(16 + 2 * qt)}, {vr(OA[qt] + 8)}")
        both_halves(g, 16 + 2 * qt, 17 + 2 * qt)
        for r in range(12):
            g(f"v_fma_f32 v8, {vr(OA[qt] + r)}, 0, v8")
    g(f"""
    v_min_f32 v2, v17, v19
    v_max_f32 v3, v17, v19
    v_add_f32 v2, v2, v8
    v_cmp_nle_f32 vcc, {f32hex(2.0 ** -30)}, v2
    s_mov_b64 {sr(sA + 2, 2)}, vcc
    v_cmp_nge_f32 vcc, {f32hex(2.0 ** 60)}, v3
    s_or_b64 vcc, vcc, {sr(sA + 2, 2)}
    """)
    g("s_branch Lfallback" if o.force_fallback else "s_cbranch_vccnz Lfallback")
    g.label("Lnorm")
    for qt in range(2):
        g(f"v_rcp_f32 {vr(16 + 2 * qt)}, {vr(17 + 2 * qt)}")
    g("s_nop 0")
    for qt in range(2):
        g(f"v_mul_f32 {vr(16 + 2 * qt)}, {vr(16 + 2 * qt)}, {vr(vG + qt)}")
    for qt in range(2):
        a = OA[qt]
        for r in range(12):
            g(f"v_mul_f32 {vr(a + r)}, {vr(a + r)}, {vr(16 + 2 * qt)}")
        for q in range(6):
            g(f"v_cvt_pk_bf16_f32 {vr(a + q)}, {vr(a + 2 * q)}, {vr(a + 2 * q + 1)}")
        for q in range(2):
            g(f"buffer_store_dwordx2 {vr(a + 2 * q, 2)}, v6, {sr(SWS, 4)}, {sr((sT3, sT4)[qt])} offen offset:{256 * q} sc1")
    g("s_mov_b32 exec_hi, 0")
    for qt in range(2):
        g(f"buffer_store_dwordx2 {vr(OA[qt] + 4, 2)}, v6, {sr(SWS, 4)}, {sr((sT3, sT4)[qt])} offen offset:512 sc1")
    g("s_mov_b32 exec_hi, -1")
    g("s_waitcnt vmcnt(0)")
    G.set_flag(f"""
    s_lshl_b32 {sr(sT1)}, {sr(sT2)}, 5
    s_add_u32 {sr(sT1)}, {sr(sT1)}, {sr(sH)}
    s_lshl_b32 {sr(sT1)}, {sr(sT1)}, 7
    s_add_u32 {sr(sT1)}, {sr(sT1)}, {FO}""", 2, 3)
    G.stamp(7)
    G.dump_stamps()
    g("s_endpgm")
    fallback(G)


def fallback(G):
    g = G.g
    sK, sN = sA + 4, sA + 5
    vMx = (20, 22)
    g.label("Lfallback")
    koff_code(g, 24, 2, 3)
    g(f"""
    v_lshrrev_b32 v4, 5, v0
    v_and_b32 v13, 31, v0
    v_lshl_add_u32 v25, v4, 8, v24
    v_mul_u32_u24 v26, 320, v4
    v_lshl_add_u32 v26, v13, 4, v26
    v_cmp_gt_u32 vcc, 20, v13
    s_mov_b64 {sr(sA + 6, 2)}, vcc
    v_cmp_eq_u32 vcc, 20, v13
    v_mov_b32 v2, 0x3f803f80
    v_mov_b32 v20, 0xff800000
    v_mov_b32 v22, 0xff800000
    """)
    for r in range(8):
        g(f"v_cndmask_b32 {vr(VF[0] + r)}, 0, v2, vcc")
    g("s_mov_b32 exec_lo, 0")
    for r in range(4):
        g(f"v_mov_b32 {vr(QR[0] + r)}, 0")
    g("s_mov_b32 exec_lo, -1")
    for r in range(32):
        g(f"v_mov_b32 {vr(OA[0] + r)}, 0")
    for ps in range(2):
        L = G.lab("fb")
        g(f"s_mul_i32 {sr(sK)}, {sr(sH)}, {64 * 2560}\ns_add_u32 {sr(sK)}, {sr(sK)}, {KVOFF}\ns_mov_b32 {sr(sN)}, 64")
        g.label(L)
        for u in range(2):
            g(f"buffer_load_dwordx2 {vr(KM[0] + 2 * u, 2)}, v25, {sr(SWS, 4)}, {sr(sK)} offen offset:{512 * u} sc1")
        g(f"buffer_load_dwordx2 {vr(KR[0], 2)}, v24, {sr(SWS, 4)}, {sr(sK)} offen offset:1024 sc1")
        if ps:
            g(f"s_mov_b64 exec, {sr(sA + 6, 2)}")
            for u in range(2):
                g(f"buffer_load_dwordx4 {vr(VF[0] + 4 * u, 4)}, v26, {sr(SWS, 4)}, {sr(sK)} offen offset:{1280 + 640 * u} sc1")
            g("s_mov_b64 exec, -1")
        g("s_waitcnt vmcnt(0)")
        a0, a1 = s_mfmas(0), s_mfmas(1)
        g(a0[0]); g(a1[0]); g(a0[1]); g(a1[1])
        g("s_nop 11")
        for qt in range(2):
            if ps == 0:
                row_max(g, SB[qt], 2, None)
                g(f"v_max_f32 {vr(vMx[qt])}, {vr(vMx[qt])}, v2")
            else:
                for r in range(16):
                    g(f"v_sub_f32 {vr(SB[qt] + r)}, {vr(SB[qt] + r)}, {vr(vMx[qt])}")
                for r in range(16):
                    g(f"v_exp_f32 {vr(SB[qt] + r)}, {vr(SB[qt] + r)}")
                g("s_nop 1")
                for x in pv_mfmas(qt):
                    g(x)
        g(f"s_add_u32 {sr(sK)}, {sr(sK)}, 2560\ns_sub_u32 {sr(sN)}, {sr(sN)}, 1\ns_cmp_lg_u32 {sr(sN)}, 0\ns_cbranch_scc1 {L}")
        if ps == 0:
            for qt in range(2):
                both_halves(g, vMx[qt], vMx[qt] + 1)
                g(f"v_max_f32 {vr(vMx[qt])}, {vr(vMx[qt])}, {vr(vMx[qt] + 1)}")
    g("s_nop 11")
    for qt in range(2):
        g(f"v_mov_b32 {vr(16 + 2 * qt)}, {vr(OA[qt] + 8)}")
        both_halves(g, 16 + 2 * qt, 17 + 2 * qt)
    g("s_branch Lnorm")


GA, WF, HR, BI = 64, 144, 164, 212
vWD, vT, vH, vL, vGG = 244, 249, 250, 251, 252
WOF, OF = 144, 4


def gemm(G):
    g, o = G.g, G.o
    steps = [int(x) for x in o.steps.split(",")]
    assert sum(steps) == 14 and len(steps) == 8
    sWp, sKV, sRec, sRing, sWb, sWo = sA, sA + 1, sA + 2, sA + 3, sA + 4, sA + 5
    sHb = sA + 6
    g.label("Lgemm")
    g(f"""
    s_sub_u32 {sr(sWp)}, {sr(sW)}, 4
    s_mul_i32 {sr(sT0)}, {sr(sH)}, 5
    s_add_u32 {sr(sT1)}, {sr(sT0)}, 4
    s_lshr_b32 {sr(sT0)}, {sr(sT0)}, 5
    s_lshr_b32 {sr(sT1)}, {sr(sT1)}, 5
    s_sub_u32 {sr(sT1)}, {sr(sT1)}, {sr(sT0)}
    v_bfe_u32 v2, v0, 4, 1
    v_mul_u32_u24 v2, {sr(sT1)}, v2
    v_lshrrev_b32 v3, 5, v0
    v_mul_u32_u24 v3, 5, v3
    s_add_u32 {sr(sT0)}, {sr(sT0)}, 5
    v_add3_u32 v2, v2, v3, {sr(sT0)}
    v_and_b32 v3, 15, v0
    v_lshl_add_u32 v2, v2, 4, v3
    v_lshlrev_b32 v2, 7, v2
    v_lshlrev_b32 {vr(vL)}, 4, v0
    s_lshl_b32 {sr(sT0)}, {sr(sH)}, 6
    s_lshl_b32 {sr(sT1)}, {sr(sWp)}, 1
    s_add_u32 {sr(sT0)}, {sr(sT0)}, {sr(sT1)}
    s_mul_i32 {sr(sKV)}, {sr(sT0)}, 2560
    s_add_u32 {sr(sKV)}, {sr(sKV)}, {KVOFF}
    s_mul_i32 {sr(sRec)}, {sr(sT1)}, {REC}
    s_mul_i32 {sr(sRing)}, {sr(sWp)}, {WPRIV}
    s_add_u32 {sr(sRing)}, {sr(sRing)}, {WRING}
    s_mul_i32 {sr(sWb)}, {sr(sWp)}, {32 * 1280}
    s_mul_i32 {sr(sWo)}, {sr(sWp)}, {160 * 1280}
    """)
    G.poll(2, 3)
    G.stamp(4)

    def kv(c):
        for tau in range(2):
            for q in range(2):
                G.dma(SWS, vL, (8 * c + tau) * 2560 + q * 1024, tau * REC + q * 1024, ("kv", c), m0base=sRec, sbase=sKV, flags="sc1")
        g("s_mov_b32 exec_hi, 0")
        for tau in range(2):
            G.dma(SWS, vL, (8 * c + tau) * 2560 + 2048, tau * REC + 2048, ("kv", c), m0base=sRec, sbase=sKV, flags="sc1")
        g(f"""
        s_mov_b32 exec_hi, -1
        s_add_u32 {sr(sRec)}, {sr(sRec)}, {8 * REC}
        s_cmp_ge_u32 {sr(sRec)}, {NREC * REC}
        s_cselect_b32 {sr(sT0)}, {NREC * REC}, 0
        s_sub_u32 {sr(sRec)}, {sr(sRec)}, {sr(sT0)}
        """)

    kv(0); kv(1)
    G.h_stores(vL)
    g(f"s_mul_i32 {sr(sT2)}, {sr(sCP)}, 160")
    for q in range(5):
        g(f"""
        v_add_u32 v2, {64 * q}, v0
        v_mul_u32_u24 v3, 6554, v2
        v_lshrrev_b32 v3, 16, v3
        v_mul_u32_u24 v4, 10, v3
        v_sub_u32 v2, v2, v4
        v_mul_u32_u24 v3, 1280, v3
        v_lshl_add_u32 v3, v2, 4, v3
        v_add_u32 {vr(vWD + q)}, {sr(sT2)}, v3
        """)
    g(f"""
    v_lshrrev_b32 v2, 2, v0
    v_mul_u32_u24 v2, 160, v2
    v_and_b32 v3, 3, v0
    v_lshl_add_u32 v2, v3, 3, v2
    v_add_u32 {vr(vT)}, {sr(sRing)}, v2
    v_mov_b32 {vr(vH)}, {vr(vL)}
    """)
    for sg in range(4):
        g(f"""
        s_add_u32 {sr(sT0)}, {sr(sWp)}, {1 + sg}
        s_and_b32 {sr(sT0)}, {sr(sT0)}, 3
        s_lshl_b32 {sr(sT1)}, {sr(sRT)}, 2
        s_add_u32 {sr(sHb + sg)}, {sr(sT0)}, {sr(sT1)}
        """)
    g.wait(vm=("kv", 0))
    g("s_waitcnt lgkmcnt(0)\ns_barrier")

    def wdma(i):
        for q in range(5):
            if i < 14:
                G.dma(SW2, vWD + q, 4 * i * 32 * 1280, (i % 5) * 5120 + q * 1024, ("w", i), m0base=sRing, sbase=sWb)
            else:
                G.dma(SWO, vWD + q, (i - 14) * 32 * 1280, (i % 5) * 5120 + q * 1024, ("w", i), m0base=sRing, sbase=sWo)

    def hload(i):
        for sg in range(4):
            g.vmem(f"buffer_load_dwordx4 {vr(HR + 16 * (i % 3) + 4 * sg, 4)}, {vr(vH)}, {sr(SWS, 4)}, {sr(sHb + sg)} offen sc1", ("h", i))
        g(f"v_add_u32 {vr(vH)}, 4096, {vr(vH)}")

    def wreads(i, dst):
        for n in range(5):
            for u in range(2):
                g.lds(f"ds_read_b64_tr_b16 {vr(dst + 4 * n + 2 * u, 2)}, {vr(vT)} offset:{(i % 5) * 5120 + u * 2560 + n * 32}", ("wr", i, n))

    def step(i):
        g.wait(vm=("w", i))
        wreads(i, WF)
        wdma(i + 4)
        if i + 2 < 14:
            hload(i + 2)
        elif i == 12:
            pass
        g.wait(vm=("h", i))
        L = None
        if i == 13:
            L = G.lab("skip")
            g.wait(lg="all")
            g(f"s_cmp_ge_u32 {sr(sWp)}, 2\ns_cbranch_scc1 {L}")
        for n in range(5):
            g.wait(lg=("wr", i, n))
            for sg in range(4):
                a = GA + 20 * sg + 4 * n
                c = vr(BI + 4 * n, 4) if i == 0 else vr(a, 4)
                g(f"v_mfma_f32_16x16x32_bf16 {vr(a, 4)}, {vr(WF + 4 * n, 4)}, {vr(HR + 16 * (i % 3) + 4 * sg, 4)}, {c}")
        if L:
            g.label(L)

    g(f"""
    s_cmp_eq_u32 {sr(sWp)}, 0
    s_cselect_b32 {sr(sT1)}, 0, {OOB}
    s_add_u32 {sr(sT1)}, {sr(sT1)}, {sr(sT2)}
    v_lshrrev_b32 v2, 4, v0
    v_lshlrev_b32 v2, 3, v2
    """)
    for n in range(5):
        g.vmem(f"buffer_load_dwordx2 {vr(4 + 2 * n, 2)}, v2, {sr(SB2, 4)}, {sr(sT1)} offen offset:{32 * n}", "b2")
    for i in range(4):
        wdma(i)
    done = 0
    for c in range(8):
        if c >= 1:
            tags = [("kv", c)] + (["stH"] if c == 2 else [])
            g.wait(vm=tags)
            g("s_barrier")
            if c == 2:
                G.flagQ(FH, 4)
            if c + 1 < 8:
                kv(c + 1)
        if c == 2:
            g(f"""
            s_lshr_b32 {sr(sT0)}, {sr(sRT)}, 1
            v_cmp_gt_u32 vcc, 14, v0
            v_add_u32 v2, {FH // 2048}, v0
            v_mov_b32 v3, {FQ // 2048 + 15}
            v_cndmask_b32 v2, v3, v2, vcc
            v_lshlrev_b32 v2, 4, v2
            v_add_u32 v2, {sr(sT0)}, v2
            v_lshlrev_b32 v2, 7, v2
            """)
            G.poll(2, 3)
            G.stamp(5)
            for n in range(5):
                for hf in range(2):
                    g(f"v_lshlrev_b32 {vr(BI + 4 * n + 2 * hf)}, 16, {vr(4 + 2 * n + hf)}")
                    g(f"v_and_b32 {vr(BI + 4 * n + 2 * hf + 1)}, 0xffff0000, {vr(4 + 2 * n + hf)}")
            g("v_and_b32 v2, 15, v0\nv_lshlrev_b32 v2, 2, v2")
            for sg in range(4):
                g(f"s_lshl_b32 {sr(sT0)}, {sr(sHb + sg)}, 6\ns_add_u32 {sr(sT0)}, {sr(sT0)}, {GOFF}")
                g.vmem(f"buffer_load_dword {vr(vGG + sg)}, v2, {sr(SWS, 4)}, {sr(sT0)} offen sc1", "g")
                g(f"""
                s_mul_i32 {sr(sHb + sg)}, {sr(sHb + sg)}, 54
                s_add_u32 {sr(sHb + sg)}, {sr(sHb + sg)}, {sr(sWp)}
                s_lshl_b32 {sr(sHb + sg)}, {sr(sHb + sg)}, 10
                s_add_u32 {sr(sHb + sg)}, {sr(sHb + sg)}, {HOFF}
                """)
            hload(0); hload(1)
        for _ in range(steps[c]):
            step(done); done += 1
    g.wait(lg="all")
    wdma(18)
    G.stamp(6)
    for sg in range(4):
        g(f"v_sub_f32 {vr(vGG + sg)}, 1.0, {vr(vGG + sg)}")
    for sg in range(4):
        for r in range(20):
            g(f"v_mul_f32 {vr(GA + 20 * sg + r)}, {vr(GA + 20 * sg + r)}, {vr(vGG + sg)}")
    for s in range(5):
        g.wait(vm=("w", 14 + s))
        wreads(14 + s, WOF + 20 * s)
    vO8, vO8b, vRW, vOut, vRR = 252, 253, 254, 255, 244
    g(f"""
    v_lshlrev_b32 {vr(vO8)}, 3, v0
    v_add_u32 {vr(vO8b)}, 4096, {vr(vO8)}
    v_add_u32 {vr(vRW)}, {sr(sRing)}, {vr(vL)}
    s_lshl_b32 {sr(sT0)}, {sr(sRT)}, 6
    s_lshl_b32 {sr(sT1)}, {sr(sWp)}, 4
    s_add_u32 {sr(sT0)}, {sr(sT0)}, {sr(sT1)}
    v_and_b32 v2, 15, v0
    v_add_u32 v2, {sr(sT0)}, v2
    v_mul_u32_u24 v2, 1280, v2
    v_lshrrev_b32 v3, 4, v0
    v_lshl_add_u32 v2, v3, 3, v2
    s_mul_i32 {sr(sT0)}, {sr(sCP)}, 160
    v_add_u32 {vr(vOut)}, {sr(sT0)}, v2
    """)
    for sg in range(4):
        g(f"""
        s_add_u32 {sr(sT0)}, {sr(sWp)}, {1 + sg}
        s_and_b32 {sr(sT0)}, {sr(sT0)}, 3
        s_lshl_b32 {sr(sT1)}, {sr(sRT)}, 2
        s_add_u32 {sr(sT0)}, {sr(sT0)}, {sr(sT1)}
        s_mul_i32 {sr(sT0)}, {sr(sT0)}, 20480
        s_mul_i32 {sr(sT1)}, {sr(sWp)}, 5120
        s_add_u32 {sr(sT0)}, {sr(sT0)}, {sr(sT1)}
        s_add_u32 {sr(sHb + sg)}, {sr(sT0)}, {OOFF}
        """)
    for sg in range(3):
        g(f"""
        s_add_u32 {sr(sT0)}, {sr(sWp)}, {3 - sg}
        s_and_b32 {sr(sT0)}, {sr(sT0)}, 3
        s_mul_i32 {sr(sT0)}, {sr(sT0)}, {WPRIV}
        s_add_u32 {sr(sT0)}, {sr(sT0)}, {WRING + sg * 5120}
        v_add_u32 {vr(vRR + sg)}, {sr(sT0)}, {vr(vL)}
        """)
    g(f"""
    s_lshl_b32 {sr(sT0)}, {sr(sRT)}, 5
    s_lshl_b32 {sr(sT1)}, {sr(sWp)}, 3
    s_add_u32 {sr(sT0)}, {sr(sT0)}, {sr(sT1)}
    s_add_u32 {sr(sT0)}, {sr(sT0)}, {FO // 128}
    v_and_b32 v2, 7, v0
    v_add_u32 v2, {sr(sT0)}, v2
    v_lshlrev_b32 v2, 7, v2
    """)
    g.wait(lg="all")
    G.stamp(7)
    G.poll(2, 3)
    G.stamp(8)

    def oload(sg):
        for s in range(5):
            for u in range(2):
                off, va = s * 1024 + u * 512, vO8
                if off >= 4096:
                    off, va = off - 4096, vO8b
                g.vmem(f"buffer_load_dwordx2 {vr(OF + 20 * (sg % 3) + 4 * s + 2 * u, 2)}, {vr(va)}, {sr(SWS, 4)}, {sr(sHb + sg)} offen offset:{off} sc1", ("o", sg, s))

    def rwrite(sg):
        return [lambda n=n: g.lds(f"ds_write_b128 {vr(vRW)}, {vr(GA + 20 * sg + 4 * n, 4)} offset:{sg * 5120 + n * 1024}", "rw") for n in range(5)]

    for sg in range(3):
        oload(sg)
    for sg in range(4):
        pend = rwrite(sg - 1) if sg else []
        k = 0
        for s in range(5):
            g.wait(vm=("o", sg, s))
            for n in range(5):
                a = GA + 20 * sg + 4 * n
                g(f"v_mfma_f32_16x16x32_bf16 {vr(a, 4)}, {vr(WOF + 20 * s + 4 * n, 4)}, {vr(OF + 20 * (sg % 3) + 4 * s, 4)}, {vr(a, 4)}")
                k += 1
                if k >= 8 and pend:
                    pend.pop(0)()
            if sg == 3 and s == 2:
                g.wait(lg="all")
                g("s_barrier")
                for x in range(3):
                    for n in range(5):
                        g.lds(f"ds_read_b128 {vr(GA + 20 * x + 4 * n, 4)}, {vr(vRR + x)} offset:{n * 1024}", ("rr", x))
        if sg == 0:
            oload(3)
    G.stamp(9)
    g.wait(lg=("rr", 1))
    for r in range(20):
        g(f"v_add_f32 {vr(GA + r)}, {vr(GA + r)}, {vr(GA + 20 + r)}")
    g.wait(lg=("rr", 2))
    for r in range(20):
        g(f"v_add_f32 {vr(GA + 60 + r)}, {vr(GA + 60 + r)}, {vr(GA + 40 + r)}")
    for n in range(5):
        a = GA + 4 * n
        for r in range(4):
            g(f"v_add_f32 {vr(a + r)}, {vr(a + r)}, {vr(a + 60 + r)}")
        g(f"v_cvt_pk_bf16_f32 {vr(a)}, {vr(a)}, {vr(a + 1)}\nv_cvt_pk_bf16_f32 {vr(a + 1)}, {vr(a + 2)}, {vr(a + 3)}")
        g(f"buffer_store_dwordx2 {vr(a, 2)}, {vr(vOut)}, {sr(SOUT, 4)}, 0 offen offset:{32 * n}")
    if o.stamps:
        g("s_waitcnt vmcnt(0)")
    G.stamp(10)
    G.dump_stamps()


def phase2(G):
    g = G.g
    g(f"s_cmp_ge_u32 {sr(sW)}, 4\ns_cbranch_scc1 Lgemm")
    st = g.state()
    attention(G)
    g.restore(st)
    gemm(G)
```

```python
import sys, math, argparse
from asmlib import *

NAME = "gated_mix__mha_block__dense_activation_squared_relu__prompt_kernel"

FQ, FH, FO, GOFF, TSOFF = 0x0, 0x8000, 0x10000, 0x30000, 0x40000
QOFF, KVOFF, HOFF, OOFF, WS_SIZE = 0x100000, 0x400000, 0x900000, 0x1000000, 0x1280000
OOB = 0x7F000000
QSCALE = math.log2(math.e) / math.sqrt(20.0)
LDS_BYTES = 163840
NREC, REC = 18, 3072
WRING = NREC * REC
WPRIV = 25600
SPIN = 1 << 21

sW, sRB, sCS, sJ, sH = 3, 4, 5, 6, 7
SX, SWQ, SW1, SWS, SW2, SWO, SOUT, SB1, SB2, SGW, SDBG, SCODE = (8 + 4 * i for i in range(12))
sM0, sT0, sT1, sT2, sRT, sCP, sTT, sCH = 56, 57, 58, 59, 60, 61, 62, 63
sSPIN, sSCALE, sHS, sT3, sT4, sT5 = 64, 65, 66, 67, 68, 69
sA = 70
sTS = 80


def f32hex(x):
    import struct
    return hex(struct.unpack("<I", struct.pack("<f", x))[0])


class Gen:
    def __init__(self, opt):
        self.o = opt
        self.g = Stream()
        self.nlab = 0

    def lab(self, base):
        self.nlab += 1
        return f"L{base}_{self.nlab}"

    def stamp(self, k):
        if not self.o.stamps:
            return
        g = self.g
        g(f"s_memrealtime {sr(100, 2)}\ns_waitcnt lgkmcnt(0)\ns_mov_b32 {sr(sTS + k)}, s100")
        g.lg_done = len(g.lg)

    def dump_stamps(self):
        if not self.o.stamps:
            return
        g = self.g
        g(f"s_lshl_b32 {sr(sT0)}, s2, 3\ns_add_u32 {sr(sT0)}, {sr(sT0)}, {sr(sW)}\ns_lshl_b32 {sr(sT0)}, {sr(sT0)}, 6")
        g(f"s_add_u32 {sr(sT0)}, {sr(sT0)}, {TSOFF}\nv_mov_b32 v1, 0\ns_mov_b64 exec, 1")
        for k in range(16):
            g(f"v_mov_b32 v2, {sr(sTS + k)}")
            g(f"buffer_store_dword v2, v1, {sr(SWS, 4)}, {sr(sT0)} offen offset:{4 * k}")
        g("s_mov_b64 exec, -1")

    def dma(self, srd, vaddr, soff, ldsoff, tag, m0base=sM0, sbase=None, flags=""):
        g = self.g
        g(f"s_add_u32 m0, {sr(m0base)}, {ldsoff}")
        if sbase is None:
            g(f"s_mov_b32 {sr(sT0)}, {soff}")
        else:
            g(f"s_add_u32 {sr(sT0)}, {sr(sbase)}, {soff}")
        g.vmem(f"buffer_load_dwordx4 {vr(vaddr)}, {sr(srd, 4)}, {sr(sT0)} offen {flags} lds", tag)

    def poll(self, vaddr, vtmp, srd=SWS):
        g = self.g
        L, E = self.lab("poll"), self.lab("polld")
        g(f"s_mov_b32 {sr(sSPIN)}, {SPIN}")
        g.label(L)
        g(f"buffer_load_dword {vr(vtmp)}, {vr(vaddr)}, {sr(srd, 4)}, 0 offen sc1")
        g(f"s_sub_u32 {sr(sSPIN)}, {sr(sSPIN)}, 1")
        g(f"s_cbranch_scc1 {E}")
        g("s_waitcnt vmcnt(0)")
        g(f"v_cmp_ne_u32 vcc, 1, {vr(vtmp)}")
        g(f"s_cbranch_vccnz {L}")
        g.label(E)
        g("s_waitcnt vmcnt(0)")
        g.vm_done = len(g.vm)

    def set_flag(self, sidx_expr_lines, va, vb):
        g = self.g
        g(sidx_expr_lines)
        g(f"v_mov_b32 {vr(va)}, 0\nv_mov_b32 {vr(vb)}, 1\ns_mov_b64 exec, 1")
        g.vmem(f"buffer_store_dword {vr(vb)}, {vr(va)}, {sr(SWS, 4)}, {sr(sT1)} offen sc1", "flag")
        g("s_mov_b64 exec, -1")

    def prologue(self):
        g = self.g
        g("s_cmp_ge_u32 s2, 256\ns_cbranch_scc1 Lend")
        for srd, slot in ((SX, 0), (SWQ, 1), (SW1, 4), (SWS, 11), (SB1, 5), (SGW, 8), (SDBG, 10), (SW2, 6), (SWO, 2), (SOUT, 9), (SB2, 7)):
            g(f"s_load_dwordx2 {sr(srd, 2)}, s[0:1], {8 * slot}")
        self.stamp(0)
        g("v_lshrrev_b32 v2, 6, v0\nv_and_b32 v0, 63, v0")
        g(f"v_readfirstlane_b32 {sr(sW)}, v2")
        for srd, n in ((SX, 2048 * 1280), (SWQ, 640 * 3840), (SW1, 640 * 3456), (SWS, WS_SIZE), (SB1, 3456), (SGW, 1280),
                       (SDBG, 256), (SW2, 1728 * 1280), (SWO, 640 * 1280), (SOUT, 2048 * 1280), (SB2, 1280)):
            g(f"s_mov_b32 {sr(srd + 2)}, {n}\ns_mov_b32 {sr(srd + 3)}, 0x20000")
        g(f"""
        s_getpc_b64 {sr(SCODE, 2)}
        s_mov_b32 {sr(SCODE + 2)}, CODE_BYTES
        s_mov_b32 {sr(SCODE + 3)}, 0x20000
        s_and_b32 {sr(sT0)}, s2, 7
        s_lshr_b32 {sr(sT1)}, s2, 3
        s_lshr_b32 {sr(sRB)}, {sr(sT0)}, 2
        s_lshl_b32 {sr(sRB)}, {sr(sRB)}, 3
        s_and_b32 {sr(sT2)}, {sr(sT1)}, 7
        s_add_u32 {sr(sRB)}, {sr(sRB)}, {sr(sT2)}
        s_lshr_b32 {sr(sCS)}, {sr(sT1)}, 3
        s_lshl_b32 {sr(sCS)}, {sr(sCS)}, 2
        s_and_b32 {sr(sT3)}, {sr(sT0)}, 3
        s_add_u32 {sr(sCS)}, {sr(sCS)}, {sr(sT3)}
        s_lshr_b32 {sr(sJ)}, s2, 5
        s_and_b32 {sr(sT3)}, {sr(sT1)}, 3
        s_lshl_b32 {sr(sH)}, {sr(sT0)}, 2
        s_add_u32 {sr(sH)}, {sr(sH)}, {sr(sT3)}
        s_mov_b32 {sr(sRT)}, {sr(sH)}
        s_lshr_b32 {sr(sCP)}, {sr(sT1)}, 2
        s_lshl_b32 {sr(sM0)}, {sr(sW)}, 10
        s_and_b32 {sr(sTT)}, {sr(sW)}, 3
        s_lshr_b32 {sr(sCH)}, {sr(sW)}, 2
        """)
        if self.o.code_prefetch:
            L = self.lab("nopf")
            g(f"""
            s_cmp_lg_u32 {sr(sW)}, 7
            s_cbranch_scc1 {L}
            s_lshl_b32 {sr(sT2)}, {sr(sT2)}, 13
            v_lshlrev_b32 v1, 7, v0
            buffer_load_dword v255, v1, {sr(SCODE, 4)}, {sr(sT2)} offen
            """)
            g.label(L)
        g(f"""
        v_lshrrev_b32 v2, 3, v0
        v_lshrrev_b32 v3, 4, v0
        s_lshl_b32 {sr(sT0)}, {sr(sRB)}, 7
        s_lshl_b32 {sr(sT1)}, {sr(sW)}, 3
        s_add_u32 {sr(sT0)}, {sr(sT0)}, {sr(sT1)}
        v_add_u32 v2, {sr(sT0)}, v2
        v_mul_u32_u24 v4, 1280, v2
        s_and_b32 {sr(sT0)}, {sr(sW)}, 1
        s_lshl_b32 {sr(sT0)}, {sr(sT0)}, 2
        v_or_b32 v7, {sr(sT0)}, v3
        v_and_b32 v8, 7, v0
        v_xor_b32 v7, v7, v8
        v_lshl_add_u32 v4, v7, 4, v4
        s_lshl_b32 {sr(sT0)}, {sr(sW)}, 2
        v_add_u32 v2, {sr(sT0)}, v3
        s_and_b32 {sr(sT0)}, {sr(sW)}, 2
        s_lshl_b32 {sr(sT0)}, {sr(sT0)}, 1
        v_or_b32 v7, {sr(sT0)}, v3
        v_lshlrev_b32 v7, 1, v7
        v_and_b32 v8, 15, v0
        v_xor_b32 v7, v7, v8
        v_lshlrev_b32 v7, 4, v7
        s_lshl_b32 {sr(sT0)}, {sr(sCS)}, 8
        v_add_u32 v7, {sr(sT0)}, v7
        v_mul_u32_u24 v5, 3840, v2
        v_add_u32 v5, v5, v7
        v_mul_u32_u24 v6, 3456, v2
        v_add_u32 v6, v6, v7
        s_waitcnt lgkmcnt(0)
        s_cmp_eq_u32 {sr(sCS)}, 15
        s_cbranch_scc1 Lgate
        """)

    vXG, vWG, vW1G = 4, 5, 6
    vXR = (7, 8)
    vWR = (9, 10, 11, 12)
    vST = (13, 14, 15, 1)
    BIAS, WREG, ACC, XREG = 16, 32, 64, 96

    def dmaA(self, s):
        q = s % 5
        for hf in range(2):
            self.dma(SX, self.vXG, 128 * s + hf * 64 * 1280, q * 32768 + hf * 8192, ("A", s))
        for hf in range(2):
            self.dma(SWQ, self.vWG, (64 * s + 32 * hf) * 3840, q * 32768 + 16384 + hf * 8192, ("A", s))

    def dmaB(self, t):
        for hf in range(2):
            self.dma(SW1, self.vW1G, (64 * t + 32 * hf) * 3456, t * 16384 + hf * 8192, ("B", t))

    def p1_setup(self):
        g = self.g
        for s in range(5):
            self.dmaA(s)
        g(f"""
        v_lshrrev_b32 v3, 4, v0
        v_and_b32 v2, 15, v0
        s_lshl_b32 {sr(sT1)}, {sr(sCS)}, 8
        s_lshl_b32 {sr(sT2)}, {sr(sCH)}, 7
        s_add_u32 {sr(sT1)}, {sr(sT1)}, {sr(sT2)}
        v_lshlrev_b32 v7, 3, v3
        """)
        for n in range(4):
            g.vmem(f"buffer_load_dwordx2 {vr(24 + 2 * n, 2)}, v7, {sr(SB1, 4)}, {sr(sT1)} offen offset:{32 * n}", "b1")
        g(f"""
        s_cmp_eq_u32 {sr(sCS)}, 14
        s_cselect_b32 {sr(sT0)}, {OOB}, 0
        v_add_u32 v6, {sr(sT0)}, v6
        s_lshl_b32 {sr(sT0)}, {sr(sTT)}, 5
        v_add_u32 v7, {sr(sT0)}, v2
        v_lshlrev_b32 v7, 7, v7
        v_lshrrev_b32 v9, 1, v2
        v_xor_b32 v9, v9, v3
        v_xor_b32 v10, 4, v9
        v_lshl_add_u32 v8, v10, 4, v7
        v_lshl_add_u32 v7, v9, 4, v7
        v_bfe_u32 v16, v0, 2, 2
        v_and_b32 v17, 3, v0
        v_lshl_add_u32 v18, v3, 3, v16
        v_lshlrev_b32 v18, 8, v18
        v_lshl_add_u32 v18, v17, 3, v18
        v_and_b32 v19, 1, v3
        v_lshl_add_u32 v19, v19, 2, v16
        s_lshl_b32 {sr(sT0)}, {sr(sCH)}, 2
        v_xor_b32 v19, {sr(sT0)}, v19
        """)
        for n in range(4):
            g(f"v_xor_b32 v20, {n}, v19\nv_lshl_add_u32 {vr(self.vWR[n])}, v20, 5, v18")
        LV, LD = self.lab("stv"), self.lab("std")
        g(f"""
        s_mul_i32 {sr(sT0)}, {sr(sCS)}, 205
        s_lshr_b32 {sr(sT0)}, {sr(sT0)}, 10
        s_mul_i32 {sr(sT1)}, {sr(sT0)}, 5
        s_sub_u32 {sr(sT1)}, {sr(sCS)}, {sr(sT1)}
        s_lshl_b32 {sr(sT2)}, {sr(sRB)}, 2
        s_add_u32 {sr(sT2)}, {sr(sT2)}, {sr(sTT)}
        s_cmp_eq_u32 {sr(sT0)}, 0
        s_mov_b32 {sr(sT3)}, 2560
        s_cselect_b32 {sr(sT3)}, 1280, {sr(sT3)}
        s_mov_b32 {sr(sT4)}, {KVOFF}
        s_cselect_b32 {sr(sT4)}, {QOFF}, {sr(sT4)}
        s_mul_i32 {sr(sT2)}, {sr(sT2)}, {sr(sT3)}
        s_add_u32 {sr(sT4)}, {sr(sT4)}, {sr(sT2)}
        s_lshl_b32 {sr(sT3)}, {sr(sT3)}, 6
        s_cmp_eq_u32 {sr(sT0)}, 2
        s_cbranch_scc1 {LV}
        s_lshl_b32 {sr(sT1)}, {sr(sT1)}, 5
        s_lshl_b32 {sr(sT2)}, {sr(sCH)}, 4
        s_add_u32 {sr(sT1)}, {sr(sT1)}, {sr(sT2)}
        v_add_u32 v16, {sr(sT1)}, v3
        v_lshlrev_b32 v17, 4, v2
        v_add_u32 v17, {sr(sT4)}, v17
        """)
        for n in range(4):
            g(f"""
            v_add_u32 v18, {4 * n}, v16
            v_mul_u32_u24 v19, 205, v18
            v_lshrrev_b32 v19, 10, v19
            v_mul_u32_u24 v20, 5, v19
            v_sub_u32 v20, v18, v20
            v_mul_lo_u32 v19, v19, {sr(sT3)}
            v_lshl_add_u32 v19, v20, 8, v19
            v_add_u32 {vr(self.vST[n])}, v19, v17
            """)
        g(f"s_branch {LD}")
        g.label(LV)
        g(f"""
        s_lshl_b32 {sr(sT1)}, {sr(sT1)}, 7
        s_lshl_b32 {sr(sT2)}, {sr(sCH)}, 6
        s_add_u32 {sr(sT1)}, {sr(sT1)}, {sr(sT2)}
        v_add_u32 v16, {sr(sT1)}, v2
        v_mul_u32_u24 v17, 320, v3
        s_add_u32 {sr(sT4)}, {sr(sT4)}, 1280
        v_add_u32 v17, {sr(sT4)}, v17
        """)
        for n in range(4):
            g(f"""
            v_add_u32 v18, {16 * n}, v16
            v_mul_u32_u24 v19, 3277, v18
            v_lshrrev_b32 v19, 16, v19
            v_mul_u32_u24 v20, 20, v19
            v_sub_u32 v20, v18, v20
            v_mul_lo_u32 v19, v19, {sr(sT3)}
            v_lshl_add_u32 v19, v20, 4, v19
            v_add_u32 {vr(self.vST[n])}, v19, v17
            """)
        g.label(LD)

    def rd(self, mn, dst, n, areg, off, tag, base):
        g = self.g
        if not (0 <= off - base[areg] <= 65535):
            nb = off & ~16383
            g(f"v_add_u32 {vr(areg)}, {(nb - base[areg]) & 0xFFFFFFFF}, {vr(areg)}")
            base[areg] = nb
        g.lds(f"{mn} {vr(dst, n)}, {vr(areg)} offset:{off - base[areg]}", tag)

    def xreg(self, s, kk, t):
        return self.XREG + ((2 * s + kk) * 2 + t) * 4

    def reads_x(self, s, base):
        return [lambda kk=kk, t=t: self.rd("ds_read_b128", self.xreg(s, kk, t), 4, self.vXR[kk], (s % 5) * 32768 + t * 2048, ("x", s), base)
                for t in range(2) for kk in range(2)]

    def reads_w(self, ph, s, n, base):
        o = (s % 5) * 32768 + 16384 if ph == "A" else s * 16384
        return [lambda kk=kk, u=u: self.rd("ds_read_b64_tr_b16", self.WREG + 8 * n + 4 * kk + 2 * u, 2, self.vWR[n], o + kk * 8192 + u * 1024,
                                           ("w", ph, s, n), base) for kk in range(2) for u in range(2)]

    def acc(self, ph, n, t):
        return self.ACC + (n * 2 + t) * 4 if ph == "A" else self.ACC + ((n >> 1) * 2 + t) * 8 + (n & 1) * 4

    def stage(self, ph, s, swap, base, nxt, pending, at_barrier):
        g = self.g
        for n in range(4):
            tags = [("w", ph, s, n)] + ([("x", s)] if ph == "A" and n == 0 else [])
            g.wait(lg=tags)
            for m in range(4):
                t, kk = m >> 1, m & 1
                a = self.acc(ph, n, t)
                w, x = vr(self.WREG + 8 * n + 4 * kk, 4), vr(self.xreg(s, kk, t), 4)
                c = vr(a, 4)
                if s == 0 and kk == 0:
                    c = "0" if ph == "A" else vr(self.BIAS + 4 * n, 4)
                A, B = (x, w) if swap else (w, x)
                g(f"v_mfma_f32_16x16x32_bf16 {vr(a, 4)}, {A}, {B}, {c}")
                k = (len(pending) + (3 - m)) // (4 - m)
                for f in pending[:k]:
                    f()
                pending = pending[k:]
            if nxt is not None:
                if n == 0:
                    at_barrier()
                pending = self.reads_w(nxt[0], nxt[1], n, base)
                if nxt[0] == "A" and n < 2:
                    pending = self.reads_x(nxt[1], base)[2 * n:2 * n + 2] + pending
        return pending

    def passA(self, swap):
        g, o = self.g, self.o
        base = {r: 0 for r in self.vXR + self.vWR}
        g.wait(vm=("A", 0))
        g("s_barrier")
        self.stamp(1)
        for f in self.reads_x(0, base):
            f()
        for n in range(3):
            for f in self.reads_w("A", 0, n, base):
                f()
        pending = self.reads_w("A", 0, 3, base)
        nb = 0
        for s in range(10):
            nxt = ("A", s + 1) if s < 9 else ("B", 0)

            def at_barrier():
                nonlocal nb
                g.wait(vm=nxt)
                g("s_barrier")
                if s == 0:
                    pass
                elif s + 4 < 10:
                    self.dmaA(s + 4)
                else:
                    for _ in range(2):
                        if nb < o.nb_pre:
                            self.dmaB(nb); nb += 1
            if s == 5:
                g.wait(vm="b1")
                for n in range(4):
                    for hf in range(2):
                        g(f"v_lshlrev_b32 {vr(self.BIAS + 4 * n + 2 * hf)}, 16, {vr(24 + 2 * n + hf)}")
                        g(f"v_and_b32 {vr(self.BIAS + 4 * n + 2 * hf + 1)}, 0xffff0000, {vr(24 + 2 * n + hf)}")
            pending = self.stage("A", s, swap, base, nxt, pending, at_barrier)
        return base, pending, nb

    def phase1(self):
        g, o = self.g, self.o
        self.p1_setup()
        g(f"s_cmp_ge_u32 {sr(sCS)}, 10\ns_cbranch_scc1 LpassA_v")
        st = g.state()
        self.passA(False)
        g("s_branch LepiA")
        g.restore(st)
        g.label("LpassA_v")
        base, pending, nb = self.passA(True)
        g.label("LepiA")
        for f in pending:
            f()
        self.stamp(2)
        g(f"s_nop 3\ns_cmp_ge_u32 {sr(sCS)}, 5\ns_cbranch_scc1 LnoQ")
        g(f"s_mov_b32 {sr(sT0)}, {f32hex(QSCALE)}")
        for r in range(32):
            g(f"v_mul_f32 {vr(self.ACC + r)}, {sr(sT0)}, {vr(self.ACC + r)}")
        g.label("LnoQ")
        for n in range(4):
            a = self.ACC + 8 * n
            for q in range(4):
                g(f"v_cvt_pk_bf16_f32 {vr(a + q)}, {vr(a + 2 * q)}, {vr(a + 2 * q + 1)}")
            g.vmem(f"buffer_store_dwordx4 {vr(a, 4)}, {vr(self.vST[n])}, {sr(SWS, 4)}, 0 offen sc1", "stA")
        g("v_mov_b32 v2, 0")
        g.vmem(f"buffer_load_dword v3, v2, {sr(SDBG, 4)}, 0 offen sc1", "clean")
        g(f"s_cmp_eq_u32 {sr(sCS)}, 14\ns_cbranch_scc1 LnoB")
        pending = []
        for s in range(10):
            nxt = ("B", s + 1) if s < 9 else None

            def at_barrier():
                nonlocal nb
                tags = [nxt]
                if s + 1 == o.flag_stage:
                    tags += ["stA", "clean"]
                g.wait(vm=tags)
                if s + 1 == o.flag_stage:
                    self.check_clean()
                g("s_barrier")
                if s == 0:
                    while nb < 10:
                        self.dmaB(nb); nb += 1
                if s + 1 == o.flag_stage:
                    self.flagQ()
                if s + 1 == 8:
                    self.const_init()
            pending = self.stage("B", s, False, base, nxt, pending, at_barrier)
        self.stamp(3)
        g("s_nop 7")
        for r in range(32):
            g(f"v_max_f32 {vr(self.ACC + r)}, 0, {vr(self.ACC + r)}")
        for r in range(32):
            g(f"v_mul_f32 {vr(self.ACC + r)}, {vr(self.ACC + r)}, {vr(self.ACC + r)}")
        for b in range(4):
            a = self.ACC + 8 * b
            for q in range(4):
                g(f"v_cvt_pk_bf16_f32 {vr(16 + 4 * b + q)}, {vr(a + 2 * q)}, {vr(a + 2 * q + 1)}")
        g(f"""
        s_lshl_b32 {sr(sT0)}, {sr(sRB)}, 3
        s_lshl_b32 {sr(sT1)}, {sr(sTT)}, 1
        s_add_u32 {sr(sT0)}, {sr(sT0)}, {sr(sT1)}
        s_mul_i32 {sr(sT0)}, {sr(sT0)}, 54
        s_lshl_b32 {sr(sT1)}, {sr(sCS)}, 2
        s_lshl_b32 {sr(sT2)}, {sr(sCH)}, 1
        s_add_u32 {sr(sT1)}, {sr(sT1)}, {sr(sT2)}
        s_add_u32 {sr(sT0)}, {sr(sT0)}, {sr(sT1)}
        s_lshl_b32 {sr(sT0)}, {sr(sT0)}, 10
        s_add_u32 {sr(sT0)}, {sr(sT0)}, {HOFF}
        s_cmp_ge_u32 {sr(sT1)}, 54
        s_cselect_b32 {sr(sHS)}, {OOB}, {sr(sT0)}
        s_branch Lphase2
        """)
        g.label("LnoB")
        g("s_waitcnt vmcnt(0) lgkmcnt(0)")
        self.check_clean()
        g("s_barrier")
        self.flagQ()
        self.const_init()
        g(f"s_mov_b32 {sr(sHS)}, {OOB}\ns_branch Lphase2")

    def check_clean(self):
        g = self.g
        L = self.lab("clean")
        g(f"v_cmp_ne_u32 vcc, 1, v3\ns_cbranch_vccz {L}")
        st = g.state()
        self.poll(2, 3, SDBG)
        g.restore(st)
        g.label(L)

    def flagQ(self, off=FQ, wave=0):
        g = self.g
        L = self.lab("nofq")
        g(f"s_mov_b32 {sr(sT2)}, {off}\ns_cmp_lg_u32 {sr(sW)}, {wave}\ns_cselect_b32 {sr(sT2)}, {OOB}, {sr(sT2)}")
        self.set_flag(f"""
        s_lshl_b32 {sr(sT1)}, {sr(sCS)}, 4
        s_add_u32 {sr(sT1)}, {sr(sT1)}, {sr(sRB)}
        s_lshl_b32 {sr(sT1)}, {sr(sT1)}, 7
        s_add_u32 {sr(sT1)}, {sr(sT1)}, {sr(sT2)}""", 2, 3)

    def const_init(self):
        g = self.g
        a, d = 13, 4
        g(f"""
        v_and_b32 v14, 31, v0
        v_lshrrev_b32 v15, 5, v0
        s_lshl_b32 {sr(sT0)}, {sr(sW)}, 1
        v_add_u32 v15, {sr(sT0)}, v15
        v_mul_u32_u24 v15, {REC}, v15
        v_lshl_add_u32 v13, v14, 4, v15
        v_and_b32 v15, 23, v14
        v_cmp_eq_u32 vcc, 16, v15
        v_mov_b32 v15, 0x3f803f80
        v_mov_b32 v1, 0x3f80
        v_cndmask_b32 v5, 0, v15, vcc
        v_cmp_eq_u32 vcc, 20, v14
        v_mov_b32 v14, v5
        v_mov_b32 v15, v5
        v_cndmask_b32 v4, v5, v1, vcc
        """)
        g.lds(f"ds_write_b64 v13, v[4:5] offset:2560", "cw")
        g.lds(f"ds_write_b64 v13, v[14:15] offset:2568", "cw")
        L = self.lab("cw")
        g(f"s_cmp_lg_u32 {sr(sW)}, 0\ns_cbranch_scc1 {L}")
        g(f"ds_write_b64 v13, v[4:5] offset:{2560 + 16 * REC}")
        g(f"ds_write_b64 v13, v[14:15] offset:{2568 + 16 * REC}")
        g("s_waitcnt lgkmcnt(0)")
        g.label(L)

    def gate(self):
        g = self.g
        g.label("Lgate")
        L = self.lab("noclr")
        g(f"""
        s_cmp_lg_u32 {sr(sRB)}, 0
        s_cbranch_scc1 {L}
        s_lshl_b32 {sr(sT0)}, {sr(sW)}, 13
        v_lshlrev_b32 v2, 7, v0
        v_add_u32 v2, {sr(sT0)}, v2
        v_mov_b32 v3, 0
        s_mov_b32 {sr(sT0)}, 0x10000
        s_mov_b32 {sr(sT1)}, 0x20000
        buffer_store_dword v3, v2, {sr(SWS, 4)}, 0 offen sc1
        buffer_store_dword v3, v2, {sr(SWS, 4)}, {sr(sT0)} offen sc1
        buffer_store_dword v3, v2, {sr(SWS, 4)}, {sr(sT1)} offen sc1
        s_waitcnt vmcnt(0)
        s_barrier
        s_cmp_lg_u32 {sr(sW)}, 0
        s_cbranch_scc1 {L}
        v_mov_b32 v2, 1
        s_mov_b64 exec, 1
        buffer_store_dword v2, v3, {sr(SDBG, 4)}, 0 offen sc1
        s_mov_b64 exec, -1
        """)
        g.label(L)
        g(f"""
        v_and_b32 v2, 15, v0
        v_lshrrev_b32 v3, 4, v0
        s_lshl_b32 {sr(sT0)}, {sr(sRB)}, 7
        s_lshl_b32 {sr(sT1)}, {sr(sW)}, 4
        s_add_u32 {sr(sT0)}, {sr(sT0)}, {sr(sT1)}
        v_add_u32 v2, {sr(sT0)}, v2
        v_lshlrev_b32 v3, 4, v3
        v_mul_u32_u24 v4, 1280, v2
        v_add_u32 v4, v4, v3
        """)
        for s in range(20):
            g(f"buffer_load_dwordx4 {vr(96 + 4 * s, 4)}, v4, {sr(SX, 4)}, 0 offen offset:{64 * s}")
            g(f"buffer_load_dwordx4 {vr(176 + 4 * s, 4)}, v3, {sr(SGW, 4)}, 0 offen offset:{64 * s}")
        g("s_waitcnt vmcnt(0)")
        for s in range(20):
            g(f"v_mfma_f32_16x16x32_bf16 v[64:67], {vr(176 + 4 * s, 4)}, {vr(96 + 4 * s, 4)}, {'0' if s == 0 else 'v[64:67]'}")
        g(f"""
        s_nop 7
        v_mul_f32 v64, {f32hex(-math.log2(math.e))}, v64
        v_exp_f32 v64, v64
        v_lshlrev_b32 v4, 2, v2
        v_add_f32 v64, 1.0, v64
        v_rcp_f32 v64, v64
        s_mov_b32 {sr(sT0)}, {GOFF}
        s_mov_b64 exec, 0xffff
        buffer_store_dword v64, v4, {sr(SWS, 4)}, {sr(sT0)} offen sc1
        s_mov_b64 exec, -1
        v_mov_b32 v2, 0
        buffer_load_dword v3, v2, {sr(SDBG, 4)}, 0 offen sc1
        s_branch LnoB
        """)

    def h_stores(self, vl16):
        g = self.g
        for b in range(4):
            s2, t = b >> 1, b & 1
            g(f"s_add_u32 {sr(sT0)}, {sr(sHS)}, {(t * 54 + s2) * 1024}")
            g.vmem(f"buffer_store_dwordx4 {vr(16 + 4 * b, 4)}, {vr(vl16)}, {sr(SWS, 4)}, {sr(sT0)} offen sc1", "stH")

    def build(self):
        g = self.g
        self.prologue()
        self.phase1()
        self.gate()
        g.label("Lphase2")
        g.vm, g.lg, g.vm_done, g.lg_done = [], [], 0, 0
        from gen2 import phase2
        phase2(self)
        g.label("Lend")
        g("s_endpgm")
        g.label("Lcode_end")
        bad = hazard_check(g.lines)
        for b in bad:
            print("HAZARD", b, file=sys.stderr)
        head = open("gated_mix__mha_block__dense_activation_squared_relu__prompt.s.ref").read().split("; Override launch")[0]
        txt = head + f"; @launch grid=(256,1,1) block=(512,1,1) lds={LDS_BYTES}\n"
        txt += f""".amdgcn_target "amdgcn-amd-amdhsa--gfx950"
.text
.globl {NAME}
.p2align 8
.type {NAME},@function
{NAME}:
"""
        body = g.text().replace("CODE_BYTES", str(self.o.code_bytes))
        txt += body
        txt += f""".section .rodata,"a"
.p2align 6
.amdhsa_kernel {NAME}
  .amdhsa_next_free_vgpr 256
  .amdhsa_next_free_sgpr 102
  .amdhsa_accum_offset 256
  .amdhsa_group_segment_fixed_size 0
  .amdhsa_kernarg_size 96
  .amdhsa_user_sgpr_count 2
  .amdhsa_user_sgpr_kernarg_segment_ptr 1
  .amdhsa_system_sgpr_workgroup_id_x 1
.end_amdhsa_kernel
"""
        return txt, bad


def options(argv=None):
    p = argparse.ArgumentParser()
    p.add_argument("-o", default="gated_mix__mha_block__dense_activation_squared_relu__prompt.s")
    p.add_argument("--stamps", type=int, default=0)
    p.add_argument("--code_prefetch", type=int, default=1)
    p.add_argument("--nb_pre", type=int, default=6)
    p.add_argument("--flag_stage", type=int, default=6)
    p.add_argument("--steps", default="0,0,0,3,3,3,3,2")
    p.add_argument("--force_fallback", type=int, default=0)
    p.add_argument("--split", default="4,4,4,4")
    p.add_argument("--prio", type=int, default=1)
    o = p.parse_args(argv)
    o.code_bytes = 0
    return o


def code_size(txt):
    import subprocess, tempfile, os, re
    d = tempfile.mkdtemp()
    open(d + "/k.s", "w").write(txt)
    r = subprocess.run(["clang", "-x", "assembler", "-target", "amdgcn-amd-amdhsa", "-mcpu=gfx950", "-c", d + "/k.s", "-o", d + "/k.o"],
                       capture_output=True, text=True)
    if r.returncode:
        print(r.stderr[:3000]); raise SystemExit(1)
    r = subprocess.run(["llvm-readelf", "-S", d + "/k.o"], capture_output=True, text=True)
    m = re.search(r"\.text\s+PROGBITS\s+\S+\s+\S+\s+(\S+)", r.stdout)
    return int(m.group(1), 16)


if __name__ == "__main__":
    o = options()
    o.code_bytes = 4096
    txt, _ = Gen(o).build()
    sz = code_size(txt)
    o.code_bytes = (sz - 512) & ~3
    txt, bad = Gen(o).build()
    open(o.o, "w").write(txt)
    print(f"wrote {o.o}: code {sz} bytes, {len(txt)} chars, hazards {len(bad)}")
```

```python
from asmlib import *
from gen import *

SB = (64, 80, 96, 112)
OA = (128, 144)
QM = (32, 36)
QR = (40, 42)
KM = (44, 48)
KR = (52, 56)
VF = (160, 168)
vIDX, vKm, vKr, vV0, vV1, vG, vL16 = 60, 61, 62, 63, 12, 10, 9


TB1 = 12


def rec(t):
    return (t % NREC) * REC


def s_mfmas(n, dst=None):
    qt, t = n & 1, n >> 1
    d = SB[n % 4] if dst is None else dst
    kr = KR[(t >> 1) & 1] + 2 * (t & 1)
    return [f"v_mfma_f32_32x32x8_bf16 {vr(d, 16)}, {vr(kr, 2)}, {vr(QR[qt], 2)}, 0",
            f"v_mfma_f32_32x32x16_bf16 {vr(d, 16)}, {vr(KM[t & 1], 4)}, {vr(QM[qt], 4)}, {vr(d, 16)}"]


def pv_mfmas(n):
    qt, t = n & 1, n >> 1
    p, v = SB[n % 4], VF[t & 1]
    return [f"v_smfmac_f32_32x32x32_bf16 {vr(OA[qt], 16)}, {vr(v + 4 * u, 4)}, {vr(p + 8 * u, 8)}, {vr(vIDX)}" for u in range(2)]


def koff_code(g, dst, t0, t1):
    g(f"""
    v_bfe_u32 {vr(t0)}, v0, 3, 2
    v_and_b32 {vr(t1)}, 3, v0
    v_lshl_add_u32 {vr(t0)}, {vr(t0)}, 2, {vr(t1)}
    v_bfe_u32 {vr(t1)}, v0, 2, 1
    v_lshlrev_b32 {vr(t1)}, 3, {vr(t1)}
    v_lshl_add_u32 {vr(dst)}, {vr(t0)}, 4, {vr(t1)}
    """)


def row_max(g, src, dst, tmp):
    g(f"v_max3_f32 {vr(dst)}, {vr(src)}, {vr(src + 1)}, {vr(src + 2)}")
    for r in range(3, 15, 2):
        g(f"v_max3_f32 {vr(dst)}, {vr(dst)}, {vr(src + r)}, {vr(src + r + 1)}")
    g(f"v_max_f32 {vr(dst)}, {vr(dst)}, {vr(src + 15)}")


def both_halves(g, a, b):
    g(f"v_mov_b32 {vr(b)}, {vr(a)}\ns_nop 1\nv_permlane32_swap_b32 {vr(a)}, {vr(b)}")


def attention(G):
    g, o = G.g, G.o
    split = [int(x) for x in o.split.split(",")]
    sQ = sA
    g(f"""
    s_mul_i32 {sr(sT0)}, {sr(sH)}, 5
    s_add_u32 {sr(sT1)}, {sr(sT0)}, 4
    s_lshr_b32 {sr(sT0)}, {sr(sT0)}, 5
    s_lshr_b32 {sr(sT1)}, {sr(sT1)}, 5
    s_lshl_b32 {sr(sT2)}, {sr(sJ)}, 1
    s_lshr_b32 {sr(sT3)}, {sr(sW)}, 1
    s_add_u32 {sr(sT2)}, {sr(sT2)}, {sr(sT3)}
    v_mov_b32 v2, {sr(sT1)}
    v_writelane_b32 v2, {sr(sT0)}, 0
    v_lshlrev_b32 v2, 4, v2
    v_add_u32 v2, {sr(sT2)}, v2
    v_lshlrev_b32 v2, 7, v2
    v_lshlrev_b32 {vr(vL16)}, 4, v0
    v_lshrrev_b32 v4, 5, v0
    v_and_b32 v5, 15, v0
    v_bfe_u32 v6, v0, 4, 1
    v_lshlrev_b32 v7, 4, v5
    v_lshl_add_u32 v7, v6, 3, v7
    v_lshl_add_u32 v8, v4, 8, v7
    s_lshl_b32 {sr(sT0)}, {sr(sH)}, 6
    s_lshl_b32 {sr(sT1)}, {sr(sJ)}, 3
    s_lshl_b32 {sr(sT2)}, {sr(sW)}, 1
    s_add_u32 {sr(sT1)}, {sr(sT1)}, {sr(sT2)}
    s_add_u32 {sr(sT0)}, {sr(sT0)}, {sr(sT1)}
    s_mul_i32 {sr(sQ)}, {sr(sT0)}, 1280
    s_add_u32 {sr(sQ)}, {sr(sQ)}, {QOFF}
    s_lshl_b32 {sr(sA + 1)}, {sr(sT1)}, 7
    s_add_u32 {sr(sA + 1)}, {sr(sA + 1)}, {GOFF}
    """)
    G.poll(2, 3)
    G.stamp(4)
    for qt in range(2):
        for u in range(2):
            g.vmem(f"buffer_load_dwordx2 {vr(QM[qt] + 2 * u, 2)}, v8, {sr(SWS, 4)}, {sr(sQ)} offen offset:{qt * 1280 + u * 512} sc1", "q")
        g.vmem(f"buffer_load_dwordx2 {vr(QR[qt], 2)}, v7, {sr(SWS, 4)}, {sr(sQ)} offen offset:{qt * 1280 + 1024} sc1", "q")
    G.h_stores(vL16)
    G.const_init(0)
    g("v_and_b32 v13, 31, v0\nv_lshlrev_b32 v8, 2, v13\nv_lshrrev_b32 v4, 5, v0")
    koff_code(g, 2, 3, 15)
    g(f"""
    v_lshl_add_u32 {vr(vKm)}, v4, 8, v2
    v_cmp_gt_u32 vcc, 32, v0
    v_add_u32 v2, 1024, v2
    v_mov_b32 v3, {2560 + 256 + 64}
    v_cndmask_b32 {vr(vKr)}, v3, v2, vcc
    v_mov_b32 {vr(vIDX)}, 0xdddddddd
    """)
    for u, dst in enumerate((vV0, vV1)):
        g(f"""
        v_add_u32 v2, {2 * u}, v4
        v_mul_u32_u24 v3, 320, v2
        v_lshl_add_u32 v3, v13, 4, v3
        v_add_u32 v3, 1280, v3
        v_lshlrev_b32 v2, 2, v2
        v_add_u32 v2, 12, v2
        v_and_b32 v2, 15, v2
        v_lshlrev_b32 v2, 4, v2
        v_add_u32 v2, 2560, v2
        v_cmp_gt_u32 vcc, 28, v13
        v_mov_b32 v15, {2560 + (9 if u == 0 else 1) * 16}
        v_mov_b32 v1, {2560 + 256 + (8 if u == 0 else 0) * 16}
        v_cndmask_b32 v2, v2, v15, vcc
        v_cmp_eq_u32 vcc, 20, v13
        s_nop 1
        v_cndmask_b32 v2, v2, v1, vcc
        v_cmp_gt_u32 vcc, 20, v13
        s_nop 1
        v_cndmask_b32 {vr(dst)}, v2, v3, vcc
        """)
    for r in range(32):
        g(f"v_mov_b32 {vr(OA[0] + r)}, 0")
    g.wait(vm="q")
    g("s_mov_b32 exec_lo, 0")
    for r in range(4):
        g(f"v_mov_b32 {vr(QR[0] + r)}, 0")
    g("s_mov_b32 exec_lo, -1")
    g("s_waitcnt lgkmcnt(0)\ns_barrier")
    G.stamp(5)
    if o.prio:
        g(f"s_setprio {o.prio}")

    base = {vKm: 0, vKr: 0, vV0: 0, vV1: 0}

    def rebase(reg, off, span, lim):
        if not (0 <= off - base[reg] and off + span - base[reg] <= lim):
            g(f"v_add_u32 {vr(reg)}, {(off - base[reg]) & 0xFFFFFFFF}, {vr(reg)}")
            base[reg] = off
        return off - base[reg]

    def rdKm(t):
        b = rebase(vKm, rec(t), 512, 255 * 512) // 512
        g.lds(f"ds_read2st64_b64 {vr(KM[t & 1], 4)}, {vr(vKm)} offset0:{b} offset1:{b + 1}", ("km", t))

    def rdKr(t):
        b = rebase(vKr, rec(t), REC, 255 * 512) // 512
        g.lds(f"ds_read2st64_b64 {vr(KR[(t >> 1) & 1], 4)}, {vr(vKr)} offset0:{b} offset1:{b + 6}", ("kr", t))

    def rdV(t, u):
        r = (vV0, vV1)[u]
        g.lds(f"ds_read_b128 {vr(VF[t & 1] + 4 * u, 4)}, {vr(r)} offset:{rebase(r, rec(t), 0, 65535)}", ("v", t))

    rdKr(0); rdKm(0); rdKm(1)
    g.wait(lg=("km", 0))
    a0, a1 = s_mfmas(0), s_mfmas(1)
    g(a0[0]); g(a1[0]); g(a0[1]); g(a1[1])
    g("s_nop 10")
    for qt in range(2):
        row_max(g, SB[qt], 2 + 2 * qt, None)
    for qt in range(2):
        both_halves(g, 2 + 2 * qt, 3 + 2 * qt)
    for qt in range(2):
        g(f"v_max_f32 {vr(2 + 2 * qt)}, {vr(2 + 2 * qt)}, {vr(3 + 2 * qt)}")
    g("s_mov_b32 exec_lo, 0")
    for qt in range(2):
        g(f"v_cvt_pk_bf16_f32 {vr(QR[qt])}, -{vr(2 + 2 * qt)}, 0")
    g("s_mov_b32 exec_lo, -1\ns_nop 0")
    g(a0[0]); g(a0[1])
    g("s_nop 11")
    for n in range(128):
        qt, t = n & 1, n >> 1
        cur = SB[n % 4]
        m = (s_mfmas(n + 1) if n < 127 else [None, None]) + (pv_mfmas(n - 1) if n > 0 else [None, None])
        ex = [[], [], [], []]
        if qt == 0:
            ex[1].append(lambda: rdV(t, 0))
            ex[2].append(lambda: rdV(t, 1))
            if t + 1 < 64:
                ex[3].append(lambda: g.wait(lg=[("km", t + 1), ("kr", (t + 1) & ~1)]))
        else:
            ex[1].append(lambda: g.wait(lg=("v", t)))
            if t + 2 < 64:
                if t + 2 in (TB1, 20, 48):
                    def bar():
                        if t + 2 == TB1:
                            g.wait(vm="all")
                        g("s_barrier")
                        if t + 2 == 48:
                            for q2 in range(2):
                                g.vmem(f"buffer_load_dword {vr(vG + q2)}, v8, {sr(SWS, 4)}, {sr(sA + 1)} offen offset:{q2 * 128} sc1", "g")
                    ex[1].append(bar)
                if (t + 2) % 8 == 0 and o.fine == "att":
                    ex[1].append(lambda: G.stamp(8 + (t + 2) // 8))
                ex[1].append(lambda: rdKm(t + 2))
                if t % 2 == 0:
                    ex[2].append(lambda: rdKr(t + 2))
        e = 0
        for i in range(4):
            if m[i]:
                g(m[i])
            for f in ex[i]:
                f()
            for _ in range(split[i]):
                g(f"v_exp_f32 {vr(cur + e)}, {vr(cur + e)}"); e += 1
    m = pv_mfmas(127)
    g(m[0]); g("s_nop 0"); g(m[1])
    g("s_setprio 0")
    g.wait(vm="g")
    G.stamp(6)
    g(f"""
    v_and_b32 v5, 15, v0
    v_bfe_u32 v6, v0, 4, 1
    v_lshrrev_b32 v4, 5, v0
    v_mul_u32_u24 v6, 20480, v6
    v_lshl_add_u32 v7, v5, 4, v6
    v_lshl_add_u32 v6, v4, 8, v7
    s_lshr_b32 {sr(sT0)}, {sr(sH)}, 1
    s_and_b32 {sr(sT0)}, {sr(sT0)}, 3
    s_and_b32 {sr(sT1)}, {sr(sH)}, 1
    s_lshl_b32 {sr(sT3)}, {sr(sT0)}, 10
    s_lshl_b32 {sr(sT4)}, {sr(sT1)}, 9
    s_add_u32 {sr(sT3)}, {sr(sT3)}, {sr(sT4)}
    v_add_u32 v6, {sr(sT3)}, v6
    s_lshl_b32 {sr(sT3)}, {sr(sT0)}, 8
    s_lshl_b32 {sr(sT4)}, {sr(sT1)}, 3
    s_add_u32 {sr(sT3)}, {sr(sT3)}, {sr(sT4)}
    s_add_u32 {sr(sT3)}, {sr(sT3)}, 4096
    v_add_u32 v7, {sr(sT3)}, v7
    s_lshl_b32 {sr(sT2)}, {sr(sJ)}, 2
    s_add_u32 {sr(sT2)}, {sr(sT2)}, {sr(sW)}
    s_mul_i32 {sr(sT3)}, {sr(sT2)}, {4 * 20480}
    s_lshr_b32 {sr(sT4)}, {sr(sH)}, 3
    s_mul_i32 {sr(sT4)}, {sr(sT4)}, 5120
    s_add_u32 {sr(sT3)}, {sr(sT3)}, {sr(sT4)}
    s_add_u32 {sr(sT3)}, {sr(sT3)}, {OOFF}
    s_add_u32 {sr(sT4)}, {sr(sT3)}, {2 * 20480}
    """)
    g("v_mov_b32 v8, 0")
    for qt in range(2):
        g(f"v_mov_b32 {vr(16 + 2 * qt)}, {vr(OA[qt] + 8)}")
        both_halves(g, 16 + 2 * qt, 17 + 2 * qt)
        for r in range(12):
            g(f"v_fma_f32 v8, {vr(OA[qt] + r)}, 0, v8")
    g(f"""
    v_min_f32 v2, v17, v19
    v_max_f32 v3, v17, v19
    v_add_f32 v2, v2, v8
    v_cmp_nle_f32 vcc, {f32hex(2.0 ** -30)}, v2
    s_mov_b64 {sr(sA + 2, 2)}, vcc
    v_cmp_nge_f32 vcc, {f32hex(2.0 ** 60)}, v3
    s_or_b64 vcc, vcc, {sr(sA + 2, 2)}
    """)
    g("s_branch Lfallback" if o.force_fallback else "s_cbranch_vccnz Lfallback")
    g.label("Lnorm")
    for qt in range(2):
        g(f"v_rcp_f32 {vr(16 + 2 * qt)}, {vr(17 + 2 * qt)}")
    g("s_nop 0")
    for qt in range(2):
        g(f"v_mul_f32 {vr(16 + 2 * qt)}, {vr(16 + 2 * qt)}, {vr(vG + qt)}")
    for qt in range(2):
        a = OA[qt]
        for r in range(12):
            g(f"v_mul_f32 {vr(a + r)}, {vr(a + r)}, {vr(16 + 2 * qt)}")
        for q in range(6):
            g(f"v_cvt_pk_bf16_f32 {vr(a + q)}, {vr(a + 2 * q)}, {vr(a + 2 * q + 1)}")
        g(f"buffer_store_dwordx4 {vr(a, 4)}, v6, {sr(SWS, 4)}, {sr((sT3, sT4)[qt])} offen sc1")
    g("s_mov_b32 exec_hi, 0")
    for qt in range(2):
        g(f"buffer_store_dwordx2 {vr(OA[qt] + 4, 2)}, v7, {sr(SWS, 4)}, {sr((sT3, sT4)[qt])} offen sc1")
    g("s_mov_b32 exec_hi, -1")
    g("s_waitcnt vmcnt(0)")
    G.set_flag(f"""
    s_lshl_b32 {sr(sT1)}, {sr(sT2)}, 5
    s_add_u32 {sr(sT1)}, {sr(sT1)}, {sr(sH)}
    s_lshl_b32 {sr(sT1)}, {sr(sT1)}, 7
    s_add_u32 {sr(sT1)}, {sr(sT1)}, {FO}""", 2, 3)
    G.stamp(7)
    G.dump_stamps()
    g("s_endpgm")
    fallback(G)


def fallback(G):
    g = G.g
    sK, sN = sA + 4, sA + 5
    vMx = (20, 22)
    g.label("Lfallback")
    koff_code(g, 24, 2, 3)
    g(f"""
    v_lshrrev_b32 v4, 5, v0
    v_and_b32 v13, 31, v0
    v_lshl_add_u32 v25, v4, 8, v24
    v_mul_u32_u24 v26, 320, v4
    v_lshl_add_u32 v26, v13, 4, v26
    v_cmp_gt_u32 vcc, 20, v13
    s_mov_b64 {sr(sA + 6, 2)}, vcc
    v_cmp_eq_u32 vcc, 20, v13
    v_mov_b32 v2, 0x3f803f80
    v_mov_b32 v20, 0xff800000
    v_mov_b32 v22, 0xff800000
    """)
    for r in range(8):
        g(f"v_cndmask_b32 {vr(VF[0] + r)}, 0, v2, vcc")
    g("s_mov_b32 exec_lo, 0")
    for r in range(4):
        g(f"v_mov_b32 {vr(QR[0] + r)}, 0")
    g("s_mov_b32 exec_lo, -1")
    for r in range(32):
        g(f"v_mov_b32 {vr(OA[0] + r)}, 0")
    for ps in range(2):
        L = G.lab("fb")
        g(f"s_mul_i32 {sr(sK)}, {sr(sH)}, {64 * 2560}\ns_add_u32 {sr(sK)}, {sr(sK)}, {KVOFF}\ns_mov_b32 {sr(sN)}, 64")
        g.label(L)
        for u in range(2):
            g(f"buffer_load_dwordx2 {vr(KM[0] + 2 * u, 2)}, v25, {sr(SWS, 4)}, {sr(sK)} offen offset:{512 * u} sc1")
        g(f"buffer_load_dwordx2 {vr(KR[0], 2)}, v24, {sr(SWS, 4)}, {sr(sK)} offen offset:1024 sc1")
        if ps:
            g(f"s_mov_b64 exec, {sr(sA + 6, 2)}")
            for u in range(2):
                g(f"buffer_load_dwordx4 {vr(VF[0] + 4 * u, 4)}, v26, {sr(SWS, 4)}, {sr(sK)} offen offset:{1280 + 640 * u} sc1")
            g("s_mov_b64 exec, -1")
        g("s_waitcnt vmcnt(0)")
        a0, a1 = s_mfmas(0), s_mfmas(1)
        g(a0[0]); g(a1[0]); g(a0[1]); g(a1[1])
        g("s_nop 11")
        for qt in range(2):
            if ps == 0:
                row_max(g, SB[qt], 2, None)
                g(f"v_max_f32 {vr(vMx[qt])}, {vr(vMx[qt])}, v2")
            else:
                for r in range(16):
                    g(f"v_sub_f32 {vr(SB[qt] + r)}, {vr(SB[qt] + r)}, {vr(vMx[qt])}")
                for r in range(16):
                    g(f"v_exp_f32 {vr(SB[qt] + r)}, {vr(SB[qt] + r)}")
                g("s_nop 1")
                for x in pv_mfmas(qt):
                    g(x)
        g(f"s_add_u32 {sr(sK)}, {sr(sK)}, 2560\ns_sub_u32 {sr(sN)}, {sr(sN)}, 1\ns_cmp_lg_u32 {sr(sN)}, 0\ns_cbranch_scc1 {L}")
        if ps == 0:
            for qt in range(2):
                both_halves(g, vMx[qt], vMx[qt] + 1)
                g(f"v_max_f32 {vr(vMx[qt])}, {vr(vMx[qt])}, {vr(vMx[qt] + 1)}")
    g("s_nop 11")
    for qt in range(2):
        g(f"v_mov_b32 {vr(16 + 2 * qt)}, {vr(OA[qt] + 8)}")
        both_halves(g, 16 + 2 * qt, 17 + 2 * qt)
    g("s_branch Lnorm")


GA, BI = 64, 4
RING = [r for r in range(24, 64, 4)] + [r for r in range(144, 248, 4)]
vL, vLb, vGG = 248, 249, 252
WOF, OF = 144, 4


def gemm(G):
    g, o = G.g, G.o
    steps = [int(x) for x in o.steps.split(",")]
    assert sum(steps) == 14 and len(steps) == 3
    sWp, sKV, sRec, sWb, sRing = sA, sA + 1, sA + 2, sA + 3, sA + 4
    sHb = sA + 6
    g.label("Lgemm")
    g(f"""
    s_sub_u32 {sr(sWp)}, {sr(sW)}, 4
    s_mul_i32 {sr(sT0)}, {sr(sH)}, 5
    s_add_u32 {sr(sT1)}, {sr(sT0)}, 4
    s_lshr_b32 {sr(sT0)}, {sr(sT0)}, 5
    s_lshr_b32 {sr(sT1)}, {sr(sT1)}, 5
    s_sub_u32 {sr(sT1)}, {sr(sT1)}, {sr(sT0)}
    v_bfe_u32 v2, v0, 4, 1
    v_mul_u32_u24 v2, {sr(sT1)}, v2
    v_lshrrev_b32 v3, 5, v0
    v_mul_u32_u24 v3, 5, v3
    s_add_u32 {sr(sT0)}, {sr(sT0)}, 5
    v_add3_u32 v2, v2, v3, {sr(sT0)}
    v_and_b32 v3, 15, v0
    v_lshl_add_u32 v2, v2, 4, v3
    v_lshlrev_b32 v2, 7, v2
    v_lshlrev_b32 {vr(vL)}, 4, v0
    v_add_u32 {vr(vLb)}, 4096, {vr(vL)}
    s_lshl_b32 {sr(sT0)}, {sr(sH)}, 6
    s_add_u32 {sr(sT0)}, {sr(sT0)}, {sr(sWp)}
    s_mul_i32 {sr(sKV)}, {sr(sT0)}, 2560
    s_add_u32 {sr(sKV)}, {sr(sKV)}, {KVOFF}
    s_mul_i32 {sr(sRec)}, {sr(sWp)}, {REC}
    """)
    G.poll(2, 3)
    G.stamp(4)

    def kv(t0, t1, tag):
        ts = range(t0, t1, 4)
        for t in ts:
            for q in range(2):
                G.dma(SWS, vL, t * 2560 + q * 1024, rec(t) + q * 1024, tag, m0base=sRec, sbase=sKV, flags="sc1")
        g("s_mov_b32 exec_hi, 0")
        for t in ts:
            G.dma(SWS, vL, t * 2560 + 2048, rec(t) + 2048, tag, m0base=sRec, sbase=sKV, flags="sc1")
        g("s_mov_b32 exec_hi, -1")

    kv(0, TB1, "kv0"); kv(TB1, 20, "kv1")
    G.h_stores(vL)
    G.const_init(0)
    for sg in range(4):
        g(f"""
        s_add_u32 {sr(sT0)}, {sr(sWp)}, {1 + sg}
        s_and_b32 {sr(sT0)}, {sr(sT0)}, 3
        s_lshl_b32 {sr(sT1)}, {sr(sRT)}, 2
        s_add_u32 {sr(sHb + sg)}, {sr(sT0)}, {sr(sT1)}
        """)
    g.wait(vm="kv0")
    g("s_waitcnt lgkmcnt(0)\ns_barrier")
    G.const_init(1)
    g.wait(vm="all")
    kv(20, 48, "kv2")
    g("s_barrier")
    G.flagQ(FH, 4)
    g(f"""
    s_mul_i32 {sr(sT2)}, {sr(sCP)}, 160
    s_cmp_eq_u32 {sr(sWp)}, 0
    s_cselect_b32 {sr(sT1)}, 0, {OOB}
    s_add_u32 {sr(sT1)}, {sr(sT1)}, {sr(sT2)}
    v_lshrrev_b32 v2, 4, v0
    v_lshlrev_b32 v2, 3, v2
    """)
    for n in range(5):
        g.vmem(f"buffer_load_dwordx2 {vr(GA + 2 * n, 2)}, v2, {sr(SB2, 4)}, {sr(sT1)} offen offset:{32 * n}", "b2")

    def frag(i, k):
        return RING[(i % 4) * 9 + k]

    def loads(i):
        L = []
        for n in range(5):
            L.append(lambda n=n: g.vmem(f"buffer_load_dwordx4 {vr(frag(i, n), 4)}, {vr(vL if n < 4 else vLb)}, {sr(SWS, 4)}, {sr(sWb)} offen offset:{(n % 4) * 1024} sc1", ("f", i)))
        for sg in range(4):
            def h(sg=sg):
                g.vmem(f"buffer_load_dwordx4 {vr(frag(i, 5 + sg), 4)}, {vr(vL)}, {sr(SWS, 4)}, {sr(sHb + sg)} offen sc1", ("f", i))
                g(f"s_add_u32 {sr(sHb + sg)}, {sr(sHb + sg)}, 4096")
                if sg == 3:
                    g(f"s_add_u32 {sr(sWb)}, {sr(sWb)}, {4 * 40960}")
            L.append(h)
        return L

    def step(i):
        pend = loads(i + 3) if i + 3 < 14 else []
        g.wait(vm=("f", i))
        L = None
        if i == 13:
            L = G.lab("skip")
            g(f"s_cmp_ge_u32 {sr(sWp)}, 2\ns_cbranch_scc1 {L}")
        k = 0
        for n in range(5):
            for sg in range(4):
                a = GA + 20 * sg + 4 * n
                c = vr(BI + 4 * n, 4) if i == 0 else vr(a, 4)
                g(f"v_mfma_f32_16x16x32_bf16 {vr(a, 4)}, {vr(frag(i, n), 4)}, {vr(frag(i, 5 + sg), 4)}, {c}")
                k += 1
                if k % 2 == 1 and pend:
                    pend.pop(0)()
        if L:
            g.label(L)

    def start_ffn2():
        g(f"""
        s_lshr_b32 {sr(sT0)}, {sr(sRT)}, 1
        v_cmp_gt_u32 vcc, 14, v0
        v_lshlrev_b32 v2, 4, v0
        v_add_u32 v2, {sr(sT0)}, v2
        v_and_b32 v3, 31, v0
        v_add_u32 v3, 224, v3
        v_cndmask_b32 v2, v3, v2, vcc
        v_lshlrev_b32 v2, 7, v2
        v_add_u32 v2, {FH}, v2
        """)
        G.poll(2, 3, sleep=4)
        G.stamp(5)
        for n in range(5):
            for hf in range(2):
                g(f"v_lshlrev_b32 {vr(BI + 4 * n + 2 * hf)}, 16, {vr(GA + 2 * n + hf)}")
                g(f"v_and_b32 {vr(BI + 4 * n + 2 * hf + 1)}, 0xffff0000, {vr(GA + 2 * n + hf)}")
        g("v_and_b32 v2, 15, v0\nv_lshlrev_b32 v2, 2, v2")
        for sg in range(4):
            g(f"s_lshl_b32 {sr(sT0)}, {sr(sHb + sg)}, 6\ns_add_u32 {sr(sT0)}, {sr(sT0)}, {GOFF}")
            g.vmem(f"buffer_load_dword {vr(vGG + sg)}, v2, {sr(SWS, 4)}, {sr(sT0)} offen sc1", "g")
            g(f"""
            s_mul_i32 {sr(sHb + sg)}, {sr(sHb + sg)}, 54
            s_add_u32 {sr(sHb + sg)}, {sr(sHb + sg)}, {sr(sWp)}
            s_lshl_b32 {sr(sHb + sg)}, {sr(sHb + sg)}, 10
            s_add_u32 {sr(sHb + sg)}, {sr(sHb + sg)}, {HOFF}
            """)
        g(f"""
        s_mul_i32 {sr(sWb)}, {sr(sWp)}, 40960
        s_mul_i32 {sr(sT0)}, {sr(sCP)}, 5120
        s_add_u32 {sr(sWb)}, {sr(sWb)}, {sr(sT0)}
        s_add_u32 {sr(sWb)}, {sr(sWb)}, {WPOFF}
        """)
        for i in range(3):
            for f in loads(i):
                f()

    done = 0
    if o.early_h:
        start_ffn2()
        for _ in range(steps[0]):
            step(done); done += 1
    g.wait(vm="kv2", lg="all")
    g("s_barrier")
    kv(48, 64, "kv3")
    if not o.early_h:
        assert steps[0] == 0
        start_ffn2()
    for _ in range(steps[1]):
        step(done); done += 1
    g.wait(vm="kv3")
    g("s_barrier")
    for _ in range(steps[2]):
        step(done); done += 1
    G.stamp(6)
    g(f"""
    s_mul_i32 {sr(sWb)}, {sr(sWp)}, {5 * 40960}
    s_mul_i32 {sr(sT0)}, {sr(sCP)}, 5120
    s_add_u32 {sr(sWb)}, {sr(sWb)}, {sr(sT0)}
    s_add_u32 {sr(sWb)}, {sr(sWb)}, {WPOFF + 54 * 40960}
    """)
    for s in range(5):
        for n in range(5):
            g.vmem(f"buffer_load_dwordx4 {vr(WOF + 20 * s + 4 * n, 4)}, {vr(vL if n < 4 else vLb)}, {sr(SWS, 4)}, {sr(sWb)} offen offset:{(n % 4) * 1024} sc1", "wo")
        g(f"s_add_u32 {sr(sWb)}, {sr(sWb)}, 40960")
    for sg in range(4):
        g(f"v_sub_f32 {vr(vGG + sg)}, 1.0, {vr(vGG + sg)}")
    for sg in range(4):
        for r in range(20):
            g(f"v_mul_f32 {vr(GA + 20 * sg + r)}, {vr(GA + 20 * sg + r)}, {vr(vGG + sg)}")
    vRW, vOut, vRR = 250, 251, 252
    g(f"""
    s_mul_i32 {sr(sT0)}, {sr(sWp)}, 15360
    s_add_u32 {sr(sT0)}, {sr(sT0)}, {REDOFF}
    v_add_u32 {vr(vRW)}, {sr(sT0)}, {vr(vL)}
    s_lshl_b32 {sr(sT0)}, {sr(sRT)}, 6
    s_lshl_b32 {sr(sT1)}, {sr(sWp)}, 4
    s_add_u32 {sr(sT0)}, {sr(sT0)}, {sr(sT1)}
    v_and_b32 v2, 15, v0
    v_add_u32 v2, {sr(sT0)}, v2
    v_mul_u32_u24 v2, 1280, v2
    v_lshrrev_b32 v3, 4, v0
    v_lshl_add_u32 v2, v3, 3, v2
    s_mul_i32 {sr(sT0)}, {sr(sCP)}, 160
    v_add_u32 {vr(vOut)}, {sr(sT0)}, v2
    """)
    for sg in range(4):
        g(f"""
        s_add_u32 {sr(sT0)}, {sr(sWp)}, {1 + sg}
        s_and_b32 {sr(sT0)}, {sr(sT0)}, 3
        s_lshl_b32 {sr(sT1)}, {sr(sRT)}, 2
        s_add_u32 {sr(sT0)}, {sr(sT0)}, {sr(sT1)}
        s_mul_i32 {sr(sT0)}, {sr(sT0)}, 20480
        s_mul_i32 {sr(sT1)}, {sr(sWp)}, 5120
        s_add_u32 {sr(sT0)}, {sr(sT0)}, {sr(sT1)}
        s_add_u32 {sr(sHb + sg)}, {sr(sT0)}, {OOFF}
        """)
    for sg in range(3):
        g(f"""
        s_add_u32 {sr(sT0)}, {sr(sWp)}, {3 - sg}
        s_and_b32 {sr(sT0)}, {sr(sT0)}, 3
        s_mul_i32 {sr(sT0)}, {sr(sT0)}, 15360
        s_add_u32 {sr(sT0)}, {sr(sT0)}, {REDOFF + sg * 5120}
        v_add_u32 {vr(vRR + sg)}, {sr(sT0)}, {vr(vL)}
        """)
    g(f"""
    s_lshl_b32 {sr(sT0)}, {sr(sRT)}, 5
    s_lshl_b32 {sr(sT1)}, {sr(sWp)}, 3
    s_add_u32 {sr(sT0)}, {sr(sT0)}, {sr(sT1)}
    s_add_u32 {sr(sT0)}, {sr(sT0)}, {FO // 128}
    v_and_b32 v2, 7, v0
    v_add_u32 v2, {sr(sT0)}, v2
    v_lshlrev_b32 v2, 7, v2
    """)
    G.stamp(7)
    G.poll(2, 3, sleep=o.osleep)
    G.stamp(8)

    def oload(sg):
        for s in range(5):
            g.vmem(f"buffer_load_dwordx4 {vr(OF + 20 * (sg % 3) + 4 * s, 4)}, {vr(vL if s < 4 else vLb)}, {sr(SWS, 4)}, {sr(sHb + sg)} offen offset:{(s % 4) * 1024} sc1", ("o", sg, s))

    def rwrite(sg):
        return [lambda n=n: g.lds(f"ds_write_b128 {vr(vRW)}, {vr(GA + 20 * sg + 4 * n, 4)} offset:{sg * 5120 + n * 1024}", "rw") for n in range(5)]

    for sg in range(3):
        oload(sg)
    for sg in range(4):
        pend = rwrite(sg - 1) if sg else []
        k = 0
        for s in range(5):
            g.wait(vm=("o", sg, s))
            for n in range(5):
                a = GA + 20 * sg + 4 * n
                g(f"v_mfma_f32_16x16x32_bf16 {vr(a, 4)}, {vr(WOF + 20 * s + 4 * n, 4)}, {vr(OF + 20 * (sg % 3) + 4 * s, 4)}, {vr(a, 4)}")
                k += 1
                if k >= 8 and pend:
                    pend.pop(0)()
            if sg == 3 and s == 2:
                g.wait(lg="all")
                g("s_barrier")
                for x in range(3):
                    for n in range(5):
                        g.lds(f"ds_read_b128 {vr(GA + 20 * x + 4 * n, 4)}, {vr(vRR + x)} offset:{n * 1024}", ("rr", x))
        if sg == 0:
            oload(3)
    G.stamp(9)
    g.wait(lg=("rr", 1))
    for r in range(20):
        g(f"v_add_f32 {vr(GA + r)}, {vr(GA + r)}, {vr(GA + 20 + r)}")
    g.wait(lg=("rr", 2))
    for r in range(20):
        g(f"v_add_f32 {vr(GA + 60 + r)}, {vr(GA + 60 + r)}, {vr(GA + 40 + r)}")
    for n in range(5):
        a = GA + 4 * n
        for r in range(4):
            g(f"v_add_f32 {vr(a + r)}, {vr(a + r)}, {vr(a + 60 + r)}")
        g(f"v_cvt_pk_bf16_f32 {vr(a)}, {vr(a)}, {vr(a + 1)}\nv_cvt_pk_bf16_f32 {vr(a + 1)}, {vr(a + 2)}, {vr(a + 3)}")
        g(f"buffer_store_dwordx2 {vr(a, 2)}, {vr(vOut)}, {sr(SOUT, 4)}, 0 offen offset:{32 * n}")
    if o.stamps:
        g("s_waitcnt vmcnt(0)")
    G.stamp(10)
    G.dump_stamps()


def phase2(G):
    g = G.g
    g(f"s_cmp_ge_u32 {sr(sW)}, 4\ns_cbranch_scc1 Lgemm")
    st = g.state()
    G.role = 'attn'
    attention(G)
    g.restore(st)
    G.role = 'gemm'
    gemm(G)
```

```python
import sys, math, argparse
from asmlib import *

NAME = "gated_mix__mha_block__dense_activation_squared_relu__prompt_kernel"

FQ, FH, FO, GOFF, TSOFF = 0x0, 0x8000, 0x10000, 0x30000, 0x40000
QOFF, KVOFF, HOFF, OOFF, WPOFF, WS_SIZE = 0x100000, 0x400000, 0x900000, 0x1000000, 0x1280000, 0x1580000
OOB = 0x7F000000
QSCALE = math.log2(math.e) / math.sqrt(20.0)
LDS_BYTES = 163840
NREC, REC = 48, 3072
REDOFF = 16 * REC
SPIN = 1 << 21

sW, sRB, sCS, sJ, sH = 3, 4, 5, 6, 7
SX, SWQ, SW1, SWS, SW2, SWO, SOUT, SB1, SB2, SGW, SDBG, SCODE = (8 + 4 * i for i in range(12))
sM0, sT0, sT1, sT2, sRT, sCP, sTT, sCH = 56, 57, 58, 59, 60, 61, 62, 63
sSPIN, sSCALE, sHS, sT3, sT4, sT5 = 64, 65, 66, 67, 68, 69
sA = 70
sTS = 80


def f32hex(x):
    import struct
    return hex(struct.unpack("<I", struct.pack("<f", x))[0])


class Gen:
    def __init__(self, opt):
        self.o = opt
        self.g = Stream()
        self.nlab = 0

    def lab(self, base):
        self.nlab += 1
        return f"L{base}_{self.nlab}"

    def stamp(self, k):
        if not self.o.stamps:
            return
        g = self.g
        g(f"{'s_memtime' if self.o.stamps == 2 else 's_memrealtime'} {sr(100, 2)}\ns_waitcnt lgkmcnt(0)\ns_mov_b32 {sr(sTS + k)}, s100")
        g.lg_done = len(g.lg)

    def dump_stamps(self):
        if not self.o.stamps:
            return
        g = self.g
        g(f"s_lshl_b32 {sr(sT0)}, s2, 3\ns_add_u32 {sr(sT0)}, {sr(sT0)}, {sr(sW)}\ns_lshl_b32 {sr(sT0)}, {sr(sT0)}, 6")
        g(f"s_add_u32 {sr(sT0)}, {sr(sT0)}, {TSOFF}\nv_mov_b32 v1, 0\ns_mov_b64 exec, 1")
        for k in range(16):
            g(f"v_mov_b32 v2, {sr(sTS + k)}")
            g(f"buffer_store_dword v2, v1, {sr(SWS, 4)}, {sr(sT0)} offen offset:{4 * k}")
        g("s_mov_b64 exec, -1")

    def dma(self, srd, vaddr, soff, ldsoff, tag, m0base=sM0, sbase=None, flags=""):
        g = self.g
        g(f"s_add_u32 m0, {sr(m0base)}, {ldsoff}")
        if sbase is None:
            g(f"s_mov_b32 {sr(sT0)}, {soff}")
        else:
            g(f"s_add_u32 {sr(sT0)}, {sr(sbase)}, {soff}")
        g.vmem(f"buffer_load_dwordx4 {vr(vaddr)}, {sr(srd, 4)}, {sr(sT0)} offen {flags} lds", tag)

    def poll(self, vaddr, vtmp, srd=SWS, sleep=0):
        g = self.g
        L, E = self.lab("poll"), self.lab("polld")
        g(f"s_mov_b32 {sr(sSPIN)}, {SPIN}")
        g.label(L)
        g(f"buffer_load_dword {vr(vtmp)}, {vr(vaddr)}, {sr(srd, 4)}, 0 offen sc1")
        g(f"s_sub_u32 {sr(sSPIN)}, {sr(sSPIN)}, 1")
        g(f"s_cbranch_scc1 {E}")
        g("s_waitcnt vmcnt(0)")
        g(f"v_cmp_ne_u32 vcc, 1, {vr(vtmp)}")
        g(f"s_cbranch_vccz {E}")
        if sleep:
            g(f"s_sleep {sleep}")
        g(f"s_branch {L}")
        g.label(E)
        g("s_waitcnt vmcnt(0)")
        g.vm_done = len(g.vm)

    def set_flag(self, sidx_expr_lines, va, vb):
        g = self.g
        g(sidx_expr_lines)
        g(f"v_mov_b32 {vr(va)}, 0\nv_mov_b32 {vr(vb)}, 1\ns_mov_b64 exec, 1")
        g.vmem(f"buffer_store_dword {vr(vb)}, {vr(va)}, {sr(SWS, 4)}, {sr(sT1)} offen sc1", "flag")
        g("s_mov_b64 exec, -1")

    def prologue(self):
        g = self.g
        g("s_cmp_ge_u32 s2, 256\ns_cbranch_scc1 Lend")
        for srd, slot in ((SX, 0), (SWQ, 1), (SW1, 4), (SWS, 11), (SB1, 5), (SGW, 8), (SDBG, 10), (SW2, 6), (SWO, 2), (SOUT, 9), (SB2, 7)):
            g(f"s_load_dwordx2 {sr(srd, 2)}, s[0:1], {8 * slot}")
        self.stamp(0)
        g("v_lshrrev_b32 v2, 6, v0\nv_and_b32 v0, 63, v0")
        g(f"v_readfirstlane_b32 {sr(sW)}, v2")
        for srd, n in ((SX, 2048 * 1280), (SWQ, 640 * 3840), (SW1, 640 * 3456), (SWS, WS_SIZE), (SB1, 3456), (SGW, 1280),
                       (SDBG, 256), (SW2, 1728 * 1280), (SWO, 640 * 1280), (SOUT, 2048 * 1280), (SB2, 1280)):
            g(f"s_mov_b32 {sr(srd + 2)}, {n}\ns_mov_b32 {sr(srd + 3)}, 0x20000")
        g(f"""
        s_getpc_b64 {sr(SCODE, 2)}
        s_mov_b32 {sr(SCODE + 2)}, CODE_BYTES
        s_mov_b32 {sr(SCODE + 3)}, 0x20000
        s_and_b32 {sr(sT0)}, s2, 7
        s_lshr_b32 {sr(sT1)}, s2, 3
        s_lshr_b32 {sr(sRB)}, {sr(sT0)}, 2
        s_lshl_b32 {sr(sRB)}, {sr(sRB)}, 3
        s_and_b32 {sr(sT2)}, {sr(sT1)}, 7
        s_add_u32 {sr(sRB)}, {sr(sRB)}, {sr(sT2)}
        s_lshr_b32 {sr(sCS)}, {sr(sT1)}, 3
        s_lshl_b32 {sr(sCS)}, {sr(sCS)}, 2
        s_and_b32 {sr(sT3)}, {sr(sT0)}, 3
        s_add_u32 {sr(sCS)}, {sr(sCS)}, {sr(sT3)}
        s_lshr_b32 {sr(sJ)}, s2, 5
        s_and_b32 {sr(sT3)}, {sr(sT1)}, 3
        s_lshl_b32 {sr(sH)}, {sr(sT0)}, 2
        s_add_u32 {sr(sH)}, {sr(sH)}, {sr(sT3)}
        s_mov_b32 {sr(sRT)}, {sr(sH)}
        s_lshr_b32 {sr(sCP)}, {sr(sT1)}, 2
        s_lshl_b32 {sr(sM0)}, {sr(sW)}, 10
        s_and_b32 {sr(sTT)}, {sr(sW)}, 3
        s_lshr_b32 {sr(sCH)}, {sr(sW)}, 2
        """)
        if self.o.code_prefetch:
            L = self.lab("nopf")
            g(f"""
            s_cmp_lg_u32 {sr(sW)}, 7
            s_cbranch_scc1 {L}
            s_lshl_b32 {sr(sT2)}, {sr(sT2)}, 13
            v_lshlrev_b32 v1, 7, v0
            buffer_load_dword v255, v1, {sr(SCODE, 4)}, {sr(sT2)} offen
            """)
            g.label(L)
        g(f"""
        v_lshrrev_b32 v2, 3, v0
        v_lshrrev_b32 v3, 4, v0
        s_lshl_b32 {sr(sT0)}, {sr(sRB)}, 7
        s_lshl_b32 {sr(sT1)}, {sr(sW)}, 3
        s_add_u32 {sr(sT0)}, {sr(sT0)}, {sr(sT1)}
        v_add_u32 v2, {sr(sT0)}, v2
        v_mul_u32_u24 v4, 1280, v2
        s_and_b32 {sr(sT0)}, {sr(sW)}, 1
        s_lshl_b32 {sr(sT0)}, {sr(sT0)}, 2
        v_or_b32 v7, {sr(sT0)}, v3
        v_and_b32 v8, 7, v0
        v_xor_b32 v7, v7, v8
        v_lshl_add_u32 v4, v7, 4, v4
        s_lshl_b32 {sr(sT0)}, {sr(sW)}, 2
        v_add_u32 v2, {sr(sT0)}, v3
        s_and_b32 {sr(sT0)}, {sr(sW)}, 2
        s_lshl_b32 {sr(sT0)}, {sr(sT0)}, 1
        v_or_b32 v7, {sr(sT0)}, v3
        v_lshlrev_b32 v7, 1, v7
        v_and_b32 v8, 15, v0
        v_xor_b32 v7, v7, v8
        v_lshlrev_b32 v7, 4, v7
        s_lshl_b32 {sr(sT0)}, {sr(sCS)}, 8
        v_add_u32 v7, {sr(sT0)}, v7
        v_mul_u32_u24 v5, 3840, v2
        v_add_u32 v5, v5, v7
        v_mul_u32_u24 v6, 3456, v2
        v_add_u32 v6, v6, v7
        s_waitcnt lgkmcnt(0)
        s_cmp_eq_u32 {sr(sCS)}, 15
        s_cbranch_scc1 Lgate
        """)

    vXG, vWG, vW1G = 4, 5, 6
    vXR = (7, 8)
    vWR = (9, 10, 11, 12)
    vST = (13, 14, 15, 1)
    BIAS, WREG, ACC, XREG = 16, 32, 64, 96

    def dmaA(self, s):
        q = s % 5
        return [lambda hf=hf: self.dma(SX, self.vXG, 128 * s + hf * 64 * 1280, q * 32768 + hf * 8192, ("A", s)) for hf in range(2)] + \
               [lambda hf=hf: self.dma(SWQ, self.vWG, (64 * s + 32 * hf) * 3840, q * 32768 + 16384 + hf * 8192, ("A", s)) for hf in range(2)]

    def dmaB(self, t):
        return [lambda hf=hf: self.dma(SW1, self.vW1G, (64 * t + 32 * hf) * 3456, t * 16384 + hf * 8192, ("B", t)) for hf in range(2)]

    def p1_setup(self):
        g = self.g
        for s in range(self.o.pre):
            for f in self.dmaA(s):
                f()
            if s + 1 < self.o.pre:
                g("s_barrier")
        g(f"""
        v_lshrrev_b32 v3, 4, v0
        v_and_b32 v2, 15, v0
        s_lshl_b32 {sr(sT1)}, {sr(sCS)}, 8
        s_lshl_b32 {sr(sT2)}, {sr(sCH)}, 7
        s_add_u32 {sr(sT1)}, {sr(sT1)}, {sr(sT2)}
        v_lshlrev_b32 v7, 3, v3
        """)
        for n in range(4):
            g.vmem(f"buffer_load_dwordx2 {vr(24 + 2 * n, 2)}, v7, {sr(SB1, 4)}, {sr(sT1)} offen offset:{32 * n}", "b1")
        g(f"""
        s_cmp_eq_u32 {sr(sCS)}, 14
        s_cselect_b32 {sr(sT0)}, {OOB}, 0
        v_add_u32 v6, {sr(sT0)}, v6
        s_lshl_b32 {sr(sT0)}, {sr(sTT)}, 5
        v_add_u32 v7, {sr(sT0)}, v2
        v_lshlrev_b32 v7, 7, v7
        v_lshrrev_b32 v9, 1, v2
        v_xor_b32 v9, v9, v3
        v_xor_b32 v10, 4, v9
        v_lshl_add_u32 v8, v10, 4, v7
        v_lshl_add_u32 v7, v9, 4, v7
        v_bfe_u32 v16, v0, 2, 2
        v_and_b32 v17, 3, v0
        v_lshl_add_u32 v18, v3, 3, v16
        v_lshlrev_b32 v18, 8, v18
        v_lshl_add_u32 v18, v17, 3, v18
        v_and_b32 v19, 1, v3
        v_lshl_add_u32 v19, v19, 2, v16
        s_lshl_b32 {sr(sT0)}, {sr(sCH)}, 2
        v_xor_b32 v19, {sr(sT0)}, v19
        """)
        for n in range(4):
            g(f"v_xor_b32 v20, {n}, v19\nv_lshl_add_u32 {vr(self.vWR[n])}, v20, 5, v18")
        LV, LD = self.lab("stv"), self.lab("std")
        g(f"""
        s_mul_i32 {sr(sT0)}, {sr(sCS)}, 205
        s_lshr_b32 {sr(sT0)}, {sr(sT0)}, 10
        s_mul_i32 {sr(sT1)}, {sr(sT0)}, 5
        s_sub_u32 {sr(sT1)}, {sr(sCS)}, {sr(sT1)}
        s_lshl_b32 {sr(sT2)}, {sr(sRB)}, 2
        s_add_u32 {sr(sT2)}, {sr(sT2)}, {sr(sTT)}
        s_cmp_eq_u32 {sr(sT0)}, 0
        s_mov_b32 {sr(sT3)}, 2560
        s_cselect_b32 {sr(sT3)}, 1280, {sr(sT3)}
        s_mov_b32 {sr(sT4)}, {KVOFF}
        s_cselect_b32 {sr(sT4)}, {QOFF}, {sr(sT4)}
        s_mul_i32 {sr(sT2)}, {sr(sT2)}, {sr(sT3)}
        s_add_u32 {sr(sT4)}, {sr(sT4)}, {sr(sT2)}
        s_lshl_b32 {sr(sT3)}, {sr(sT3)}, 6
        s_cmp_eq_u32 {sr(sT0)}, 2
        s_cbranch_scc1 {LV}
        s_lshl_b32 {sr(sT1)}, {sr(sT1)}, 5
        s_lshl_b32 {sr(sT2)}, {sr(sCH)}, 4
        s_add_u32 {sr(sT1)}, {sr(sT1)}, {sr(sT2)}
        v_add_u32 v16, {sr(sT1)}, v3
        v_lshlrev_b32 v17, 4, v2
        v_add_u32 v17, {sr(sT4)}, v17
        """)
        for n in range(4):
            g(f"""
            v_add_u32 v18, {4 * n}, v16
            v_mul_u32_u24 v19, 205, v18
            v_lshrrev_b32 v19, 10, v19
            v_mul_u32_u24 v20, 5, v19
            v_sub_u32 v20, v18, v20
            v_mul_lo_u32 v19, v19, {sr(sT3)}
            v_lshl_add_u32 v19, v20, 8, v19
            v_add_u32 {vr(self.vST[n])}, v19, v17
            """)
        g(f"s_branch {LD}")
        g.label(LV)
        g(f"""
        s_lshl_b32 {sr(sT1)}, {sr(sT1)}, 7
        s_lshl_b32 {sr(sT2)}, {sr(sCH)}, 6
        s_add_u32 {sr(sT1)}, {sr(sT1)}, {sr(sT2)}
        v_add_u32 v16, {sr(sT1)}, v2
        v_mul_u32_u24 v17, 320, v3
        s_add_u32 {sr(sT4)}, {sr(sT4)}, 1280
        v_add_u32 v17, {sr(sT4)}, v17
        """)
        for n in range(4):
            g(f"""
            v_add_u32 v18, {16 * n}, v16
            v_mul_u32_u24 v19, 3277, v18
            v_lshrrev_b32 v19, 16, v19
            v_mul_u32_u24 v20, 20, v19
            v_sub_u32 v20, v18, v20
            v_mul_lo_u32 v19, v19, {sr(sT3)}
            v_lshl_add_u32 v19, v20, 4, v19
            v_add_u32 {vr(self.vST[n])}, v19, v17
            """)
        g.label(LD)

    def rd(self, mn, dst, n, areg, off, tag, base):
        g = self.g
        if not (0 <= off - base[areg] <= 65535):
            nb = off & ~16383
            g(f"v_add_u32 {vr(areg)}, {(nb - base[areg]) & 0xFFFFFFFF}, {vr(areg)}")
            base[areg] = nb
        g.lds(f"{mn} {vr(dst, n)}, {vr(areg)} offset:{off - base[areg]}", tag)

    def xreg(self, s, kk, t):
        return self.XREG + ((2 * s + kk) * 2 + t) * 4

    def reads_x(self, s, base):
        return [lambda kk=kk, t=t: self.rd("ds_read_b128", self.xreg(s, kk, t), 4, self.vXR[kk], (s % 5) * 32768 + t * 2048, ("x", s), base)
                for t in range(2) for kk in range(2)]

    def reads_w(self, ph, s, n, base):
        o = (s % 5) * 32768 + 16384 if ph == "A" else s * 16384
        return [lambda kk=kk, u=u: self.rd("ds_read_b64_tr_b16", self.WREG + 8 * n + 4 * kk + 2 * u, 2, self.vWR[n], o + kk * 8192 + u * 1024,
                                           ("w", ph, s, n), base) for kk in range(2) for u in range(2)]

    def acc(self, ph, n, t):
        return self.ACC + (n * 2 + t) * 4 if ph == "A" else self.ACC + ((n >> 1) * 2 + t) * 8 + (n & 1) * 4

    def stage(self, ph, s, swap, base, nxt, pending, dq, at_barrier):
        g = self.g
        for n in range(4):
            tags = [("w", ph, s, n)] + ([("x", s)] if ph == "A" and n == 0 else [])
            g.wait(lg=tags)
            left = (4 - n) % 4 + 1
            nd = -(-len(dq) // left)
            for m in range(4):
                t, kk = m >> 1, m & 1
                a = self.acc(ph, n, t)
                w, x = vr(self.WREG + 8 * n + 4 * kk, 4), vr(self.xreg(s, kk, t), 4)
                c = vr(a, 4)
                if s == 0 and kk == 0:
                    c = "0" if ph == "A" else vr(self.BIAS + 4 * n, 4)
                A, B = (x, w) if swap else (w, x)
                g(f"v_mfma_f32_16x16x32_bf16 {vr(a, 4)}, {A}, {B}, {c}")
                k = (len(pending) + (3 - m)) // (4 - m)
                for f in pending[:k]:
                    f()
                pending = pending[k:]
                if m == self.o.dma_pos:
                    for _ in range(nd):
                        dq.pop(0)()
            if nxt is not None:
                if n == 0:
                    at_barrier()
                pending = self.reads_w(nxt[0], nxt[1], n, base)
                if nxt[0] == "A" and n < 2:
                    pending = self.reads_x(nxt[1], base)[2 * n:2 * n + 2] + pending
        return pending

    def passA(self, swap):
        g, o = self.g, self.o
        base = {r: 0 for r in self.vXR + self.vWR}
        for f in self.reads_x(0, base):
            f()
        for n in range(3):
            for f in self.reads_w("A", 0, n, base):
                f()
        pending = self.reads_w("A", 0, 3, base)
        dq = []
        for s in range(10):
            nxt = ("A", s + 1) if s < 9 else ("B", 0)

            def at_barrier():
                g.wait(vm=nxt)
                g("s_barrier")
                if s == 0:
                    dq.extend(sum([self.dmaA(x) for x in range(o.pre, 5)], []))
                elif s + 4 < 10:
                    dq.extend(self.dmaA(s + 4))
                else:
                    dq.extend(self.dmaB(2 * (s - 6)) + self.dmaB(2 * (s - 6) + 1))
            if s == 5:
                g.wait(vm="b1")
                for n in range(4):
                    for hf in range(2):
                        g(f"v_lshlrev_b32 {vr(self.BIAS + 4 * n + 2 * hf)}, 16, {vr(24 + 2 * n + hf)}")
                        g(f"v_and_b32 {vr(self.BIAS + 4 * n + 2 * hf + 1)}, 0xffff0000, {vr(24 + 2 * n + hf)}")
            if o.fine == "A" and 1 <= s <= 7:
                self.stamp(8 + s)
            pending = self.stage("A", s, swap, base, nxt, pending, dq, at_barrier)
        for f in dq + pending:
            f()
        return base

    def epilogueA(self):
        g = self.g
        L = self.lab("noq")
        g(f"s_cmp_ge_u32 {sr(sCS)}, 5\ns_cbranch_scc1 {L}")
        g(f"s_mov_b32 {sr(sT0)}, {f32hex(QSCALE)}")
        for r in range(32):
            g(f"v_mul_f32 {vr(self.ACC + r)}, {sr(sT0)}, {vr(self.ACC + r)}")
        g.label(L)
        for n in range(4):
            a = self.ACC + 8 * n
            for q in range(4):
                g(f"v_cvt_pk_bf16_f32 {vr(a + q)}, {vr(a + 2 * q)}, {vr(a + 2 * q + 1)}")
            g.vmem(f"buffer_store_dwordx4 {vr(a, 4)}, {vr(self.vST[n])}, {sr(SWS, 4)}, 0 offen sc1", "stA")

    def clean_load(self):
        g = self.g
        g("v_and_b32 v2, 15, v0\nv_lshlrev_b32 v2, 2, v2")
        g.vmem(f"buffer_load_dword v3, v2, {sr(SDBG, 4)}, 0 offen sc1", "clean")

    def phase1(self):
        g, o = self.g, self.o
        self.p1_setup()
        g.wait(vm=("A", 0))
        g("s_barrier")
        self.stamp(1)
        g(f"s_cmp_ge_u32 {sr(sCS)}, 10\ns_cbranch_scc1 LpassA_v")
        st = g.state()
        self.passA(False)
        g("s_branch LepiA")
        g.restore(st)
        g.label("LpassA_v")
        base = self.passA(True)
        g.label("LepiA")
        self.stamp(2)
        self.clean_load()
        g(f"s_cmp_eq_u32 {sr(sCS)}, 14\ns_cbranch_scc1 LnoB0")
        if o.late89 == 0:
            g("s_barrier")
            for f in self.dmaB(8) + self.dmaB(9):
                f()
            g("s_barrier")
        self.epilogueA()
        F = o.flag_stage
        bars = {int(x.split(":")[0]): int(x.split(":")[1]) for x in o.bbars.split(",")}
        pending, dq = [], []
        for s in range(10):
            nxt = ("B", s + 1) if s < 9 else None

            def at_barrier():
                if s + 1 in bars or s + 1 == F:
                    tags = [("B", bars.get(s + 1, s + 1))]
                    if s + 1 == F:
                        tags += ["stA", "clean"]
                    g.wait(vm=tags)
                    if s + 1 == F:
                        self.check_clean()
                    g("s_barrier")
                if s + 1 == F:
                    self.flagQ()
                    if o.late89:
                        dq.extend(self.dmaB(8) + self.dmaB(9))
            if o.fine == "B" and s in (0, 1, 3, 5, 6, 7, 8):
                self.stamp(9 + (0, 1, 3, 5, 6, 7, 8).index(s))
            pending = self.stage("B", s, False, base, nxt, pending, dq, at_barrier)
        self.stamp(3)
        g("s_nop 7")
        for r in range(32):
            g(f"v_max_f32 {vr(self.ACC + r)}, 0, {vr(self.ACC + r)}")
        for r in range(32):
            g(f"v_mul_f32 {vr(self.ACC + r)}, {vr(self.ACC + r)}, {vr(self.ACC + r)}")
        for b in range(4):
            a = self.ACC + 8 * b
            for q in range(4):
                g(f"v_cvt_pk_bf16_f32 {vr(16 + 4 * b + q)}, {vr(a + 2 * q)}, {vr(a + 2 * q + 1)}")
        g(f"""
        s_lshl_b32 {sr(sT0)}, {sr(sRB)}, 3
        s_lshl_b32 {sr(sT1)}, {sr(sTT)}, 1
        s_add_u32 {sr(sT0)}, {sr(sT0)}, {sr(sT1)}
        s_mul_i32 {sr(sT0)}, {sr(sT0)}, 54
        s_lshl_b32 {sr(sT1)}, {sr(sCS)}, 2
        s_lshl_b32 {sr(sT2)}, {sr(sCH)}, 1
        s_add_u32 {sr(sT1)}, {sr(sT1)}, {sr(sT2)}
        s_add_u32 {sr(sT0)}, {sr(sT0)}, {sr(sT1)}
        s_lshl_b32 {sr(sT0)}, {sr(sT0)}, 10
        s_add_u32 {sr(sT0)}, {sr(sT0)}, {HOFF}
        s_cmp_ge_u32 {sr(sT1)}, 54
        s_cselect_b32 {sr(sHS)}, {OOB}, {sr(sT0)}
        s_branch Lphase2
        """)
        g.label("LnoB0")
        g("s_waitcnt vmcnt(0) lgkmcnt(0)\ns_barrier")
        g(f"v_lshlrev_b32 v4, 4, v0\ns_lshl_b32 {sr(sT1)}, {sr(sM0)}, 1")
        self.dma(SGW, 4, 0, 0, "gw", m0base=sT1)
        self.dma(SGW, 4, 1024, 1024, "gw", m0base=sT1)
        self.epilogueA()
        g(f"v_lshrrev_b32 v5, 4, v0\nv_lshlrev_b32 v5, 4, v5\nv_add_u32 v5, {sr(sT1)}, v5")
        g("s_waitcnt vmcnt(0)")
        self.check_clean()
        g("s_barrier")
        self.flagQ()
        for half in range(2):
            for k in range(10):
                g(f"ds_read_b128 {vr(16 + 4 * k, 4)}, v5 offset:{64 * (10 * half + k)}")
            g("s_waitcnt lgkmcnt(0)")
            for k in range(10):
                kk = 10 * half + k
                for t in range(2):
                    g(f"v_mfma_f32_16x16x32_bf16 {vr(64 + 4 * t, 4)}, {vr(16 + 4 * k, 4)}, {vr(self.xreg(kk >> 1, kk & 1, t), 4)}, {'0' if kk == 0 else vr(64 + 4 * t, 4)}")
        g(f"""
        s_nop 7
        v_cmp_gt_u32 vcc, 16, v0
        v_lshlrev_b32 v4, 2, v0
        s_lshl_b32 {sr(sT0)}, {sr(sRB)}, 9
        v_cndmask_b32 v64, v68, v64, vcc
        v_mul_f32 v64, {f32hex(-math.log2(math.e))}, v64
        v_exp_f32 v64, v64
        s_lshl_b32 {sr(sT1)}, {sr(sTT)}, 7
        v_add_f32 v64, 1.0, v64
        v_rcp_f32 v64, v64
        s_add_u32 {sr(sT0)}, {sr(sT0)}, {sr(sT1)}
        s_add_u32 {sr(sT0)}, {sr(sT0)}, {GOFF}
        s_cmp_lg_u32 {sr(sCH)}, 0
        s_cselect_b32 {sr(sT0)}, {OOB}, {sr(sT0)}
        s_mov_b32 exec_hi, 0
        buffer_store_dword v64, v4, {sr(SWS, 4)}, {sr(sT0)} offen sc1
        s_mov_b32 exec_hi, -1
        """)
        g.label("LnoB")
        g(f"s_barrier\ns_mov_b32 {sr(sHS)}, {OOB}\ns_branch Lphase2")

    def check_clean(self):
        g = self.g
        L = self.lab("clean")
        g(f"v_cmp_ne_u32 vcc, 1, v3\ns_cbranch_vccz {L}")
        st = g.state()
        self.poll(2, 3, SDBG)
        g.restore(st)
        g.label(L)

    def flagQ(self, off=FQ, wave=0):
        g = self.g
        L = self.lab("nofq")
        g(f"s_mov_b32 {sr(sT2)}, {off}\ns_cmp_lg_u32 {sr(sW)}, {wave}\ns_cselect_b32 {sr(sT2)}, {OOB}, {sr(sT2)}")
        self.set_flag(f"""
        s_lshl_b32 {sr(sT1)}, {sr(sCS)}, 4
        s_add_u32 {sr(sT1)}, {sr(sT1)}, {sr(sRB)}
        s_lshl_b32 {sr(sT1)}, {sr(sT1)}, 7
        s_add_u32 {sr(sT1)}, {sr(sT1)}, {sr(sT2)}""", 2, 3)

    def const_init(self, part):
        g = self.g
        g(f"""
        v_and_b32 v14, 31, v0
        v_lshrrev_b32 v15, 5, v0
        s_lshl_b32 {sr(sT0)}, {sr(sW)}, 1
        v_add_u32 v15, {sr(sT0)}, v15
        v_mul_u32_u24 v15, {REC}, v15
        v_lshl_add_u32 v13, v14, 4, v15
        v_and_b32 v15, 23, v14
        v_cmp_eq_u32 vcc, 16, v15
        v_mov_b32 v15, 0x3f803f80
        v_mov_b32 v1, 0x3f80
        v_cndmask_b32 v5, 0, v15, vcc
        v_cmp_eq_u32 vcc, 20, v14
        v_mov_b32 v14, v5
        v_mov_b32 v15, v5
        v_cndmask_b32 v4, v5, v1, vcc
        """)
        if part == 0:
            for r0 in (0, 4):
                g.lds(f"ds_write_b64 v13, v[4:5] offset:{2560 + r0 * REC}", "cw")
                g.lds(f"ds_write_b64 v13, v[14:15] offset:{2568 + r0 * REC}", "cw")
        else:
            for k in range(4):
                g(f"v_add_u32 v13, {(12 if k == 0 else 8 if k < 3 else 4) * REC}, v13")
                g.lds(f"ds_write_b64 v13, v[4:5] offset:2560", "cw")
                g.lds(f"ds_write_b64 v13, v[14:15] offset:2568", "cw")

    def gate(self):
        g = self.g
        g.label("Lgate")
        L = self.lab("noclr")
        g(f"""
        s_mul_i32 {sr(sT0)}, {sr(sRB)}, {96 * 128}
        s_mul_i32 {sr(sT1)}, {sr(sW)}, {12 * 128}
        s_add_u32 {sr(sT0)}, {sr(sT0)}, {sr(sT1)}
        v_lshlrev_b32 v2, 7, v0
        v_mov_b32 v3, 0
        s_mov_b64 exec, 0xfff
        buffer_store_dword v3, v2, {sr(SWS, 4)}, {sr(sT0)} offen sc1
        s_mov_b64 exec, -1
        """)
        self.pack()
        self.stamp(3)
        self.clean_load()
        g("s_waitcnt vmcnt(0) lgkmcnt(0)")
        self.check_clean()
        g("s_branch LnoB")

    def pack(self):
        g = self.g
        g.vm, g.lg, g.vm_done, g.lg_done = [], [], 0, 0
        sRing, sSrc, sDst = sA, sA + 1, sA + 2
        AD = {"w2": 32, "main": 40, "rem": 48}
        g(f"s_mul_i32 {sr(sRing)}, {sr(sW)}, 20480\ns_mul_i32 {sr(sT2)}, {sr(sW)}, 160")
        for q in range(5):
            g(f"""
            v_add_u32 v2, {64 * q}, v0
            v_mul_u32_u24 v3, 6554, v2
            v_lshrrev_b32 v3, 16, v3
            v_mul_u32_u24 v4, 10, v3
            v_sub_u32 v2, v2, v4
            v_lshlrev_b32 v2, 4, v2
            v_add_u32 v2, {sr(sT2)}, v2
            v_mul_u32_u24 v4, 1280, v3
            v_add_u32 {vr(AD['w2'] + q)}, v4, v2
            v_lshrrev_b32 v5, 4, v3
            v_and_b32 v6, 7, v3
            v_bfe_u32 v7, v3, 3, 1
            v_mul_u32_u24 v7, 20, v7
            v_lshl_add_u32 v7, v5, 3, v7
            v_add_u32 v7, v7, v6
            v_mul_u32_u24 v7, 1280, v7
            v_add_u32 {vr(AD['main'] + q)}, v7, v2
            v_bfe_u32 v7, v3, 2, 2
            v_lshl_add_u32 v7, v7, 1, v5
            v_mul_u32_u24 v7, 20, v7
            v_and_b32 v6, 3, v3
            v_add3_u32 v7, v7, v6, 16
            v_mul_u32_u24 v7, 1280, v7
            v_add_u32 {vr(AD['rem'] + q)}, v7, v2
            """)
        g(f"""
        v_lshrrev_b32 v2, 2, v0
        v_mul_u32_u24 v2, 160, v2
        v_and_b32 v3, 3, v0
        v_lshl_add_u32 v2, v3, 3, v2
        v_add_u32 v8, {sr(sRing)}, v2
        v_lshlrev_b32 v9, 4, v0
        s_mul_i32 {sr(sT2)}, {sr(sW)}, 5120
        s_add_u32 {sr(sT2)}, {sr(sT2)}, {WPOFF}
        v_add_u32 v9, {sr(sT2)}, v9
        v_add_u32 v10, 4096, v9
        """)

        def load(rnd, srd, kind):
            for q in range(5):
                self.dma(srd, AD[kind] + q, 0, (rnd % 4) * 5120 + q * 1024, ("p", rnd), m0base=sRing, sbase=sSrc)

        def emit(rnd):
            g.wait(vm=("p", rnd))
            d = 96 + 20 * rnd
            for n in range(5):
                for u in range(2):
                    g.lds(f"ds_read_b64_tr_b16 {vr(d + 4 * n + 2 * u, 2)}, v8 offset:{(rnd % 4) * 5120 + u * 2560 + n * 32}", ("pr", rnd))

        def store(rnd):
            g.wait(lg=("pr", rnd))
            d = 96 + 20 * rnd
            for n in range(5):
                g.vmem(f"buffer_store_dwordx4 {vr(d + 4 * n, 4)}, {'v9' if n < 4 else 'v10'}, {sr(SWS, 4)}, {sr(sDst + rnd)} offen offset:{(n % 4) * 1024} sc1", "ps")

        for rnd in range(3):
            g(f"s_add_u32 {sr(sT1)}, {sr(sRB)}, {16 * rnd}\ns_mul_i32 {sr(sSrc)}, {sr(sT1)}, 40960\ns_mov_b32 {sr(sDst + rnd)}, {sr(sSrc)}")
            load(rnd, SW2, "w2")
        g(f"""
        s_mul_i32 {sr(sSrc)}, {sr(sRB)}, {40 * 1280}
        s_lshr_b32 {sr(sT1)}, {sr(sRB)}, 2
        s_add_u32 {sr(sT1)}, {sr(sT1)}, {sr(sRB)}
        s_add_u32 {sr(sT1)}, {sr(sT1)}, 54
        s_mul_i32 {sr(sDst + 3)}, {sr(sT1)}, 40960
        """)
        load(3, SWO, "main")
        emit(0)
        g("s_barrier")
        self.stamp(1)
        g(f"""
        s_lshl_b32 {sr(sT1)}, {sr(sRB)}, 2
        s_cmp_lg_u32 {sr(sW)}, 0
        s_cselect_b32 {sr(sT1)}, {OOB}, {sr(sT1)}
        v_mov_b32 v2, 0
        v_mov_b32 v3, 1
        s_mov_b64 exec, 1
        """)
        g.vmem(f"buffer_store_dword v3, v2, {sr(SDBG, 4)}, {sr(sT1)} offen sc1", "cl")
        g("s_mov_b64 exec, -1")
        g.wait(lg="all")
        LR, LJ = self.lab("prem"), self.lab("pjoin")
        g(f"s_cmp_ge_u32 {sr(sRB)}, 6\ns_cbranch_scc1 {LR}")
        g(f"s_add_u32 {sr(sT1)}, {sr(sRB)}, 48\ns_mul_i32 {sr(sSrc)}, {sr(sT1)}, 40960\ns_mov_b32 {sr(sDst + 4)}, {sr(sSrc)}")
        st = g.state()
        load(4, SW2, "w2")
        g(f"s_branch {LJ}")
        g.restore(st)
        g.label(LR)
        g(f"""
        s_sub_u32 {sr(sT1)}, {sr(sRB)}, 6
        s_mul_i32 {sr(sSrc)}, {sr(sT1)}, {160 * 1280}
        s_mul_i32 {sr(sT1)}, {sr(sT1)}, 5
        s_add_u32 {sr(sT1)}, {sr(sT1)}, 58
        s_mul_i32 {sr(sDst + 4)}, {sr(sT1)}, 40960
        s_cmp_ge_u32 {sr(sRB)}, 10
        s_cselect_b32 {sr(sDst + 4)}, {OOB}, {sr(sDst + 4)}
        """)
        load(4, SWO, "rem")
        g.label(LJ)
        for rnd in range(1, 5):
            emit(rnd)
        self.stamp(2)
        for rnd in range(5):
            store(rnd)

    def h_stores(self, vl16):
        g = self.g
        for b in range(4):
            s2, t = b >> 1, b & 1
            g(f"s_add_u32 {sr(sT0)}, {sr(sHS)}, {(t * 54 + s2) * 1024}")
            g.vmem(f"buffer_store_dwordx4 {vr(16 + 4 * b, 4)}, {vr(vl16)}, {sr(SWS, 4)}, {sr(sT0)} offen sc1", "stH")

    def build(self):
        g = self.g
        self.prologue()
        self.phase1()
        self.gate()
        g.label("Lphase2")
        g.vm, g.lg, g.vm_done, g.lg_done = [], [], 0, 0
        from gen2 import phase2
        phase2(self)
        g.label("Lend")
        g("s_endpgm")
        g.label("Lcode_end")
        bad = hazard_check(g.lines)
        for b in bad:
            print("HAZARD", b, file=sys.stderr)
        head = open("gated_mix__mha_block__dense_activation_squared_relu__prompt.s.ref").read().split("; Override launch")[0]
        txt = head + f"; @launch grid=(256,1,1) block=(512,1,1) lds={LDS_BYTES}\n"
        txt += f""".amdgcn_target "amdgcn-amd-amdhsa--gfx950"
.text
.globl {NAME}
.p2align 8
.type {NAME},@function
{NAME}:
"""
        body = g.text().replace("CODE_BYTES", str(self.o.code_bytes))
        txt += body
        txt += f""".section .rodata,"a"
.p2align 6
.amdhsa_kernel {NAME}
  .amdhsa_next_free_vgpr 256
  .amdhsa_next_free_sgpr 102
  .amdhsa_accum_offset 256
  .amdhsa_group_segment_fixed_size 0
  .amdhsa_kernarg_size 96
  .amdhsa_user_sgpr_count 2
  .amdhsa_user_sgpr_kernarg_segment_ptr 1
  .amdhsa_system_sgpr_workgroup_id_x 1
.end_amdhsa_kernel
"""
        return txt, bad


def options(argv=None):
    p = argparse.ArgumentParser()
    p.add_argument("-o", default="gated_mix__mha_block__dense_activation_squared_relu__prompt.s")
    p.add_argument("--stamps", type=int, default=0)
    p.add_argument("--code_prefetch", type=int, default=1)
    p.add_argument("--pre", type=int, default=3)
    p.add_argument("--flag_stage", type=int, default=6)
    p.add_argument("--dma_pos", type=int, default=3)
    p.add_argument("--late89", type=int, default=0)
    p.add_argument("--bbars", default="1:2,3:7,8:9")
    p.add_argument("--steps", default="0,9,5")
    p.add_argument("--force_fallback", type=int, default=0)
    p.add_argument("--split", default="4,4,4,4")
    p.add_argument("--early_h", type=int, default=0)
    p.add_argument("--osleep", type=int, default=1)
    p.add_argument("--fine", default="att")
    p.add_argument("--prio", type=int, default=1)
    o = p.parse_args(argv)
    o.code_bytes = 0
    return o


def code_size(txt):
    import subprocess, tempfile, os, re
    d = tempfile.mkdtemp()
    open(d + "/k.s", "w").write(txt)
    r = subprocess.run(["clang", "-x", "assembler", "-target", "amdgcn-amd-amdhsa", "-mcpu=gfx950", "-c", d + "/k.s", "-o", d + "/k.o"],
                       capture_output=True, text=True)
    if r.returncode:
        print(r.stderr[:3000]); raise SystemExit(1)
    r = subprocess.run(["llvm-readelf", "-S", d + "/k.o"], capture_output=True, text=True)
    m = re.search(r"\.text\s+PROGBITS\s+\S+\s+\S+\s+(\S+)", r.stdout)
    return int(m.group(1), 16)


if __name__ == "__main__":
    o = options()
    o.code_bytes = 4096
    txt, _ = Gen(o).build()
    sz = code_size(txt)
    o.code_bytes = (sz - 512) & ~3
    txt, bad = Gen(o).build()
    open(o.o, "w").write(txt)
    print(f"wrote {o.o}: code {sz} bytes, {len(txt)} chars, hazards {len(bad)}")
```

```python
import sys, math, argparse
from asmlib import *

NAME = "gated_mix__mha_block__dense_activation_squared_relu__prompt_kernel"

FQ, FH, FO, GOFF, TSOFF = 0x0, 0x8000, 0x10000, 0x30000, 0x40000
QOFF, KVOFF, HOFF, OOFF, WPOFF, WS_SIZE = 0x100000, 0x400000, 0x900000, 0x1000000, 0x1280000, 0x1580000
OOB = 0x7F000000
QSCALE = math.log2(math.e) / math.sqrt(20.0)
LDS_BYTES = 163840
NREC, REC = 48, 3072
REDOFF = 16 * REC
SPIN = 1 << 21

sW, sRB, sCS, sJ, sH = 3, 4, 5, 6, 7
SX, SWQ, SW1, SWS, SW2, SWO, SOUT, SB1, SB2, SGW, SDBG, SCODE = (8 + 4 * i for i in range(12))
sM0, sT0, sT1, sT2, sRT, sCP, sTT, sCH = 56, 57, 58, 59, 60, 61, 62, 63
sSPIN, sSCALE, sHS, sT3, sT4, sT5 = 64, 65, 66, 67, 68, 69
sA = 70
sTS = 80


def f32hex(x):
    import struct
    return hex(struct.unpack("<I", struct.pack("<f", x))[0])


class Gen:
    def __init__(self, opt):
        self.o = opt
        self.g = Stream()
        self.nlab = 0
        self.role = ''

    def lab(self, base):
        self.nlab += 1
        return f"L{base}_{self.nlab}"

    def stamp(self, k):
        if self.o.diag:
            g = self.g
            pt, us = (int(x) for x in self.o.diag.split(":"))
            if k == 0:
                g(f"s_memrealtime s[98:99]\ns_waitcnt lgkmcnt(0)\ns_add_u32 s98, s98, {us * 100}")
            if k == pt and (k < 4 or self.role == self.o.diag_role):
                L = self.lab("diag")
                g.label(L)
                g(f"s_memrealtime s[100:101]\ns_waitcnt lgkmcnt(0)\ns_sub_u32 s100, s100, s98\ns_cmp_lt_i32 s100, 0\ns_cbranch_scc1 {L}")
                g.lg_done = len(g.lg)
            return
        if not self.o.stamps:
            return
        g = self.g
        g(f"{'s_memtime' if self.o.stamps == 2 else 's_memrealtime'} {sr(100, 2)}\ns_waitcnt lgkmcnt(0)\ns_mov_b32 {sr(sTS + k)}, s100")
        g.lg_done = len(g.lg)

    def dump_stamps(self):
        if not self.o.stamps:
            return
        g = self.g
        g(f"s_lshl_b32 {sr(sT0)}, s2, 3\ns_add_u32 {sr(sT0)}, {sr(sT0)}, {sr(sW)}\ns_lshl_b32 {sr(sT0)}, {sr(sT0)}, 6")
        g(f"s_add_u32 {sr(sT0)}, {sr(sT0)}, {TSOFF}\nv_mov_b32 v1, 0\ns_mov_b64 exec, 1")
        for k in range(16):
            g(f"v_mov_b32 v2, {sr(sTS + k)}")
            g(f"buffer_store_dword v2, v1, {sr(SWS, 4)}, {sr(sT0)} offen offset:{4 * k}")
        g("s_mov_b64 exec, -1")

    def dma(self, srd, vaddr, soff, ldsoff, tag, m0base=sM0, sbase=None, flags=""):
        g = self.g
        g(f"s_add_u32 m0, {sr(m0base)}, {ldsoff}")
        if sbase is None:
            g(f"s_mov_b32 {sr(sT0)}, {soff}")
        else:
            g(f"s_add_u32 {sr(sT0)}, {sr(sbase)}, {soff}")
        g.vmem(f"buffer_load_dwordx4 {vr(vaddr)}, {sr(srd, 4)}, {sr(sT0)} offen {flags} lds", tag)

    def poll(self, vaddr, vtmp, srd=SWS, sleep=0):
        g = self.g
        L, E = self.lab("poll"), self.lab("polld")
        g(f"s_mov_b32 {sr(sSPIN)}, {SPIN}")
        g.label(L)
        g(f"buffer_load_dword {vr(vtmp)}, {vr(vaddr)}, {sr(srd, 4)}, 0 offen sc1")
        g(f"s_sub_u32 {sr(sSPIN)}, {sr(sSPIN)}, 1")
        g(f"s_cbranch_scc1 {E}")
        g("s_waitcnt vmcnt(0)")
        g(f"v_cmp_ne_u32 vcc, 1, {vr(vtmp)}")
        g(f"s_cbranch_vccz {E}")
        if sleep:
            g(f"s_sleep {sleep}")
        g(f"s_branch {L}")
        g.label(E)
        g("s_waitcnt vmcnt(0)")
        g.vm_done = len(g.vm)

    def set_flag(self, sidx_expr_lines, va, vb):
        g = self.g
        g(sidx_expr_lines)
        g(f"v_mov_b32 {vr(va)}, 0\nv_mov_b32 {vr(vb)}, 1\ns_mov_b64 exec, 1")
        g.vmem(f"buffer_store_dword {vr(vb)}, {vr(va)}, {sr(SWS, 4)}, {sr(sT1)} offen sc1", "flag")
        g("s_mov_b64 exec, -1")

    def prologue(self):
        g = self.g
        g("s_cmp_ge_u32 s2, 256\ns_cbranch_scc1 Lend")
        for srd, slot in ((SX, 0), (SWQ, 1), (SW1, 4), (SWS, 11), (SB1, 5), (SGW, 8), (SDBG, 10), (SW2, 6), (SWO, 2), (SOUT, 9), (SB2, 7)):
            g(f"s_load_dwordx2 {sr(srd, 2)}, s[0:1], {8 * slot}")
        self.stamp(0)
        g("v_lshrrev_b32 v2, 6, v0\nv_and_b32 v0, 63, v0")
        g(f"v_readfirstlane_b32 {sr(sW)}, v2")
        for srd, n in ((SX, 2048 * 1280), (SWQ, 640 * 3840), (SW1, 640 * 3456), (SWS, WS_SIZE), (SB1, 3456), (SGW, 1280),
                       (SDBG, 256), (SW2, 1728 * 1280), (SWO, 640 * 1280), (SOUT, 2048 * 1280), (SB2, 1280)):
            g(f"s_mov_b32 {sr(srd + 2)}, {n}\ns_mov_b32 {sr(srd + 3)}, 0x20000")
        g(f"""
        s_getpc_b64 {sr(SCODE, 2)}
        s_mov_b32 {sr(SCODE + 2)}, CODE_BYTES
        s_mov_b32 {sr(SCODE + 3)}, 0x20000
        s_and_b32 {sr(sT0)}, s2, 7
        s_lshr_b32 {sr(sT1)}, s2, 3
        s_lshr_b32 {sr(sRB)}, {sr(sT0)}, 2
        s_lshl_b32 {sr(sRB)}, {sr(sRB)}, 3
        s_and_b32 {sr(sT2)}, {sr(sT1)}, 7
        s_add_u32 {sr(sRB)}, {sr(sRB)}, {sr(sT2)}
        s_lshr_b32 {sr(sCS)}, {sr(sT1)}, 3
        s_lshl_b32 {sr(sCS)}, {sr(sCS)}, 2
        s_and_b32 {sr(sT3)}, {sr(sT0)}, 3
        s_add_u32 {sr(sCS)}, {sr(sCS)}, {sr(sT3)}
        s_lshr_b32 {sr(sJ)}, s2, 5
        s_and_b32 {sr(sT3)}, {sr(sT1)}, 3
        s_lshl_b32 {sr(sH)}, {sr(sT0)}, 2
        s_add_u32 {sr(sH)}, {sr(sH)}, {sr(sT3)}
        s_mov_b32 {sr(sRT)}, {sr(sH)}
        s_lshr_b32 {sr(sCP)}, {sr(sT1)}, 2
        s_lshl_b32 {sr(sM0)}, {sr(sW)}, 10
        s_and_b32 {sr(sTT)}, {sr(sW)}, 3
        s_lshr_b32 {sr(sCH)}, {sr(sW)}, 2
        """)
        if self.o.code_prefetch:
            L = self.lab("nopf")
            g(f"""
            s_cmp_lg_u32 {sr(sW)}, 7
            s_cbranch_scc1 {L}
            s_lshl_b32 {sr(sT2)}, {sr(sT2)}, 13
            v_lshlrev_b32 v1, 7, v0
            buffer_load_dword v255, v1, {sr(SCODE, 4)}, {sr(sT2)} offen
            """)
            g.label(L)
        g(f"""
        v_lshrrev_b32 v2, 3, v0
        v_lshrrev_b32 v3, 4, v0
        s_lshl_b32 {sr(sT0)}, {sr(sRB)}, 7
        s_lshl_b32 {sr(sT1)}, {sr(sW)}, 3
        s_add_u32 {sr(sT0)}, {sr(sT0)}, {sr(sT1)}
        v_add_u32 v2, {sr(sT0)}, v2
        v_mul_u32_u24 v4, 1280, v2
        s_and_b32 {sr(sT0)}, {sr(sW)}, 1
        s_lshl_b32 {sr(sT0)}, {sr(sT0)}, 2
        v_or_b32 v7, {sr(sT0)}, v3
        v_and_b32 v8, 7, v0
        v_xor_b32 v7, v7, v8
        v_lshl_add_u32 v4, v7, 4, v4
        s_lshl_b32 {sr(sT0)}, {sr(sW)}, 2
        v_add_u32 v2, {sr(sT0)}, v3
        s_and_b32 {sr(sT0)}, {sr(sW)}, 2
        s_lshl_b32 {sr(sT0)}, {sr(sT0)}, 1
        v_or_b32 v7, {sr(sT0)}, v3
        v_lshlrev_b32 v7, 1, v7
        v_and_b32 v8, 15, v0
        v_xor_b32 v7, v7, v8
        v_lshlrev_b32 v7, 4, v7
        s_lshl_b32 {sr(sT0)}, {sr(sCS)}, 8
        v_add_u32 v7, {sr(sT0)}, v7
        v_mul_u32_u24 v5, 3840, v2
        v_add_u32 v5, v5, v7
        v_mul_u32_u24 v6, 3456, v2
        v_add_u32 v6, v6, v7
        s_waitcnt lgkmcnt(0)
        s_cmp_eq_u32 {sr(sCS)}, 15
        s_cbranch_scc1 Lgate
        """)

    vXG, vWG, vW1G = 4, 5, 6
    vXR = (7, 8)
    vWR = (9, 10, 11, 12)
    vST = (13, 14, 15, 1)
    BIAS, WREG, ACC, XREG = 16, 32, 64, 96

    def dmaA(self, s):
        q = s % 5
        return [lambda hf=hf: self.dma(SX, self.vXG, 128 * s + hf * 64 * 1280, q * 32768 + hf * 8192, ("A", s)) for hf in range(2)] + \
               [lambda hf=hf: self.dma(SWQ, self.vWG, (64 * s + 32 * hf) * 3840, q * 32768 + 16384 + hf * 8192, ("A", s)) for hf in range(2)]

    def dmaB(self, t):
        return [lambda hf=hf: self.dma(SW1, self.vW1G, (64 * t + 32 * hf) * 3456, t * 16384 + hf * 8192, ("B", t)) for hf in range(2)]

    def p1_setup(self):
        g = self.g
        for s in range(self.o.pre):
            for f in self.dmaA(s):
                f()
            if s + 1 < self.o.pre:
                g("s_barrier")
        g(f"""
        v_lshrrev_b32 v3, 4, v0
        v_and_b32 v2, 15, v0
        s_lshl_b32 {sr(sT1)}, {sr(sCS)}, 8
        s_lshl_b32 {sr(sT2)}, {sr(sCH)}, 7
        s_add_u32 {sr(sT1)}, {sr(sT1)}, {sr(sT2)}
        v_lshlrev_b32 v7, 3, v3
        """)
        for n in range(4):
            g.vmem(f"buffer_load_dwordx2 {vr(24 + 2 * n, 2)}, v7, {sr(SB1, 4)}, {sr(sT1)} offen offset:{32 * n}", "b1")
        g(f"""
        s_cmp_eq_u32 {sr(sCS)}, 14
        s_cselect_b32 {sr(sT0)}, {OOB}, 0
        v_add_u32 v6, {sr(sT0)}, v6
        s_lshl_b32 {sr(sT0)}, {sr(sTT)}, 5
        v_add_u32 v7, {sr(sT0)}, v2
        v_lshlrev_b32 v7, 7, v7
        v_lshrrev_b32 v9, 1, v2
        v_xor_b32 v9, v9, v3
        v_xor_b32 v10, 4, v9
        v_lshl_add_u32 v8, v10, 4, v7
        v_lshl_add_u32 v7, v9, 4, v7
        v_bfe_u32 v16, v0, 2, 2
        v_and_b32 v17, 3, v0
        v_lshl_add_u32 v18, v3, 3, v16
        v_lshlrev_b32 v18, 8, v18
        v_lshl_add_u32 v18, v17, 3, v18
        v_and_b32 v19, 1, v3
        v_lshl_add_u32 v19, v19, 2, v16
        s_lshl_b32 {sr(sT0)}, {sr(sCH)}, 2
        v_xor_b32 v19, {sr(sT0)}, v19
        """)
        for n in range(4):
            g(f"v_xor_b32 v20, {n}, v19\nv_lshl_add_u32 {vr(self.vWR[n])}, v20, 5, v18")
        LV, LD = self.lab("stv"), self.lab("std")
        g(f"""
        s_mul_i32 {sr(sT0)}, {sr(sCS)}, 205
        s_lshr_b32 {sr(sT0)}, {sr(sT0)}, 10
        s_mul_i32 {sr(sT1)}, {sr(sT0)}, 5
        s_sub_u32 {sr(sT1)}, {sr(sCS)}, {sr(sT1)}
        s_lshl_b32 {sr(sT2)}, {sr(sRB)}, 2
        s_add_u32 {sr(sT2)}, {sr(sT2)}, {sr(sTT)}
        s_cmp_eq_u32 {sr(sT0)}, 0
        s_mov_b32 {sr(sT3)}, 2560
        s_cselect_b32 {sr(sT3)}, 1280, {sr(sT3)}
        s_mov_b32 {sr(sT4)}, {KVOFF}
        s_cselect_b32 {sr(sT4)}, {QOFF}, {sr(sT4)}
        s_mul_i32 {sr(sT2)}, {sr(sT2)}, {sr(sT3)}
        s_add_u32 {sr(sT4)}, {sr(sT4)}, {sr(sT2)}
        s_lshl_b32 {sr(sT3)}, {sr(sT3)}, 6
        s_cmp_eq_u32 {sr(sT0)}, 2
        s_cbranch_scc1 {LV}
        s_lshl_b32 {sr(sT1)}, {sr(sT1)}, 5
        s_lshl_b32 {sr(sT2)}, {sr(sCH)}, 4
        s_add_u32 {sr(sT1)}, {sr(sT1)}, {sr(sT2)}
        v_add_u32 v16, {sr(sT1)}, v3
        v_lshlrev_b32 v17, 4, v2
        v_add_u32 v17, {sr(sT4)}, v17
        """)
        for n in range(4):
            g(f"""
            v_add_u32 v18, {4 * n}, v16
            v_mul_u32_u24 v19, 205, v18
            v_lshrrev_b32 v19, 10, v19
            v_mul_u32_u24 v20, 5, v19
            v_sub_u32 v20, v18, v20
            v_mul_lo_u32 v19, v19, {sr(sT3)}
            v_lshl_add_u32 v19, v20, 8, v19
            v_add_u32 {vr(self.vST[n])}, v19, v17
            """)
        g(f"s_branch {LD}")
        g.label(LV)
        g(f"""
        s_lshl_b32 {sr(sT1)}, {sr(sT1)}, 7
        s_lshl_b32 {sr(sT2)}, {sr(sCH)}, 6
        s_add_u32 {sr(sT1)}, {sr(sT1)}, {sr(sT2)}
        v_add_u32 v16, {sr(sT1)}, v2
        v_mul_u32_u24 v17, 320, v3
        s_add_u32 {sr(sT4)}, {sr(sT4)}, 1280
        v_add_u32 v17, {sr(sT4)}, v17
        """)
        for n in range(4):
            g(f"""
            v_add_u32 v18, {16 * n}, v16
            v_mul_u32_u24 v19, 3277, v18
            v_lshrrev_b32 v19, 16, v19
            v_mul_u32_u24 v20, 20, v19
            v_sub_u32 v20, v18, v20
            v_mul_lo_u32 v19, v19, {sr(sT3)}
            v_lshl_add_u32 v19, v20, 4, v19
            v_add_u32 {vr(self.vST[n])}, v19, v17
            """)
        g.label(LD)

    def rd(self, mn, dst, n, areg, off, tag, base):
        g = self.g
        if not (0 <= off - base[areg] <= 65535):
            nb = off & ~16383
            g(f"v_add_u32 {vr(areg)}, {(nb - base[areg]) & 0xFFFFFFFF}, {vr(areg)}")
            base[areg] = nb
        g.lds(f"{mn} {vr(dst, n)}, {vr(areg)} offset:{off - base[areg]}", tag)

    def xreg(self, s, kk, t):
        return self.XREG + ((2 * s + kk) * 2 + t) * 4

    def reads_x(self, s, base):
        return [lambda kk=kk, t=t: self.rd("ds_read_b128", self.xreg(s, kk, t), 4, self.vXR[kk], (s % 5) * 32768 + t * 2048, ("x", s), base)
                for t in range(2) for kk in range(2)]

    def reads_w(self, ph, s, n, base):
        o = (s % 5) * 32768 + 16384 if ph == "A" else s * 16384
        return [lambda kk=kk, u=u: self.rd("ds_read_b64_tr_b16", self.WREG + 8 * n + 4 * kk + 2 * u, 2, self.vWR[n], o + kk * 8192 + u * 1024,
                                           ("w", ph, s, n), base) for kk in range(2) for u in range(2)]

    def acc(self, ph, n, t):
        return self.ACC + (n * 2 + t) * 4 if ph == "A" else self.ACC + ((n >> 1) * 2 + t) * 8 + (n & 1) * 4

    def stage(self, ph, s, swap, base, nxt, pending, dq, at_barrier):
        g = self.g
        for n in range(4):
            tags = [("w", ph, s, n)] + ([("x", s)] if ph == "A" and n == 0 else [])
            g.wait(lg=tags)
            left = (4 - n) % 4 + 1
            nd = -(-len(dq) // left)
            for m in range(4):
                t, kk = m >> 1, m & 1
                a = self.acc(ph, n, t)
                w, x = vr(self.WREG + 8 * n + 4 * kk, 4), vr(self.xreg(s, kk, t), 4)
                c = vr(a, 4)
                if s == 0 and kk == 0:
                    c = "0" if ph == "A" else vr(self.BIAS + 4 * n, 4)
                A, B = (x, w) if swap else (w, x)
                g(f"v_mfma_f32_16x16x32_bf16 {vr(a, 4)}, {A}, {B}, {c}")
                k = (len(pending) + (3 - m)) // (4 - m)
                for f in pending[:k]:
                    f()
                pending = pending[k:]
                if m == self.o.dma_pos:
                    for _ in range(nd):
                        dq.pop(0)()
            if nxt is not None:
                if n == 0:
                    at_barrier()
                pending = self.reads_w(nxt[0], nxt[1], n, base)
                if nxt[0] == "A" and n < 2:
                    pending = self.reads_x(nxt[1], base)[2 * n:2 * n + 2] + pending
        return pending

    def passA(self, swap):
        g, o = self.g, self.o
        base = {r: 0 for r in self.vXR + self.vWR}
        for f in self.reads_x(0, base):
            f()
        for n in range(3):
            for f in self.reads_w("A", 0, n, base):
                f()
        pending = self.reads_w("A", 0, 3, base)
        dq = []
        for s in range(10):
            nxt = ("A", s + 1) if s < 9 else ("B", 0)

            def at_barrier():
                g.wait(vm=nxt)
                g("s_barrier")
                if s == 0:
                    dq.extend(sum([self.dmaA(x) for x in range(o.pre, 5)], []))
                elif s + 4 < 10:
                    dq.extend(self.dmaA(s + 4))
                else:
                    dq.extend(self.dmaB(2 * (s - 6)) + self.dmaB(2 * (s - 6) + 1))
            if s == 5:
                g.wait(vm="b1")
                for n in range(4):
                    for hf in range(2):
                        g(f"v_lshlrev_b32 {vr(self.BIAS + 4 * n + 2 * hf)}, 16, {vr(24 + 2 * n + hf)}")
                        g(f"v_and_b32 {vr(self.BIAS + 4 * n + 2 * hf + 1)}, 0xffff0000, {vr(24 + 2 * n + hf)}")
            if o.fine == "A" and 1 <= s <= 7:
                self.stamp(8 + s)
            pending = self.stage("A", s, swap, base, nxt, pending, dq, at_barrier)
        for f in dq + pending:
            f()
        return base

    def epilogueA(self):
        g = self.g
        L = self.lab("noq")
        g(f"s_cmp_ge_u32 {sr(sCS)}, 5\ns_cbranch_scc1 {L}")
        g(f"s_mov_b32 {sr(sT0)}, {f32hex(QSCALE)}")
        for r in range(32):
            g(f"v_mul_f32 {vr(self.ACC + r)}, {sr(sT0)}, {vr(self.ACC + r)}")
        g.label(L)
        for n in range(4):
            a = self.ACC + 8 * n
            for q in range(4):
                g(f"v_cvt_pk_bf16_f32 {vr(a + q)}, {vr(a + 2 * q)}, {vr(a + 2 * q + 1)}")
            g.vmem(f"buffer_store_dwordx4 {vr(a, 4)}, {vr(self.vST[n])}, {sr(SWS, 4)}, 0 offen sc1", "stA")

    def clean_load(self):
        g = self.g
        g("v_and_b32 v2, 15, v0\nv_lshlrev_b32 v2, 2, v2")
        g.vmem(f"buffer_load_dword v3, v2, {sr(SDBG, 4)}, 0 offen sc1", "clean")

    def phase1(self):
        g, o = self.g, self.o
        self.p1_setup()
        g.wait(vm=("A", 0))
        g("s_barrier")
        self.stamp(1)
        g(f"s_cmp_ge_u32 {sr(sCS)}, 10\ns_cbranch_scc1 LpassA_v")
        st = g.state()
        self.passA(False)
        g("s_branch LepiA")
        g.restore(st)
        g.label("LpassA_v")
        base = self.passA(True)
        g.label("LepiA")
        self.stamp(2)
        self.clean_load()
        g(f"s_cmp_eq_u32 {sr(sCS)}, 14\ns_cbranch_scc1 LnoB0")
        if o.late89 == 0:
            g("s_barrier")
            for f in self.dmaB(8) + self.dmaB(9):
                f()
            g("s_barrier")
        self.epilogueA()
        F = o.flag_stage
        bars = {int(x.split(":")[0]): int(x.split(":")[1]) for x in o.bbars.split(",")}
        pending, dq = [], []
        for s in range(10):
            nxt = ("B", s + 1) if s < 9 else None

            def at_barrier():
                if s + 1 in bars or s + 1 == F:
                    tags = [("B", bars.get(s + 1, s + 1))]
                    if s + 1 == F:
                        tags += ["stA", "clean"]
                    g.wait(vm=tags)
                    if s + 1 == F:
                        self.check_clean()
                    g("s_barrier")
                if s + 1 == F:
                    self.flagQ()
                    if o.late89:
                        dq.extend(self.dmaB(8) + self.dmaB(9))
            if o.fine == "B" and s in (0, 1, 3, 5, 6, 7, 8):
                self.stamp(9 + (0, 1, 3, 5, 6, 7, 8).index(s))
            pending = self.stage("B", s, False, base, nxt, pending, dq, at_barrier)
        self.stamp(3)
        g("s_nop 7")
        for r in range(32):
            g(f"v_max_f32 {vr(self.ACC + r)}, 0, {vr(self.ACC + r)}")
        for r in range(32):
            g(f"v_mul_f32 {vr(self.ACC + r)}, {vr(self.ACC + r)}, {vr(self.ACC + r)}")
        for b in range(4):
            a = self.ACC + 8 * b
            for q in range(4):
                g(f"v_cvt_pk_bf16_f32 {vr(16 + 4 * b + q)}, {vr(a + 2 * q)}, {vr(a + 2 * q + 1)}")
        g(f"""
        s_lshl_b32 {sr(sT0)}, {sr(sRB)}, 3
        s_lshl_b32 {sr(sT1)}, {sr(sTT)}, 1
        s_add_u32 {sr(sT0)}, {sr(sT0)}, {sr(sT1)}
        s_mul_i32 {sr(sT0)}, {sr(sT0)}, 54
        s_lshl_b32 {sr(sT1)}, {sr(sCS)}, 2
        s_lshl_b32 {sr(sT2)}, {sr(sCH)}, 1
        s_add_u32 {sr(sT1)}, {sr(sT1)}, {sr(sT2)}
        s_add_u32 {sr(sT0)}, {sr(sT0)}, {sr(sT1)}
        s_lshl_b32 {sr(sT0)}, {sr(sT0)}, 10
        s_add_u32 {sr(sT0)}, {sr(sT0)}, {HOFF}
        s_cmp_ge_u32 {sr(sT1)}, 54
        s_cselect_b32 {sr(sHS)}, {OOB}, {sr(sT0)}
        s_branch Lphase2
        """)
        g.label("LnoB0")
        g("s_waitcnt vmcnt(0) lgkmcnt(0)\ns_barrier")
        g(f"v_lshlrev_b32 v4, 4, v0\ns_lshl_b32 {sr(sT1)}, {sr(sM0)}, 1")
        self.dma(SGW, 4, 0, 0, "gw", m0base=sT1)
        self.dma(SGW, 4, 1024, 1024, "gw", m0base=sT1)
        self.epilogueA()
        g(f"v_lshrrev_b32 v5, 4, v0\nv_lshlrev_b32 v5, 4, v5\nv_add_u32 v5, {sr(sT1)}, v5")
        g("s_waitcnt vmcnt(0)")
        self.check_clean()
        g("s_barrier")
        self.flagQ()
        for half in range(2):
            for k in range(10):
                g(f"ds_read_b128 {vr(16 + 4 * k, 4)}, v5 offset:{64 * (10 * half + k)}")
            g("s_waitcnt lgkmcnt(0)")
            for k in range(10):
                kk = 10 * half + k
                for t in range(2):
                    g(f"v_mfma_f32_16x16x32_bf16 {vr(64 + 4 * t, 4)}, {vr(16 + 4 * k, 4)}, {vr(self.xreg(kk >> 1, kk & 1, t), 4)}, {'0' if kk == 0 else vr(64 + 4 * t, 4)}")
        g(f"""
        s_nop 7
        v_cmp_gt_u32 vcc, 16, v0
        v_lshlrev_b32 v4, 2, v0
        s_lshl_b32 {sr(sT0)}, {sr(sRB)}, 9
        v_cndmask_b32 v64, v68, v64, vcc
        v_mul_f32 v64, {f32hex(-math.log2(math.e))}, v64
        v_exp_f32 v64, v64
        s_lshl_b32 {sr(sT1)}, {sr(sTT)}, 7
        v_add_f32 v64, 1.0, v64
        v_rcp_f32 v64, v64
        s_add_u32 {sr(sT0)}, {sr(sT0)}, {sr(sT1)}
        s_add_u32 {sr(sT0)}, {sr(sT0)}, {GOFF}
        s_cmp_lg_u32 {sr(sCH)}, 0
        s_cselect_b32 {sr(sT0)}, {OOB}, {sr(sT0)}
        s_mov_b32 exec_hi, 0
        buffer_store_dword v64, v4, {sr(SWS, 4)}, {sr(sT0)} offen sc1
        s_mov_b32 exec_hi, -1
        """)
        g.label("LnoB")
        g(f"s_barrier\ns_mov_b32 {sr(sHS)}, {OOB}\ns_branch Lphase2")

    def check_clean(self):
        g = self.g
        L = self.lab("clean")
        g(f"v_cmp_ne_u32 vcc, 1, v3\ns_cbranch_vccz {L}")
        st = g.state()
        self.poll(2, 3, SDBG)
        g.restore(st)
        g.label(L)

    def flagQ(self, off=FQ, wave=0):
        g = self.g
        L = self.lab("nofq")
        g(f"s_mov_b32 {sr(sT2)}, {off}\ns_cmp_lg_u32 {sr(sW)}, {wave}\ns_cselect_b32 {sr(sT2)}, {OOB}, {sr(sT2)}")
        self.set_flag(f"""
        s_lshl_b32 {sr(sT1)}, {sr(sCS)}, 4
        s_add_u32 {sr(sT1)}, {sr(sT1)}, {sr(sRB)}
        s_lshl_b32 {sr(sT1)}, {sr(sT1)}, 7
        s_add_u32 {sr(sT1)}, {sr(sT1)}, {sr(sT2)}""", 2, 3)

    def const_init(self, part):
        g = self.g
        g(f"""
        v_and_b32 v14, 31, v0
        v_lshrrev_b32 v15, 5, v0
        s_lshl_b32 {sr(sT0)}, {sr(sW)}, 1
        v_add_u32 v15, {sr(sT0)}, v15
        v_mul_u32_u24 v15, {REC}, v15
        v_lshl_add_u32 v13, v14, 4, v15
        v_and_b32 v15, 23, v14
        v_cmp_eq_u32 vcc, 16, v15
        v_mov_b32 v15, 0x3f803f80
        v_mov_b32 v1, 0x3f80
        v_cndmask_b32 v5, 0, v15, vcc
        v_cmp_eq_u32 vcc, 20, v14
        v_mov_b32 v14, v5
        v_mov_b32 v15, v5
        v_cndmask_b32 v4, v5, v1, vcc
        """)
        if part == 0:
            for r0 in (0, 4):
                g.lds(f"ds_write_b64 v13, v[4:5] offset:{2560 + r0 * REC}", "cw")
                g.lds(f"ds_write_b64 v13, v[14:15] offset:{2568 + r0 * REC}", "cw")
        else:
            for k in range(4):
                g(f"v_add_u32 v13, {(12 if k == 0 else 8 if k < 3 else 4) * REC}, v13")
                g.lds(f"ds_write_b64 v13, v[4:5] offset:2560", "cw")
                g.lds(f"ds_write_b64 v13, v[14:15] offset:2568", "cw")

    def gate(self):
        g = self.g
        g.label("Lgate")
        L = self.lab("noclr")
        g(f"""
        s_mul_i32 {sr(sT0)}, {sr(sRB)}, {96 * 128}
        s_mul_i32 {sr(sT1)}, {sr(sW)}, {12 * 128}
        s_add_u32 {sr(sT0)}, {sr(sT0)}, {sr(sT1)}
        v_lshlrev_b32 v2, 7, v0
        v_mov_b32 v3, 0
        s_mov_b64 exec, 0xfff
        buffer_store_dword v3, v2, {sr(SWS, 4)}, {sr(sT0)} offen sc1
        s_mov_b64 exec, -1
        """)
        self.pack()
        self.stamp(3)
        self.clean_load()
        g("s_waitcnt vmcnt(0) lgkmcnt(0)")
        self.check_clean()
        g("s_branch LnoB")

    def pack(self):
        g = self.g
        g.vm, g.lg, g.vm_done, g.lg_done = [], [], 0, 0
        sRing, sSrc, sDst = sA, sA + 1, sA + 2
        AD = {"w2": 32, "main": 40, "rem": 48}
        g(f"s_mul_i32 {sr(sRing)}, {sr(sW)}, 20480\ns_mul_i32 {sr(sT2)}, {sr(sW)}, 160")
        for q in range(5):
            g(f"""
            v_add_u32 v2, {64 * q}, v0
            v_mul_u32_u24 v3, 6554, v2
            v_lshrrev_b32 v3, 16, v3
            v_mul_u32_u24 v4, 10, v3
            v_sub_u32 v2, v2, v4
            v_lshlrev_b32 v2, 4, v2
            v_add_u32 v2, {sr(sT2)}, v2
            v_mul_u32_u24 v4, 1280, v3
            v_add_u32 {vr(AD['w2'] + q)}, v4, v2
            v_lshrrev_b32 v5, 4, v3
            v_and_b32 v6, 7, v3
            v_bfe_u32 v7, v3, 3, 1
            v_mul_u32_u24 v7, 20, v7
            v_lshl_add_u32 v7, v5, 3, v7
            v_add_u32 v7, v7, v6
            v_mul_u32_u24 v7, 1280, v7
            v_add_u32 {vr(AD['main'] + q)}, v7, v2
            v_bfe_u32 v7, v3, 2, 2
            v_lshl_add_u32 v7, v7, 1, v5
            v_mul_u32_u24 v7, 20, v7
            v_and_b32 v6, 3, v3
            v_add3_u32 v7, v7, v6, 16
            v_mul_u32_u24 v7, 1280, v7
            v_add_u32 {vr(AD['rem'] + q)}, v7, v2
            """)
        g(f"""
        v_lshrrev_b32 v2, 2, v0
        v_mul_u32_u24 v2, 160, v2
        v_and_b32 v3, 3, v0
        v_lshl_add_u32 v2, v3, 3, v2
        v_add_u32 v8, {sr(sRing)}, v2
        v_lshlrev_b32 v9, 4, v0
        s_mul_i32 {sr(sT2)}, {sr(sW)}, 5120
        s_add_u32 {sr(sT2)}, {sr(sT2)}, {WPOFF}
        v_add_u32 v9, {sr(sT2)}, v9
        v_add_u32 v10, 4096, v9
        """)

        def load(rnd, srd, kind):
            for q in range(5):
                self.dma(srd, AD[kind] + q, 0, (rnd % 4) * 5120 + q * 1024, ("p", rnd), m0base=sRing, sbase=sSrc)

        def emit(rnd):
            g.wait(vm=("p", rnd))
            d = 96 + 20 * rnd
            for n in range(5):
                for u in range(2):
                    g.lds(f"ds_read_b64_tr_b16 {vr(d + 4 * n + 2 * u, 2)}, v8 offset:{(rnd % 4) * 5120 + u * 2560 + n * 32}", ("pr", rnd))

        def store(rnd):
            g.wait(lg=("pr", rnd))
            d = 96 + 20 * rnd
            for n in range(5):
                g.vmem(f"buffer_store_dwordx4 {vr(d + 4 * n, 4)}, {'v9' if n < 4 else 'v10'}, {sr(SWS, 4)}, {sr(sDst + rnd)} offen offset:{(n % 4) * 1024} sc1", "ps")

        for rnd in range(3):
            g(f"s_add_u32 {sr(sT1)}, {sr(sRB)}, {16 * rnd}\ns_mul_i32 {sr(sSrc)}, {sr(sT1)}, 40960\ns_mov_b32 {sr(sDst + rnd)}, {sr(sSrc)}")
            load(rnd, SW2, "w2")
        g(f"""
        s_mul_i32 {sr(sSrc)}, {sr(sRB)}, {40 * 1280}
        s_lshr_b32 {sr(sT1)}, {sr(sRB)}, 2
        s_add_u32 {sr(sT1)}, {sr(sT1)}, {sr(sRB)}
        s_add_u32 {sr(sT1)}, {sr(sT1)}, 54
        s_mul_i32 {sr(sDst + 3)}, {sr(sT1)}, 40960
        """)
        load(3, SWO, "main")
        emit(0)
        g("s_barrier")
        self.stamp(1)
        g(f"""
        s_lshl_b32 {sr(sT1)}, {sr(sRB)}, 2
        s_cmp_lg_u32 {sr(sW)}, 0
        s_cselect_b32 {sr(sT1)}, {OOB}, {sr(sT1)}
        v_mov_b32 v2, 0
        v_mov_b32 v3, 1
        s_mov_b64 exec, 1
        """)
        g.vmem(f"buffer_store_dword v3, v2, {sr(SDBG, 4)}, {sr(sT1)} offen sc1", "cl")
        g("s_mov_b64 exec, -1")
        g.wait(lg="all")
        LR, LJ = self.lab("prem"), self.lab("pjoin")
        g(f"s_cmp_ge_u32 {sr(sRB)}, 6\ns_cbranch_scc1 {LR}")
        g(f"s_add_u32 {sr(sT1)}, {sr(sRB)}, 48\ns_mul_i32 {sr(sSrc)}, {sr(sT1)}, 40960\ns_mov_b32 {sr(sDst + 4)}, {sr(sSrc)}")
        st = g.state()
        load(4, SW2, "w2")
        g(f"s_branch {LJ}")
        g.restore(st)
        g.label(LR)
        g(f"""
        s_sub_u32 {sr(sT1)}, {sr(sRB)}, 6
        s_mul_i32 {sr(sSrc)}, {sr(sT1)}, {160 * 1280}
        s_mul_i32 {sr(sT1)}, {sr(sT1)}, 5
        s_add_u32 {sr(sT1)}, {sr(sT1)}, 58
        s_mul_i32 {sr(sDst + 4)}, {sr(sT1)}, 40960
        s_cmp_ge_u32 {sr(sRB)}, 10
        s_cselect_b32 {sr(sDst + 4)}, {OOB}, {sr(sDst + 4)}
        """)
        load(4, SWO, "rem")
        g.label(LJ)
        for rnd in range(1, 5):
            emit(rnd)
        self.stamp(2)
        for rnd in range(5):
            store(rnd)

    def h_stores(self, vl16):
        g = self.g
        for b in range(4):
            s2, t = b >> 1, b & 1
            g(f"s_add_u32 {sr(sT0)}, {sr(sHS)}, {(t * 54 + s2) * 1024}")
            g.vmem(f"buffer_store_dwordx4 {vr(16 + 4 * b, 4)}, {vr(vl16)}, {sr(SWS, 4)}, {sr(sT0)} offen sc1", "stH")

    def build(self):
        g = self.g
        self.prologue()
        self.phase1()
        self.gate()
        g.label("Lphase2")
        g.vm, g.lg, g.vm_done, g.lg_done = [], [], 0, 0
        from gen2 import phase2
        phase2(self)
        g.label("Lend")
        g("s_endpgm")
        g.label("Lcode_end")
        bad = hazard_check(g.lines)
        for b in bad:
            print("HAZARD", b, file=sys.stderr)
        head = open("gated_mix__mha_block__dense_activation_squared_relu__prompt.s.ref").read().split("; Override launch")[0]
        txt = head + f"; @launch grid=(256,1,1) block=(512,1,1) lds={LDS_BYTES}\n"
        txt += f""".amdgcn_target "amdgcn-amd-amdhsa--gfx950"
.text
.globl {NAME}
.p2align 8
.type {NAME},@function
{NAME}:
"""
        body = g.text().replace("CODE_BYTES", str(self.o.code_bytes))
        txt += body
        txt += f""".section .rodata,"a"
.p2align 6
.amdhsa_kernel {NAME}
  .amdhsa_next_free_vgpr 256
  .amdhsa_next_free_sgpr 102
  .amdhsa_accum_offset 256
  .amdhsa_group_segment_fixed_size 0
  .amdhsa_kernarg_size 96
  .amdhsa_user_sgpr_count 2
  .amdhsa_user_sgpr_kernarg_segment_ptr 1
  .amdhsa_system_sgpr_workgroup_id_x 1
.end_amdhsa_kernel
"""
        return txt, bad


def options(argv=None):
    p = argparse.ArgumentParser()
    p.add_argument("-o", default="gated_mix__mha_block__dense_activation_squared_relu__prompt.s")
    p.add_argument("--stamps", type=int, default=0)
    p.add_argument("--code_prefetch", type=int, default=1)
    p.add_argument("--pre", type=int, default=3)
    p.add_argument("--flag_stage", type=int, default=6)
    p.add_argument("--dma_pos", type=int, default=3)
    p.add_argument("--late89", type=int, default=0)
    p.add_argument("--bbars", default="1:2,3:7,8:9")
    p.add_argument("--steps", default="0,9,5")
    p.add_argument("--force_fallback", type=int, default=0)
    p.add_argument("--split", default="4,4,4,4")
    p.add_argument("--early_h", type=int, default=0)
    p.add_argument("--osleep", type=int, default=1)
    p.add_argument("--diag", default="")
    p.add_argument("--diag_role", default="gemm")
    p.add_argument("--fine", default="att")
    p.add_argument("--prio", type=int, default=1)
    o = p.parse_args(argv)
    o.code_bytes = 0
    return o


def code_size(txt):
    import subprocess, tempfile, os, re
    d = tempfile.mkdtemp()
    open(d + "/k.s", "w").write(txt)
    r = subprocess.run(["clang", "-x", "assembler", "-target", "amdgcn-amd-amdhsa", "-mcpu=gfx950", "-c", d + "/k.s", "-o", d + "/k.o"],
                       capture_output=True, text=True)
    if r.returncode:
        print(r.stderr[:3000]); raise SystemExit(1)
    r = subprocess.run(["llvm-readelf", "-S", d + "/k.o"], capture_output=True, text=True)
    m = re.search(r"\.text\s+PROGBITS\s+\S+\s+\S+\s+(\S+)", r.stdout)
    return int(m.group(1), 16)


if __name__ == "__main__":
    o = options()
    o.code_bytes = 4096
    txt, _ = Gen(o).build()
    sz = code_size(txt)
    o.code_bytes = (sz - 512) & ~3
    txt, bad = Gen(o).build()
    open(o.o, "w").write(txt)
    print(f"wrote {o.o}: code {sz} bytes, {len(txt)} chars, hazards {len(bad)}")
```

```python
import sys, math, argparse
from asmlib import *

NAME = "gated_mix__mha_block__dense_activation_squared_relu__prompt_kernel"

FQ, FH, FO, GOFF, TSOFF = 0x0, 0x8000, 0x10000, 0x30000, 0x40000
QOFF, KVOFF, HOFF, OOFF, WPOFF, WS_SIZE = 0x100000, 0x400000, 0x900000, 0x1000000, 0x1280000, 0x1580000
OOB = 0x7F000000
QSCALE = math.log2(math.e) / math.sqrt(20.0)
LDS_BYTES = 163840
NREC, REC = 48, 3072
REDOFF = 16 * REC
SPIN = 1 << 21

sW, sRB, sCS, sJ, sH = 3, 4, 5, 6, 7
SX, SWQ, SW1, SWS, SW2, SWO, SOUT, SB1, SB2, SGW, SDBG, SCODE = (8 + 4 * i for i in range(12))
sM0, sT0, sT1, sT2, sRT, sCP, sTT, sCH = 56, 57, 58, 59, 60, 61, 62, 63
sSPIN, sSCALE, sHS, sT3, sT4, sT5 = 64, 65, 66, 67, 68, 69
sA = 70
sTS = 80


def f32hex(x):
    import struct
    return hex(struct.unpack("<I", struct.pack("<f", x))[0])


class Gen:
    def __init__(self, opt):
        self.o = opt
        self.g = Stream()
        self.nlab = 0
        self.role = ''

    def lab(self, base):
        self.nlab += 1
        return f"L{base}_{self.nlab}"

    def stamp(self, k):
        if self.o.diag:
            g = self.g
            pt, us = (int(x) for x in self.o.diag.split(":"))
            if k == 0:
                g(f"s_memrealtime s[98:99]\ns_waitcnt lgkmcnt(0)\ns_add_u32 s98, s98, {us * 100}")
            if k == pt and (k < 4 or self.role == self.o.diag_role):
                L = self.lab("diag")
                g.label(L)
                g(f"s_memrealtime s[100:101]\ns_waitcnt lgkmcnt(0)\ns_sub_u32 s100, s100, s98\ns_cmp_lt_i32 s100, 0\ns_cbranch_scc1 {L}")
                g.lg_done = len(g.lg)
            return
        if not self.o.stamps:
            return
        g = self.g
        g(f"{'s_memtime' if self.o.stamps == 2 else 's_memrealtime'} {sr(100, 2)}\ns_waitcnt lgkmcnt(0)\ns_mov_b32 {sr(sTS + k)}, s100")
        g.lg_done = len(g.lg)

    def dump_stamps(self):
        if not self.o.stamps:
            return
        g = self.g
        g(f"s_lshl_b32 {sr(sT0)}, s2, 3\ns_add_u32 {sr(sT0)}, {sr(sT0)}, {sr(sW)}\ns_lshl_b32 {sr(sT0)}, {sr(sT0)}, 6")
        g(f"s_add_u32 {sr(sT0)}, {sr(sT0)}, {TSOFF}\nv_mov_b32 v1, 0\ns_mov_b64 exec, 1")
        for k in range(16):
            g(f"v_mov_b32 v2, {sr(sTS + k)}")
            g(f"buffer_store_dword v2, v1, {sr(SWS, 4)}, {sr(sT0)} offen offset:{4 * k}")
        g("s_mov_b64 exec, -1")

    def dma(self, srd, vaddr, soff, ldsoff, tag, m0base=sM0, sbase=None, flags=""):
        g = self.g
        g(f"s_add_u32 m0, {sr(m0base)}, {ldsoff}")
        if sbase is None:
            g(f"s_mov_b32 {sr(sT0)}, {soff}")
        else:
            g(f"s_add_u32 {sr(sT0)}, {sr(sbase)}, {soff}")
        g.vmem(f"buffer_load_dwordx4 {vr(vaddr)}, {sr(srd, 4)}, {sr(sT0)} offen {flags} lds", tag)

    def poll(self, vaddr, vtmp, srd=SWS, sleep=0):
        g = self.g
        L, E = self.lab("poll"), self.lab("polld")
        g(f"s_mov_b32 {sr(sSPIN)}, {SPIN}")
        g.label(L)
        g(f"buffer_load_dword {vr(vtmp)}, {vr(vaddr)}, {sr(srd, 4)}, 0 offen sc1")
        g(f"s_sub_u32 {sr(sSPIN)}, {sr(sSPIN)}, 1")
        g(f"s_cbranch_scc1 {E}")
        g("s_waitcnt vmcnt(0)")
        g(f"v_cmp_ne_u32 vcc, 1, {vr(vtmp)}")
        g(f"s_cbranch_vccz {E}")
        if sleep:
            g(f"s_sleep {sleep}")
        g(f"s_branch {L}")
        g.label(E)
        g("s_waitcnt vmcnt(0)")
        g.vm_done = len(g.vm)

    def set_flag(self, sidx_expr_lines, va, vb):
        g = self.g
        g(sidx_expr_lines)
        g(f"v_mov_b32 {vr(va)}, 0\nv_mov_b32 {vr(vb)}, 1\ns_mov_b64 exec, 1")
        g.vmem(f"buffer_store_dword {vr(vb)}, {vr(va)}, {sr(SWS, 4)}, {sr(sT1)} offen sc1", "flag")
        g("s_mov_b64 exec, -1")

    def prologue(self):
        g = self.g
        g("s_cmp_ge_u32 s2, 256\ns_cbranch_scc1 Lend")
        for srd, slot in ((SX, 0), (SWQ, 1), (SW1, 4), (SWS, 11), (SB1, 5), (SGW, 8), (SDBG, 10), (SW2, 6), (SWO, 2), (SOUT, 9), (SB2, 7)):
            g(f"s_load_dwordx2 {sr(srd, 2)}, s[0:1], {8 * slot}")
        self.stamp(0)
        g("v_lshrrev_b32 v2, 6, v0\nv_and_b32 v0, 63, v0")
        g(f"v_readfirstlane_b32 {sr(sW)}, v2")
        for srd, n in ((SX, 2048 * 1280), (SWQ, 640 * 3840), (SW1, 640 * 3456), (SWS, WS_SIZE), (SB1, 3456), (SGW, 1280),
                       (SDBG, 256), (SW2, 1728 * 1280), (SWO, 640 * 1280), (SOUT, 2048 * 1280), (SB2, 1280)):
            g(f"s_mov_b32 {sr(srd + 2)}, {n}\ns_mov_b32 {sr(srd + 3)}, 0x20000")
        g(f"""
        s_getpc_b64 {sr(SCODE, 2)}
        s_mov_b32 {sr(SCODE + 2)}, CODE_BYTES
        s_mov_b32 {sr(SCODE + 3)}, 0x20000
        s_and_b32 {sr(sT0)}, s2, 7
        s_lshr_b32 {sr(sT1)}, s2, 3
        s_lshr_b32 {sr(sRB)}, {sr(sT0)}, 2
        s_lshl_b32 {sr(sRB)}, {sr(sRB)}, 3
        s_and_b32 {sr(sT2)}, {sr(sT1)}, 7
        s_add_u32 {sr(sRB)}, {sr(sRB)}, {sr(sT2)}
        s_lshr_b32 {sr(sCS)}, {sr(sT1)}, 3
        s_lshl_b32 {sr(sCS)}, {sr(sCS)}, 2
        s_and_b32 {sr(sT3)}, {sr(sT0)}, 3
        s_add_u32 {sr(sCS)}, {sr(sCS)}, {sr(sT3)}
        s_lshr_b32 {sr(sJ)}, s2, 5
        s_and_b32 {sr(sT3)}, {sr(sT1)}, 3
        s_lshl_b32 {sr(sH)}, {sr(sT0)}, 2
        s_add_u32 {sr(sH)}, {sr(sH)}, {sr(sT3)}
        s_mov_b32 {sr(sRT)}, {sr(sH)}
        s_lshr_b32 {sr(sCP)}, {sr(sT1)}, 2
        s_lshl_b32 {sr(sM0)}, {sr(sW)}, 10
        s_and_b32 {sr(sTT)}, {sr(sW)}, 3
        s_lshr_b32 {sr(sCH)}, {sr(sW)}, 2
        """)
        if self.o.code_prefetch:
            L = self.lab("nopf")
            g(f"""
            s_cmp_lg_u32 {sr(sW)}, 7
            s_cbranch_scc1 {L}
            s_lshl_b32 {sr(sT2)}, {sr(sT2)}, 13
            v_lshlrev_b32 v1, 7, v0
            buffer_load_dword v255, v1, {sr(SCODE, 4)}, {sr(sT2)} offen
            """)
            g.label(L)
        g(f"""
        v_lshrrev_b32 v2, 3, v0
        v_lshrrev_b32 v3, 4, v0
        s_lshl_b32 {sr(sT0)}, {sr(sRB)}, 7
        s_lshl_b32 {sr(sT1)}, {sr(sW)}, 3
        s_add_u32 {sr(sT0)}, {sr(sT0)}, {sr(sT1)}
        v_add_u32 v2, {sr(sT0)}, v2
        v_mul_u32_u24 v4, 1280, v2
        s_and_b32 {sr(sT0)}, {sr(sW)}, 1
        s_lshl_b32 {sr(sT0)}, {sr(sT0)}, 2
        v_or_b32 v7, {sr(sT0)}, v3
        v_and_b32 v8, 7, v0
        v_xor_b32 v7, v7, v8
        v_lshl_add_u32 v4, v7, 4, v4
        s_lshl_b32 {sr(sT0)}, {sr(sW)}, 2
        v_add_u32 v2, {sr(sT0)}, v3
        s_and_b32 {sr(sT0)}, {sr(sW)}, 2
        s_lshl_b32 {sr(sT0)}, {sr(sT0)}, 1
        v_or_b32 v7, {sr(sT0)}, v3
        v_lshlrev_b32 v7, 1, v7
        v_and_b32 v8, 15, v0
        v_xor_b32 v7, v7, v8
        v_lshlrev_b32 v7, 4, v7
        s_lshl_b32 {sr(sT0)}, {sr(sCS)}, 8
        v_add_u32 v7, {sr(sT0)}, v7
        v_mul_u32_u24 v5, 3840, v2
        v_add_u32 v5, v5, v7
        v_mul_u32_u24 v6, 3456, v2
        v_add_u32 v6, v6, v7
        s_waitcnt lgkmcnt(0)
        """)
        if self.o.tlb:
            L = self.lab("notlb")
            g(f"s_cmp_lg_u32 {sr(sW)}, 6\ns_cbranch_scc1 {L}\nv_lshlrev_b32 v1, {self.o.tlb}, v0")
            for srd in (SWS, SOUT, SW1, SB1, SB2, SDBG):
                g(f"buffer_load_dword v255, v1, {sr(srd, 4)}, 0 offen")
            g.label(L)
        g(f"s_cmp_eq_u32 {sr(sCS)}, 15\ns_cbranch_scc1 Lgate")

    vXG, vWG, vW1G = 4, 5, 6
    vXR = (7, 8)
    vWR = (9, 10, 11, 12)
    vST = (13, 14, 15, 1)
    BIAS, WREG, ACC, XREG = 16, 32, 64, 96

    def dmaA(self, s):
        q = s % 5
        return [lambda hf=hf: self.dma(SX, self.vXG, 128 * s + hf * 64 * 1280, q * 32768 + hf * 8192, ("A", s)) for hf in range(2)] + \
               [lambda hf=hf: self.dma(SWQ, self.vWG, (64 * s + 32 * hf) * 3840, q * 32768 + 16384 + hf * 8192, ("A", s)) for hf in range(2)]

    def dmaB(self, t):
        return [lambda hf=hf: self.dma(SW1, self.vW1G, (64 * t + 32 * hf) * 3456, t * 16384 + hf * 8192, ("B", t)) for hf in range(2)]

    def p1_setup(self):
        g = self.g
        for s in range(self.o.pre):
            for f in self.dmaA(s):
                f()
            if s + 1 < self.o.pre:
                g("s_barrier")
        g(f"""
        v_lshrrev_b32 v3, 4, v0
        v_and_b32 v2, 15, v0
        s_lshl_b32 {sr(sT1)}, {sr(sCS)}, 8
        s_lshl_b32 {sr(sT2)}, {sr(sCH)}, 7
        s_add_u32 {sr(sT1)}, {sr(sT1)}, {sr(sT2)}
        v_lshlrev_b32 v7, 3, v3
        """)
        for n in range(4):
            g.vmem(f"buffer_load_dwordx2 {vr(24 + 2 * n, 2)}, v7, {sr(SB1, 4)}, {sr(sT1)} offen offset:{32 * n}", "b1")
        g(f"""
        s_cmp_eq_u32 {sr(sCS)}, 14
        s_cselect_b32 {sr(sT0)}, {OOB}, 0
        v_add_u32 v6, {sr(sT0)}, v6
        s_lshl_b32 {sr(sT0)}, {sr(sTT)}, 5
        v_add_u32 v7, {sr(sT0)}, v2
        v_lshlrev_b32 v7, 7, v7
        v_lshrrev_b32 v9, 1, v2
        v_xor_b32 v9, v9, v3
        v_xor_b32 v10, 4, v9
        v_lshl_add_u32 v8, v10, 4, v7
        v_lshl_add_u32 v7, v9, 4, v7
        v_bfe_u32 v16, v0, 2, 2
        v_and_b32 v17, 3, v0
        v_lshl_add_u32 v18, v3, 3, v16
        v_lshlrev_b32 v18, 8, v18
        v_lshl_add_u32 v18, v17, 3, v18
        v_and_b32 v19, 1, v3
        v_lshl_add_u32 v19, v19, 2, v16
        s_lshl_b32 {sr(sT0)}, {sr(sCH)}, 2
        v_xor_b32 v19, {sr(sT0)}, v19
        """)
        for n in range(4):
            g(f"v_xor_b32 v20, {n}, v19\nv_lshl_add_u32 {vr(self.vWR[n])}, v20, 5, v18")
        LV, LD = self.lab("stv"), self.lab("std")
        g(f"""
        s_mul_i32 {sr(sT0)}, {sr(sCS)}, 205
        s_lshr_b32 {sr(sT0)}, {sr(sT0)}, 10
        s_mul_i32 {sr(sT1)}, {sr(sT0)}, 5
        s_sub_u32 {sr(sT1)}, {sr(sCS)}, {sr(sT1)}
        s_lshl_b32 {sr(sT2)}, {sr(sRB)}, 2
        s_add_u32 {sr(sT2)}, {sr(sT2)}, {sr(sTT)}
        s_cmp_eq_u32 {sr(sT0)}, 0
        s_mov_b32 {sr(sT3)}, 2560
        s_cselect_b32 {sr(sT3)}, 1280, {sr(sT3)}
        s_mov_b32 {sr(sT4)}, {KVOFF}
        s_cselect_b32 {sr(sT4)}, {QOFF}, {sr(sT4)}
        s_mul_i32 {sr(sT2)}, {sr(sT2)}, {sr(sT3)}
        s_add_u32 {sr(sT4)}, {sr(sT4)}, {sr(sT2)}
        s_lshl_b32 {sr(sT3)}, {sr(sT3)}, 6
        s_cmp_eq_u32 {sr(sT0)}, 2
        s_cbranch_scc1 {LV}
        s_lshl_b32 {sr(sT1)}, {sr(sT1)}, 5
        s_lshl_b32 {sr(sT2)}, {sr(sCH)}, 4
        s_add_u32 {sr(sT1)}, {sr(sT1)}, {sr(sT2)}
        v_add_u32 v16, {sr(sT1)}, v3
        v_lshlrev_b32 v17, 4, v2
        v_add_u32 v17, {sr(sT4)}, v17
        """)
        for n in range(4):
            g(f"""
            v_add_u32 v18, {4 * n}, v16
            v_mul_u32_u24 v19, 205, v18
            v_lshrrev_b32 v19, 10, v19
            v_mul_u32_u24 v20, 5, v19
            v_sub_u32 v20, v18, v20
            v_mul_lo_u32 v19, v19, {sr(sT3)}
            v_lshl_add_u32 v19, v20, 8, v19
            v_add_u32 {vr(self.vST[n])}, v19, v17
            """)
        g(f"s_branch {LD}")
        g.label(LV)
        g(f"""
        s_lshl_b32 {sr(sT1)}, {sr(sT1)}, 7
        s_lshl_b32 {sr(sT2)}, {sr(sCH)}, 6
        s_add_u32 {sr(sT1)}, {sr(sT1)}, {sr(sT2)}
        v_add_u32 v16, {sr(sT1)}, v2
        v_mul_u32_u24 v17, 320, v3
        s_add_u32 {sr(sT4)}, {sr(sT4)}, 1280
        v_add_u32 v17, {sr(sT4)}, v17
        """)
        for n in range(4):
            g(f"""
            v_add_u32 v18, {16 * n}, v16
            v_mul_u32_u24 v19, 3277, v18
            v_lshrrev_b32 v19, 16, v19
            v_mul_u32_u24 v20, 20, v19
            v_sub_u32 v20, v18, v20
            v_mul_lo_u32 v19, v19, {sr(sT3)}
            v_lshl_add_u32 v19, v20, 4, v19
            v_add_u32 {vr(self.vST[n])}, v19, v17
            """)
        g.label(LD)

    def rd(self, mn, dst, n, areg, off, tag, base):
        g = self.g
        if not (0 <= off - base[areg] <= 65535):
            nb = off & ~16383
            g(f"v_add_u32 {vr(areg)}, {(nb - base[areg]) & 0xFFFFFFFF}, {vr(areg)}")
            base[areg] = nb
        g.lds(f"{mn} {vr(dst, n)}, {vr(areg)} offset:{off - base[areg]}", tag)

    def xreg(self, s, kk, t):
        return self.XREG + ((2 * s + kk) * 2 + t) * 4

    def reads_x(self, s, base):
        return [lambda kk=kk, t=t: self.rd("ds_read_b128", self.xreg(s, kk, t), 4, self.vXR[kk], (s % 5) * 32768 + t * 2048, ("x", s), base)
                for t in range(2) for kk in range(2)]

    def reads_w(self, ph, s, n, base):
        o = (s % 5) * 32768 + 16384 if ph == "A" else s * 16384
        return [lambda kk=kk, u=u: self.rd("ds_read_b64_tr_b16", self.WREG + 8 * n + 4 * kk + 2 * u, 2, self.vWR[n], o + kk * 8192 + u * 1024,
                                           ("w", ph, s, n), base) for kk in range(2) for u in range(2)]

    def acc(self, ph, n, t):
        return self.ACC + (n * 2 + t) * 4 if ph == "A" else self.ACC + ((n >> 1) * 2 + t) * 8 + (n & 1) * 4

    def stage(self, ph, s, swap, base, nxt, pending, dq, at_barrier):
        g = self.g
        for n in range(4):
            tags = [("w", ph, s, n)] + ([("x", s)] if ph == "A" and n == 0 else [])
            g.wait(lg=tags)
            left = (4 - n) % 4 + 1
            nd = -(-len(dq) // left)
            for m in range(4):
                t, kk = m >> 1, m & 1
                a = self.acc(ph, n, t)
                w, x = vr(self.WREG + 8 * n + 4 * kk, 4), vr(self.xreg(s, kk, t), 4)
                c = vr(a, 4)
                if s == 0 and kk == 0:
                    c = "0" if ph == "A" else vr(self.BIAS + 4 * n, 4)
                A, B = (x, w) if swap else (w, x)
                g(f"v_mfma_f32_16x16x32_bf16 {vr(a, 4)}, {A}, {B}, {c}")
                k = (len(pending) + (3 - m)) // (4 - m)
                for f in pending[:k]:
                    f()
                pending = pending[k:]
                if m == self.o.dma_pos:
                    for _ in range(nd):
                        dq.pop(0)()
            if nxt is not None:
                if n == 0:
                    at_barrier()
                pending = self.reads_w(nxt[0], nxt[1], n, base)
                if nxt[0] == "A" and n < 2:
                    pending = self.reads_x(nxt[1], base)[2 * n:2 * n + 2] + pending
        return pending

    def passA(self, swap):
        g, o = self.g, self.o
        base = {r: 0 for r in self.vXR + self.vWR}
        for f in self.reads_x(0, base):
            f()
        for n in range(3):
            for f in self.reads_w("A", 0, n, base):
                f()
        pending = self.reads_w("A", 0, 3, base)
        dq = []
        for s in range(10):
            nxt = ("A", s + 1) if s < 9 else ("B", 0)

            def at_barrier():
                g.wait(vm=nxt)
                g("s_barrier")
                if s == 0:
                    dq.extend(sum([self.dmaA(x) for x in range(o.pre, 5)], []))
                elif s + 4 < 10:
                    dq.extend(self.dmaA(s + 4))
                else:
                    dq.extend(self.dmaB(2 * (s - 6)) + self.dmaB(2 * (s - 6) + 1))
            if s == 5:
                g.wait(vm="b1")
                for n in range(4):
                    for hf in range(2):
                        g(f"v_lshlrev_b32 {vr(self.BIAS + 4 * n + 2 * hf)}, 16, {vr(24 + 2 * n + hf)}")
                        g(f"v_and_b32 {vr(self.BIAS + 4 * n + 2 * hf + 1)}, 0xffff0000, {vr(24 + 2 * n + hf)}")
            if o.fine == "A" and 1 <= s <= 7:
                self.stamp(8 + s)
            pending = self.stage("A", s, swap, base, nxt, pending, dq, at_barrier)
        for f in dq + pending:
            f()
        return base

    def epilogueA(self):
        g = self.g
        L = self.lab("noq")
        g(f"s_cmp_ge_u32 {sr(sCS)}, 5\ns_cbranch_scc1 {L}")
        g(f"s_mov_b32 {sr(sT0)}, {f32hex(QSCALE)}")
        for r in range(32):
            g(f"v_mul_f32 {vr(self.ACC + r)}, {sr(sT0)}, {vr(self.ACC + r)}")
        g.label(L)
        for n in range(4):
            a = self.ACC + 8 * n
            for q in range(4):
                g(f"v_cvt_pk_bf16_f32 {vr(a + q)}, {vr(a + 2 * q)}, {vr(a + 2 * q + 1)}")
            g.vmem(f"buffer_store_dwordx4 {vr(a, 4)}, {vr(self.vST[n])}, {sr(SWS, 4)}, 0 offen sc1", "stA")

    def clean_load(self):
        g = self.g
        g("v_and_b32 v2, 15, v0\nv_lshlrev_b32 v2, 2, v2")
        g.vmem(f"buffer_load_dword v3, v2, {sr(SDBG, 4)}, 0 offen sc1", "clean")

    def phase1(self):
        g, o = self.g, self.o
        self.p1_setup()
        g.wait(vm=("A", 0))
        g("s_barrier")
        self.stamp(1)
        g(f"s_cmp_ge_u32 {sr(sCS)}, 10\ns_cbranch_scc1 LpassA_v")
        st = g.state()
        self.passA(False)
        g("s_branch LepiA")
        g.restore(st)
        g.label("LpassA_v")
        base = self.passA(True)
        g.label("LepiA")
        self.stamp(2)
        self.clean_load()
        g(f"s_cmp_eq_u32 {sr(sCS)}, 14\ns_cbranch_scc1 LnoB0")
        if o.late89 == 0:
            g("s_barrier")
            for f in self.dmaB(8) + self.dmaB(9):
                f()
            g("s_barrier")
        self.epilogueA()
        F = o.flag_stage
        bars = {int(x.split(":")[0]): int(x.split(":")[1]) for x in o.bbars.split(",")}
        pending, dq = [], []
        for s in range(10):
            nxt = ("B", s + 1) if s < 9 else None

            def at_barrier():
                if s + 1 in bars or s + 1 == F:
                    tags = [("B", bars.get(s + 1, s + 1))]
                    if s + 1 == F:
                        tags += ["stA", "clean"]
                    g.wait(vm=tags)
                    if s + 1 == F:
                        self.check_clean()
                    g("s_barrier")
                if s + 1 == F:
                    self.flagQ()
                    if o.late89:
                        dq.extend(self.dmaB(8) + self.dmaB(9))
            if o.fine == "B" and s in (0, 1, 3, 5, 6, 7, 8):
                self.stamp(9 + (0, 1, 3, 5, 6, 7, 8).index(s))
            pending = self.stage("B", s, False, base, nxt, pending, dq, at_barrier)
        self.stamp(3)
        g("s_nop 7")
        for r in range(32):
            g(f"v_max_f32 {vr(self.ACC + r)}, 0, {vr(self.ACC + r)}")
        for r in range(32):
            g(f"v_mul_f32 {vr(self.ACC + r)}, {vr(self.ACC + r)}, {vr(self.ACC + r)}")
        for b in range(4):
            a = self.ACC + 8 * b
            for q in range(4):
                g(f"v_cvt_pk_bf16_f32 {vr(16 + 4 * b + q)}, {vr(a + 2 * q)}, {vr(a + 2 * q + 1)}")
        g(f"""
        s_lshl_b32 {sr(sT0)}, {sr(sRB)}, 3
        s_lshl_b32 {sr(sT1)}, {sr(sTT)}, 1
        s_add_u32 {sr(sT0)}, {sr(sT0)}, {sr(sT1)}
        s_mul_i32 {sr(sT0)}, {sr(sT0)}, 54
        s_lshl_b32 {sr(sT1)}, {sr(sCS)}, 2
        s_lshl_b32 {sr(sT2)}, {sr(sCH)}, 1
        s_add_u32 {sr(sT1)}, {sr(sT1)}, {sr(sT2)}
        s_add_u32 {sr(sT0)}, {sr(sT0)}, {sr(sT1)}
        s_lshl_b32 {sr(sT0)}, {sr(sT0)}, 10
        s_add_u32 {sr(sT0)}, {sr(sT0)}, {HOFF}
        s_cmp_ge_u32 {sr(sT1)}, 54
        s_cselect_b32 {sr(sHS)}, {OOB}, {sr(sT0)}
        s_branch Lphase2
        """)
        g.label("LnoB0")
        g("s_waitcnt vmcnt(0) lgkmcnt(0)\ns_barrier")
        g(f"v_lshlrev_b32 v4, 4, v0\ns_lshl_b32 {sr(sT1)}, {sr(sM0)}, 1")
        self.dma(SGW, 4, 0, 0, "gw", m0base=sT1)
        self.dma(SGW, 4, 1024, 1024, "gw", m0base=sT1)
        self.epilogueA()
        g(f"v_lshrrev_b32 v5, 4, v0\nv_lshlrev_b32 v5, 4, v5\nv_add_u32 v5, {sr(sT1)}, v5")
        g("s_waitcnt vmcnt(0)")
        self.check_clean()
        g("s_barrier")
        self.flagQ()
        for half in range(2):
            for k in range(10):
                g(f"ds_read_b128 {vr(16 + 4 * k, 4)}, v5 offset:{64 * (10 * half + k)}")
            g("s_waitcnt lgkmcnt(0)")
            for k in range(10):
                kk = 10 * half + k
                for t in range(2):
                    g(f"v_mfma_f32_16x16x32_bf16 {vr(64 + 4 * t, 4)}, {vr(16 + 4 * k, 4)}, {vr(self.xreg(kk >> 1, kk & 1, t), 4)}, {'0' if kk == 0 else vr(64 + 4 * t, 4)}")
        g(f"""
        s_nop 7
        v_cmp_gt_u32 vcc, 16, v0
        v_lshlrev_b32 v4, 2, v0
        s_lshl_b32 {sr(sT0)}, {sr(sRB)}, 9
        v_cndmask_b32 v64, v68, v64, vcc
        v_mul_f32 v64, {f32hex(-math.log2(math.e))}, v64
        v_exp_f32 v64, v64
        s_lshl_b32 {sr(sT1)}, {sr(sTT)}, 7
        v_add_f32 v64, 1.0, v64
        v_rcp_f32 v64, v64
        s_add_u32 {sr(sT0)}, {sr(sT0)}, {sr(sT1)}
        s_add_u32 {sr(sT0)}, {sr(sT0)}, {GOFF}
        s_cmp_lg_u32 {sr(sCH)}, 0
        s_cselect_b32 {sr(sT0)}, {OOB}, {sr(sT0)}
        s_mov_b32 exec_hi, 0
        buffer_store_dword v64, v4, {sr(SWS, 4)}, {sr(sT0)} offen sc1
        s_mov_b32 exec_hi, -1
        """)
        g.label("LnoB")
        g(f"s_barrier\ns_mov_b32 {sr(sHS)}, {OOB}\ns_branch Lphase2")

    def check_clean(self):
        g = self.g
        L = self.lab("clean")
        g(f"v_cmp_ne_u32 vcc, 1, v3\ns_cbranch_vccz {L}")
        st = g.state()
        self.poll(2, 3, SDBG)
        g.restore(st)
        g.label(L)

    def flagQ(self, off=FQ, wave=0):
        g = self.g
        L = self.lab("nofq")
        g(f"s_mov_b32 {sr(sT2)}, {off}\ns_cmp_lg_u32 {sr(sW)}, {wave}\ns_cselect_b32 {sr(sT2)}, {OOB}, {sr(sT2)}")
        self.set_flag(f"""
        s_lshl_b32 {sr(sT1)}, {sr(sCS)}, 4
        s_add_u32 {sr(sT1)}, {sr(sT1)}, {sr(sRB)}
        s_lshl_b32 {sr(sT1)}, {sr(sT1)}, 7
        s_add_u32 {sr(sT1)}, {sr(sT1)}, {sr(sT2)}""", 2, 3)

    def const_init(self, part):
        g = self.g
        g(f"""
        v_and_b32 v14, 31, v0
        v_lshrrev_b32 v15, 5, v0
        s_lshl_b32 {sr(sT0)}, {sr(sW)}, 1
        v_add_u32 v15, {sr(sT0)}, v15
        v_mul_u32_u24 v15, {REC}, v15
        v_lshl_add_u32 v13, v14, 4, v15
        v_and_b32 v15, 23, v14
        v_cmp_eq_u32 vcc, 16, v15
        v_mov_b32 v15, 0x3f803f80
        v_mov_b32 v1, 0x3f80
        v_cndmask_b32 v5, 0, v15, vcc
        v_cmp_eq_u32 vcc, 20, v14
        v_mov_b32 v14, v5
        v_mov_b32 v15, v5
        v_cndmask_b32 v4, v5, v1, vcc
        """)
        if part == 0:
            for r0 in (0, 4):
                g.lds(f"ds_write_b64 v13, v[4:5] offset:{2560 + r0 * REC}", "cw")
                g.lds(f"ds_write_b64 v13, v[14:15] offset:{2568 + r0 * REC}", "cw")
        else:
            for k in range(4):
                g(f"v_add_u32 v13, {(12 if k == 0 else 8 if k < 3 else 4) * REC}, v13")
                g.lds(f"ds_write_b64 v13, v[4:5] offset:2560", "cw")
                g.lds(f"ds_write_b64 v13, v[14:15] offset:2568", "cw")

    def gate(self):
        g = self.g
        g.label("Lgate")
        L = self.lab("noclr")
        g(f"""
        s_mul_i32 {sr(sT0)}, {sr(sRB)}, {96 * 128}
        s_mul_i32 {sr(sT1)}, {sr(sW)}, {12 * 128}
        s_add_u32 {sr(sT0)}, {sr(sT0)}, {sr(sT1)}
        v_lshlrev_b32 v2, 7, v0
        v_mov_b32 v3, 0
        s_mov_b64 exec, 0xfff
        buffer_store_dword v3, v2, {sr(SWS, 4)}, {sr(sT0)} offen sc1
        s_mov_b64 exec, -1
        """)
        self.pack()
        self.stamp(3)
        self.clean_load()
        g("s_waitcnt vmcnt(0) lgkmcnt(0)")
        self.check_clean()
        g("s_branch LnoB")

    def pack(self):
        g = self.g
        g.vm, g.lg, g.vm_done, g.lg_done = [], [], 0, 0
        sRing, sSrc, sDst = sA, sA + 1, sA + 2
        AD = {"w2": 32, "main": 40, "rem": 48}
        g(f"s_mul_i32 {sr(sRing)}, {sr(sW)}, 20480\ns_mul_i32 {sr(sT2)}, {sr(sW)}, 160")
        for q in range(5):
            g(f"""
            v_add_u32 v2, {64 * q}, v0
            v_mul_u32_u24 v3, 6554, v2
            v_lshrrev_b32 v3, 16, v3
            v_mul_u32_u24 v4, 10, v3
            v_sub_u32 v2, v2, v4
            v_lshlrev_b32 v2, 4, v2
            v_add_u32 v2, {sr(sT2)}, v2
            v_mul_u32_u24 v4, 1280, v3
            v_add_u32 {vr(AD['w2'] + q)}, v4, v2
            v_lshrrev_b32 v5, 4, v3
            v_and_b32 v6, 7, v3
            v_bfe_u32 v7, v3, 3, 1
            v_mul_u32_u24 v7, 20, v7
            v_lshl_add_u32 v7, v5, 3, v7
            v_add_u32 v7, v7, v6
            v_mul_u32_u24 v7, 1280, v7
            v_add_u32 {vr(AD['main'] + q)}, v7, v2
            v_bfe_u32 v7, v3, 2, 2
            v_lshl_add_u32 v7, v7, 1, v5
            v_mul_u32_u24 v7, 20, v7
            v_and_b32 v6, 3, v3
            v_add3_u32 v7, v7, v6, 16
            v_mul_u32_u24 v7, 1280, v7
            v_add_u32 {vr(AD['rem'] + q)}, v7, v2
            """)
        g(f"""
        v_lshrrev_b32 v2, 2, v0
        v_mul_u32_u24 v2, 160, v2
        v_and_b32 v3, 3, v0
        v_lshl_add_u32 v2, v3, 3, v2
        v_add_u32 v8, {sr(sRing)}, v2
        v_lshlrev_b32 v9, 4, v0
        s_mul_i32 {sr(sT2)}, {sr(sW)}, 5120
        s_add_u32 {sr(sT2)}, {sr(sT2)}, {WPOFF}
        v_add_u32 v9, {sr(sT2)}, v9
        v_add_u32 v10, 4096, v9
        """)

        def load(rnd, srd, kind):
            for q in range(5):
                self.dma(srd, AD[kind] + q, 0, (rnd % 4) * 5120 + q * 1024, ("p", rnd), m0base=sRing, sbase=sSrc)

        def emit(rnd):
            g.wait(vm=("p", rnd))
            d = 96 + 20 * rnd
            for n in range(5):
                for u in range(2):
                    g.lds(f"ds_read_b64_tr_b16 {vr(d + 4 * n + 2 * u, 2)}, v8 offset:{(rnd % 4) * 5120 + u * 2560 + n * 32}", ("pr", rnd))

        def store(rnd):
            g.wait(lg=("pr", rnd))
            d = 96 + 20 * rnd
            for n in range(5):
                g.vmem(f"buffer_store_dwordx4 {vr(d + 4 * n, 4)}, {'v9' if n < 4 else 'v10'}, {sr(SWS, 4)}, {sr(sDst + rnd)} offen offset:{(n % 4) * 1024} sc1", "ps")

        for rnd in range(3):
            g(f"s_add_u32 {sr(sT1)}, {sr(sRB)}, {16 * rnd}\ns_mul_i32 {sr(sSrc)}, {sr(sT1)}, 40960\ns_mov_b32 {sr(sDst + rnd)}, {sr(sSrc)}")
            load(rnd, SW2, "w2")
        g(f"""
        s_mul_i32 {sr(sSrc)}, {sr(sRB)}, {40 * 1280}
        s_lshr_b32 {sr(sT1)}, {sr(sRB)}, 2
        s_add_u32 {sr(sT1)}, {sr(sT1)}, {sr(sRB)}
        s_add_u32 {sr(sT1)}, {sr(sT1)}, 54
        s_mul_i32 {sr(sDst + 3)}, {sr(sT1)}, 40960
        """)
        load(3, SWO, "main")
        emit(0)
        g("s_barrier")
        self.stamp(1)
        g(f"""
        s_lshl_b32 {sr(sT1)}, {sr(sRB)}, 2
        s_cmp_lg_u32 {sr(sW)}, 0
        s_cselect_b32 {sr(sT1)}, {OOB}, {sr(sT1)}
        v_mov_b32 v2, 0
        v_mov_b32 v3, 1
        s_mov_b64 exec, 1
        """)
        g.vmem(f"buffer_store_dword v3, v2, {sr(SDBG, 4)}, {sr(sT1)} offen sc1", "cl")
        g("s_mov_b64 exec, -1")
        g.wait(lg="all")
        LR, LJ = self.lab("prem"), self.lab("pjoin")
        g(f"s_cmp_ge_u32 {sr(sRB)}, 6\ns_cbranch_scc1 {LR}")
        g(f"s_add_u32 {sr(sT1)}, {sr(sRB)}, 48\ns_mul_i32 {sr(sSrc)}, {sr(sT1)}, 40960\ns_mov_b32 {sr(sDst + 4)}, {sr(sSrc)}")
        st = g.state()
        load(4, SW2, "w2")
        g(f"s_branch {LJ}")
        g.restore(st)
        g.label(LR)
        g(f"""
        s_sub_u32 {sr(sT1)}, {sr(sRB)}, 6
        s_mul_i32 {sr(sSrc)}, {sr(sT1)}, {160 * 1280}
        s_mul_i32 {sr(sT1)}, {sr(sT1)}, 5
        s_add_u32 {sr(sT1)}, {sr(sT1)}, 58
        s_mul_i32 {sr(sDst + 4)}, {sr(sT1)}, 40960
        s_cmp_ge_u32 {sr(sRB)}, 10
        s_cselect_b32 {sr(sDst + 4)}, {OOB}, {sr(sDst + 4)}
        """)
        load(4, SWO, "rem")
        g.label(LJ)
        for rnd in range(1, 5):
            emit(rnd)
        self.stamp(2)
        for rnd in range(5):
            store(rnd)

    def h_stores(self, vl16):
        g = self.g
        for b in range(4):
            s2, t = b >> 1, b & 1
            g(f"s_add_u32 {sr(sT0)}, {sr(sHS)}, {(t * 54 + s2) * 1024}")
            g.vmem(f"buffer_store_dwordx4 {vr(16 + 4 * b, 4)}, {vr(vl16)}, {sr(SWS, 4)}, {sr(sT0)} offen sc1", "stH")

    def build(self):
        g = self.g
        self.prologue()
        self.phase1()
        self.gate()
        g.label("Lphase2")
        g.vm, g.lg, g.vm_done, g.lg_done = [], [], 0, 0
        from gen2 import phase2
        phase2(self)
        g.label("Lend")
        g("s_endpgm")
        g.label("Lcode_end")
        bad = hazard_check(g.lines)
        for b in bad:
            print("HAZARD", b, file=sys.stderr)
        head = open("gated_mix__mha_block__dense_activation_squared_relu__prompt.s.ref").read().split("; Override launch")[0]
        txt = head + f"; @launch grid=(256,1,1) block=(512,1,1) lds={LDS_BYTES}\n"
        txt += f""".amdgcn_target "amdgcn-amd-amdhsa--gfx950"
.text
.globl {NAME}
.p2align 8
.type {NAME},@function
{NAME}:
"""
        body = g.text().replace("CODE_BYTES", str(self.o.code_bytes))
        txt += body
        txt += f""".section .rodata,"a"
.p2align 6
.amdhsa_kernel {NAME}
  .amdhsa_next_free_vgpr 256
  .amdhsa_next_free_sgpr 102
  .amdhsa_accum_offset 256
  .amdhsa_group_segment_fixed_size 0
  .amdhsa_kernarg_size 96
  .amdhsa_user_sgpr_count 2
  .amdhsa_user_sgpr_kernarg_segment_ptr 1
  .amdhsa_system_sgpr_workgroup_id_x 1
.end_amdhsa_kernel
"""
        return txt, bad


def options(argv=None):
    p = argparse.ArgumentParser()
    p.add_argument("-o", default="gated_mix__mha_block__dense_activation_squared_relu__prompt.s")
    p.add_argument("--stamps", type=int, default=0)
    p.add_argument("--code_prefetch", type=int, default=1)
    p.add_argument("--pre", type=int, default=3)
    p.add_argument("--flag_stage", type=int, default=6)
    p.add_argument("--dma_pos", type=int, default=3)
    p.add_argument("--late89", type=int, default=0)
    p.add_argument("--bbars", default="1:2,3:7,8:9")
    p.add_argument("--steps", default="0,9,5")
    p.add_argument("--force_fallback", type=int, default=0)
    p.add_argument("--split", default="4,4,4,4")
    p.add_argument("--early_h", type=int, default=0)
    p.add_argument("--osleep", type=int, default=1)
    p.add_argument("--diag", default="")
    p.add_argument("--diag_role", default="gemm")
    p.add_argument("--tlb", type=int, default=0)
    p.add_argument("--fine", default="att")
    p.add_argument("--prio", type=int, default=1)
    o = p.parse_args(argv)
    o.code_bytes = 0
    return o


def code_size(txt):
    import subprocess, tempfile, os, re
    d = tempfile.mkdtemp()
    open(d + "/k.s", "w").write(txt)
    r = subprocess.run(["clang", "-x", "assembler", "-target", "amdgcn-amd-amdhsa", "-mcpu=gfx950", "-c", d + "/k.s", "-o", d + "/k.o"],
                       capture_output=True, text=True)
    if r.returncode:
        print(r.stderr[:3000]); raise SystemExit(1)
    r = subprocess.run(["llvm-readelf", "-S", d + "/k.o"], capture_output=True, text=True)
    m = re.search(r"\.text\s+PROGBITS\s+\S+\s+\S+\s+(\S+)", r.stdout)
    return int(m.group(1), 16)


if __name__ == "__main__":
    o = options()
    o.code_bytes = 4096
    txt, _ = Gen(o).build()
    sz = code_size(txt)
    o.code_bytes = (sz - 512) & ~3
    txt, bad = Gen(o).build()
    open(o.o, "w").write(txt)
    print(f"wrote {o.o}: code {sz} bytes, {len(txt)} chars, hazards {len(bad)}")
```

```python
from asmlib import *
from gen import *

SB = (64, 80, 96, 112)
OA = (128, 144)
QM = (32, 36)
QR = (40, 42)
KM = (44, 48)
KR = (52, 56)
VF = (160, 168)
vIDX, vKm, vKr, vV0, vV1, vG, vL16 = 60, 61, 62, 63, 12, 10, 9


BARS = (8, 16, 32, 48)


def rec(t):
    return (t % NREC) * REC


def s_mfmas(n, dst=None):
    qt, t = n & 1, n >> 1
    d = SB[n % 4] if dst is None else dst
    kr = KR[(t >> 1) & 1] + 2 * (t & 1)
    return [f"v_mfma_f32_32x32x8_bf16 {vr(d, 16)}, {vr(kr, 2)}, {vr(QR[qt], 2)}, 0",
            f"v_mfma_f32_32x32x16_bf16 {vr(d, 16)}, {vr(KM[t & 1], 4)}, {vr(QM[qt], 4)}, {vr(d, 16)}"]


def pv_mfmas(n):
    qt, t = n & 1, n >> 1
    p, v = SB[n % 4], VF[t & 1]
    return [f"v_smfmac_f32_32x32x32_bf16 {vr(OA[qt], 16)}, {vr(v + 4 * u, 4)}, {vr(p + 8 * u, 8)}, {vr(vIDX)}" for u in range(2)]


def koff_code(g, dst, t0, t1):
    g(f"""
    v_bfe_u32 {vr(t0)}, v0, 3, 2
    v_and_b32 {vr(t1)}, 3, v0
    v_lshl_add_u32 {vr(t0)}, {vr(t0)}, 2, {vr(t1)}
    v_bfe_u32 {vr(t1)}, v0, 2, 1
    v_lshlrev_b32 {vr(t1)}, 3, {vr(t1)}
    v_lshl_add_u32 {vr(dst)}, {vr(t0)}, 4, {vr(t1)}
    """)


def row_max(g, src, dst, tmp):
    g(f"v_max3_f32 {vr(dst)}, {vr(src)}, {vr(src + 1)}, {vr(src + 2)}")
    for r in range(3, 15, 2):
        g(f"v_max3_f32 {vr(dst)}, {vr(dst)}, {vr(src + r)}, {vr(src + r + 1)}")
    g(f"v_max_f32 {vr(dst)}, {vr(dst)}, {vr(src + 15)}")


def both_halves(g, a, b):
    g(f"v_mov_b32 {vr(b)}, {vr(a)}\ns_nop 1\nv_permlane32_swap_b32 {vr(a)}, {vr(b)}")


def kv_setup(G, sKV, sPair, sRec, first, vtmp, vdst):
    G.g(f"""
    s_mul_i32 {sr(sT0)}, {sr(sH)}, 20
    s_add_u32 {sr(sT1)}, {sr(sT0)}, 19
    s_lshr_b32 {sr(sT0)}, {sr(sT0)}, 6
    s_lshr_b32 {sr(sT1)}, {sr(sT1)}, 6
    s_sub_u32 {sr(sT1)}, {sr(sT1)}, {sr(sT0)}
    s_lshl_b32 {sr(sPair)}, {sr(sJ)}, 2
    s_add_u32 {sr(sPair)}, {sr(sPair)}, {sr(sTT)}
    s_add_u32 {sr(sPair)}, {sr(sPair)}, {first}
    s_and_b32 {sr(sPair)}, {sr(sPair)}, 31
    s_mul_i32 {sr(sKV)}, {sr(sH)}, {64 * 2560}
    s_add_u32 {sr(sKV)}, {sr(sKV)}, {KVOFF}
    s_mul_i32 {sr(sRec)}, {sr(sTT)}, {2 * REC}
    v_and_b32 {vr(vdst)}, 1, v0
    v_mul_u32_u24 {vr(vdst)}, {sr(sT1)}, {vr(vdst)}
    v_add_u32 {vr(vdst + 1)}, {sr(sT0)}, {vr(vdst)}
    v_bfe_u32 {vr(vtmp)}, v0, 1, 1
    v_mul_u32_u24 {vr(vtmp)}, 10, {vr(vtmp)}
    v_add3_u32 {vr(vdst)}, {vr(vdst + 1)}, {vr(vtmp)}, 10
    """)


def kv_load(G, vl, sKV, sPair, sRec, groups, tag):
    g = G.g
    for grp in groups:
        g(f"s_mul_i32 {sr(sT1)}, {sr(sPair)}, 5120\ns_add_u32 {sr(sT1)}, {sr(sT1)}, {sr(sKV)}")
        for tau in range(2):
            for q in range(2):
                G.dma(SWS, vl, tau * 2560 + q * 1024, rec(8 * grp + tau) + q * 1024, tag, m0base=sRec, sbase=sT1, flags="sc1")
        g("s_mov_b32 exec_hi, 0")
        for tau in range(2):
            G.dma(SWS, vl, tau * 2560 + 2048, rec(8 * grp + tau) + 2048, tag, m0base=sRec, sbase=sT1, flags="sc1")
        g(f"s_mov_b32 exec_hi, -1\ns_add_u32 {sr(sPair)}, {sr(sPair)}, 4\ns_and_b32 {sr(sPair)}, {sr(sPair)}, 31")


def attention(G):
    g, o = G.g, G.o
    split = [int(x) for x in o.split.split(",")]
    sQ, sKV, sPair, sRec = sA, sA + 2, sA + 3, sA + 4
    g.label("Lattn")
    kv_setup(G, sKV, sPair, sRec, 0, 3, 16)
    g(f"""
    v_bfe_u32 v3, v0, 2, 1
    v_lshlrev_b32 v3, 2, v3
    v_cmp_gt_u32 vcc, 8, v0
    v_lshlrev_b32 {vr(vL16)}, 4, v0
    v_lshrrev_b32 v4, 5, v0
    v_cndmask_b32 v2, v17, v16, vcc
    v_cndmask_b32 v3, 0, v3, vcc
    v_add_u32 v3, {sr(sPair)}, v3
    v_and_b32 v3, 31, v3
    v_lshl_add_u32 v2, v2, 5, v3
    v_lshlrev_b32 v18, 7, v2
    v_and_b32 v5, 15, v0
    v_bfe_u32 v6, v0, 4, 1
    v_lshlrev_b32 v7, 4, v5
    v_lshl_add_u32 v7, v6, 3, v7
    v_lshl_add_u32 v19, v4, 8, v7
    s_lshl_b32 {sr(sT0)}, {sr(sH)}, 6
    s_lshl_b32 {sr(sT1)}, {sr(sJ)}, 3
    s_lshl_b32 {sr(sT2)}, {sr(sW)}, 1
    s_add_u32 {sr(sT1)}, {sr(sT1)}, {sr(sT2)}
    s_add_u32 {sr(sT0)}, {sr(sT0)}, {sr(sT1)}
    s_mul_i32 {sr(sQ)}, {sr(sT0)}, 1280
    s_add_u32 {sr(sQ)}, {sr(sQ)}, {QOFF}
    s_lshl_b32 {sr(sA + 1)}, {sr(sT1)}, 7
    s_add_u32 {sr(sA + 1)}, {sr(sA + 1)}, {GOFF}
    """)
    G.const_init(0)
    g("v_and_b32 v13, 31, v0\nv_lshlrev_b32 v8, 2, v13\nv_lshrrev_b32 v4, 5, v0")
    koff_code(g, 2, 3, 15)
    g(f"""
    v_lshl_add_u32 {vr(vKm)}, v4, 8, v2
    v_cmp_gt_u32 vcc, 32, v0
    v_add_u32 v2, 1024, v2
    v_mov_b32 v3, {2560 + 256 + 64}
    v_cndmask_b32 {vr(vKr)}, v3, v2, vcc
    v_mov_b32 {vr(vIDX)}, 0xdddddddd
    """)
    for u, dst in enumerate((vV0, vV1)):
        g(f"""
        v_add_u32 v2, {2 * u}, v4
        v_mul_u32_u24 v3, 320, v2
        v_lshl_add_u32 v3, v13, 4, v3
        v_add_u32 v3, 1280, v3
        v_lshlrev_b32 v2, 2, v2
        v_add_u32 v2, 12, v2
        v_and_b32 v2, 15, v2
        v_lshlrev_b32 v2, 4, v2
        v_add_u32 v2, 2560, v2
        v_cmp_gt_u32 vcc, 28, v13
        v_mov_b32 v15, {2560 + (9 if u == 0 else 1) * 16}
        v_mov_b32 v1, {2560 + 256 + (8 if u == 0 else 0) * 16}
        v_cndmask_b32 v2, v2, v15, vcc
        v_cmp_eq_u32 vcc, 20, v13
        s_nop 1
        v_cndmask_b32 v2, v2, v1, vcc
        v_cmp_gt_u32 vcc, 20, v13
        s_nop 1
        v_cndmask_b32 {vr(dst)}, v2, v3, vcc
        """)
    for r in range(32):
        g(f"v_mov_b32 {vr(OA[0] + r)}, 0")
    G.poll(18, 3, sleep=o.qsleep)
    G.stamp(4)
    for qt in range(2):
        for u in range(2):
            g.vmem(f"buffer_load_dwordx2 {vr(QM[qt] + 2 * u, 2)}, v19, {sr(SWS, 4)}, {sr(sQ)} offen offset:{qt * 1280 + u * 512} sc1", "q")
        g.vmem(f"buffer_load_dwordx2 {vr(QR[qt], 2)}, v7, {sr(SWS, 4)}, {sr(sQ)} offen offset:{qt * 1280 + 1024} sc1", "q")
    kv_load(G, vL16, sKV, sPair, sRec, [0], "kv0")
    kv_load(G, vL16, sKV, sPair, sRec, [1], "kv1")
    g.wait(vm="kv0")
    g("s_mov_b32 exec_lo, 0")
    for r in range(4):
        g(f"v_mov_b32 {vr(QR[0] + r)}, 0")
    g("s_mov_b32 exec_lo, -1")
    g("s_waitcnt lgkmcnt(0)\ns_barrier")
    G.stamp(5)
    if o.prio:
        g(f"s_setprio {o.prio}")

    base = {vKm: 0, vKr: 0, vV0: 0, vV1: 0}

    def rebase(reg, off, span, lim):
        if not (0 <= off - base[reg] and off + span - base[reg] <= lim):
            g(f"v_add_u32 {vr(reg)}, {(off - base[reg]) & 0xFFFFFFFF}, {vr(reg)}")
            base[reg] = off
        return off - base[reg]

    def rdKm(t):
        b = rebase(vKm, rec(t), 512, 255 * 512) // 512
        g.lds(f"ds_read2st64_b64 {vr(KM[t & 1], 4)}, {vr(vKm)} offset0:{b} offset1:{b + 1}", ("km", t))

    def rdKr(t):
        b = rebase(vKr, rec(t), REC, 255 * 512) // 512
        g.lds(f"ds_read2st64_b64 {vr(KR[(t >> 1) & 1], 4)}, {vr(vKr)} offset0:{b} offset1:{b + 6}", ("kr", t))

    def rdV(t, u):
        r = (vV0, vV1)[u]
        g.lds(f"ds_read_b128 {vr(VF[t & 1] + 4 * u, 4)}, {vr(r)} offset:{rebase(r, rec(t), 0, 65535)}", ("v", t))

    rdKr(0); rdKm(0); rdKm(1)
    g.wait(lg=("km", 0))
    a0, a1 = s_mfmas(0), s_mfmas(1)
    g(a0[0]); g(a1[0]); g(a0[1]); g(a1[1])
    g("s_nop 10")
    for qt in range(2):
        row_max(g, SB[qt], 2 + 2 * qt, None)
    for qt in range(2):
        both_halves(g, 2 + 2 * qt, 3 + 2 * qt)
    for qt in range(2):
        g(f"v_max_f32 {vr(2 + 2 * qt)}, {vr(2 + 2 * qt)}, {vr(3 + 2 * qt)}")
    g("s_mov_b32 exec_lo, 0")
    for qt in range(2):
        g(f"v_cvt_pk_bf16_f32 {vr(QR[qt])}, -{vr(2 + 2 * qt)}, 0")
    g("s_mov_b32 exec_lo, -1\ns_nop 0")
    g(a0[0]); g(a0[1])
    g("s_nop 11")
    for n in range(128):
        qt, t = n & 1, n >> 1
        cur = SB[n % 4]
        m = (s_mfmas(n + 1) if n < 127 else [None, None]) + (pv_mfmas(n - 1) if n > 0 else [None, None])
        ex = [[], [], [], []]
        if qt == 0:
            ex[1].append(lambda: rdV(t, 0))
            ex[2].append(lambda: rdV(t, 1))
            if t + 1 < 64:
                ex[3].append(lambda: g.wait(lg=[("km", t + 1), ("kr", (t + 1) & ~1)]))
        else:
            ex[1].append(lambda: g.wait(lg=("v", t)))
            if t + 2 < 64:
                if t + 2 in BARS:
                    def bar():
                        if t + 2 == 8:
                            g.wait(vm="all")
                        g("s_barrier")
                        if t + 2 == 48:
                            for q2 in range(2):
                                g.vmem(f"buffer_load_dword {vr(vG + q2)}, v8, {sr(SWS, 4)}, {sr(sA + 1)} offen offset:{q2 * 128} sc1", "g")
                    ex[1].append(bar)
                if (t + 2) % 8 == 0 and o.fine == "att":
                    ex[1].append(lambda: G.stamp(8 + (t + 2) // 8))
                ex[1].append(lambda: rdKm(t + 2))
                if t % 2 == 0:
                    ex[2].append(lambda: rdKr(t + 2))
        e = 0
        for i in range(4):
            if m[i]:
                g(m[i])
            for f in ex[i]:
                f()
            for _ in range(split[i]):
                g(f"v_exp_f32 {vr(cur + e)}, {vr(cur + e)}"); e += 1
    m = pv_mfmas(127)
    g(m[0]); g("s_nop 0"); g(m[1])
    g("s_setprio 0")
    g.wait(vm="g")
    G.stamp(6)
    g(f"""
    v_and_b32 v5, 15, v0
    v_bfe_u32 v6, v0, 4, 1
    v_lshrrev_b32 v4, 5, v0
    v_mul_u32_u24 v6, 20480, v6
    v_lshl_add_u32 v7, v5, 4, v6
    v_lshl_add_u32 v6, v4, 8, v7
    s_lshr_b32 {sr(sT0)}, {sr(sH)}, 1
    s_and_b32 {sr(sT0)}, {sr(sT0)}, 3
    s_and_b32 {sr(sT1)}, {sr(sH)}, 1
    s_lshl_b32 {sr(sT3)}, {sr(sT0)}, 10
    s_lshl_b32 {sr(sT4)}, {sr(sT1)}, 9
    s_add_u32 {sr(sT3)}, {sr(sT3)}, {sr(sT4)}
    v_add_u32 v6, {sr(sT3)}, v6
    s_lshl_b32 {sr(sT3)}, {sr(sT0)}, 8
    s_lshl_b32 {sr(sT4)}, {sr(sT1)}, 3
    s_add_u32 {sr(sT3)}, {sr(sT3)}, {sr(sT4)}
    s_add_u32 {sr(sT3)}, {sr(sT3)}, 4096
    v_add_u32 v7, {sr(sT3)}, v7
    s_lshl_b32 {sr(sT2)}, {sr(sJ)}, 2
    s_add_u32 {sr(sT2)}, {sr(sT2)}, {sr(sW)}
    s_mul_i32 {sr(sT3)}, {sr(sT2)}, {4 * 20480}
    s_lshr_b32 {sr(sT4)}, {sr(sH)}, 3
    s_mul_i32 {sr(sT4)}, {sr(sT4)}, 5120
    s_add_u32 {sr(sT3)}, {sr(sT3)}, {sr(sT4)}
    s_add_u32 {sr(sT3)}, {sr(sT3)}, {OOFF}
    s_add_u32 {sr(sT4)}, {sr(sT3)}, {2 * 20480}
    """)
    g("v_mov_b32 v8, 0")
    for qt in range(2):
        g(f"v_mov_b32 {vr(16 + 2 * qt)}, {vr(OA[qt] + 8)}")
        both_halves(g, 16 + 2 * qt, 17 + 2 * qt)
        for r in range(12):
            g(f"v_fma_f32 v8, {vr(OA[qt] + r)}, 0, v8")
    g(f"""
    v_min_f32 v2, v17, v19
    v_max_f32 v3, v17, v19
    v_add_f32 v2, v2, v8
    v_cmp_nle_f32 vcc, {f32hex(2.0 ** -30)}, v2
    s_mov_b64 {sr(sA + 2, 2)}, vcc
    v_cmp_nge_f32 vcc, {f32hex(2.0 ** 60)}, v3
    s_or_b64 vcc, vcc, {sr(sA + 2, 2)}
    """)
    g("s_branch Lfallback" if o.force_fallback else "s_cbranch_vccnz Lfallback")
    g.label("Lnorm")
    for qt in range(2):
        g(f"v_rcp_f32 {vr(16 + 2 * qt)}, {vr(17 + 2 * qt)}")
    g("s_nop 0")
    for qt in range(2):
        g(f"v_mul_f32 {vr(16 + 2 * qt)}, {vr(16 + 2 * qt)}, {vr(vG + qt)}")
    for qt in range(2):
        a = OA[qt]
        for r in range(12):
            g(f"v_mul_f32 {vr(a + r)}, {vr(a + r)}, {vr(16 + 2 * qt)}")
        for q in range(6):
            g(f"v_cvt_pk_bf16_f32 {vr(a + q)}, {vr(a + 2 * q)}, {vr(a + 2 * q + 1)}")
        g(f"buffer_store_dwordx4 {vr(a, 4)}, v6, {sr(SWS, 4)}, {sr((sT3, sT4)[qt])} offen sc1")
    g("s_mov_b32 exec_hi, 0")
    for qt in range(2):
        g(f"buffer_store_dwordx2 {vr(OA[qt] + 4, 2)}, v7, {sr(SWS, 4)}, {sr((sT3, sT4)[qt])} offen sc1")
    g("s_mov_b32 exec_hi, -1")
    g("s_waitcnt vmcnt(0)")
    G.set_flag(f"""
    s_lshl_b32 {sr(sT1)}, {sr(sT2)}, 5
    s_add_u32 {sr(sT1)}, {sr(sT1)}, {sr(sH)}
    s_lshl_b32 {sr(sT1)}, {sr(sT1)}, 7
    s_add_u32 {sr(sT1)}, {sr(sT1)}, {FO}""", 2, 3)
    G.stamp(7)
    G.dump_stamps()
    g("s_endpgm")
    fallback(G)


def fallback(G):
    g = G.g
    sK, sN = sA + 4, sA + 5
    vMx = (20, 22)
    g.label("Lfallback")
    koff_code(g, 24, 2, 3)
    g(f"""
    v_lshrrev_b32 v4, 5, v0
    v_and_b32 v13, 31, v0
    v_lshl_add_u32 v25, v4, 8, v24
    v_mul_u32_u24 v26, 320, v4
    v_lshl_add_u32 v26, v13, 4, v26
    v_cmp_gt_u32 vcc, 20, v13
    s_mov_b64 {sr(sA + 6, 2)}, vcc
    v_cmp_eq_u32 vcc, 20, v13
    v_mov_b32 v2, 0x3f803f80
    v_mov_b32 v20, 0xff800000
    v_mov_b32 v22, 0xff800000
    """)
    for r in range(8):
        g(f"v_cndmask_b32 {vr(VF[0] + r)}, 0, v2, vcc")
    g("s_mov_b32 exec_lo, 0")
    for r in range(4):
        g(f"v_mov_b32 {vr(QR[0] + r)}, 0")
    g("s_mov_b32 exec_lo, -1")
    for r in range(32):
        g(f"v_mov_b32 {vr(OA[0] + r)}, 0")
    for ps in range(2):
        L = G.lab("fb")
        g(f"s_mul_i32 {sr(sK)}, {sr(sH)}, {64 * 2560}\ns_add_u32 {sr(sK)}, {sr(sK)}, {KVOFF}\ns_mov_b32 {sr(sN)}, 64")
        g.label(L)
        for u in range(2):
            g(f"buffer_load_dwordx2 {vr(KM[0] + 2 * u, 2)}, v25, {sr(SWS, 4)}, {sr(sK)} offen offset:{512 * u} sc1")
        g(f"buffer_load_dwordx2 {vr(KR[0], 2)}, v24, {sr(SWS, 4)}, {sr(sK)} offen offset:1024 sc1")
        if ps:
            g(f"s_mov_b64 exec, {sr(sA + 6, 2)}")
            for u in range(2):
                g(f"buffer_load_dwordx4 {vr(VF[0] + 4 * u, 4)}, v26, {sr(SWS, 4)}, {sr(sK)} offen offset:{1280 + 640 * u} sc1")
            g("s_mov_b64 exec, -1")
        g("s_waitcnt vmcnt(0)")
        a0, a1 = s_mfmas(0), s_mfmas(1)
        g(a0[0]); g(a1[0]); g(a0[1]); g(a1[1])
        g("s_nop 11")
        for qt in range(2):
            if ps == 0:
                row_max(g, SB[qt], 2, None)
                g(f"v_max_f32 {vr(vMx[qt])}, {vr(vMx[qt])}, v2")
            else:
                for r in range(16):
                    g(f"v_sub_f32 {vr(SB[qt] + r)}, {vr(SB[qt] + r)}, {vr(vMx[qt])}")
                for r in range(16):
                    g(f"v_exp_f32 {vr(SB[qt] + r)}, {vr(SB[qt] + r)}")
                g("s_nop 1")
                for x in pv_mfmas(qt):
                    g(x)
        g(f"s_add_u32 {sr(sK)}, {sr(sK)}, 2560\ns_sub_u32 {sr(sN)}, {sr(sN)}, 1\ns_cmp_lg_u32 {sr(sN)}, 0\ns_cbranch_scc1 {L}")
        if ps == 0:
            for qt in range(2):
                both_halves(g, vMx[qt], vMx[qt] + 1)
                g(f"v_max_f32 {vr(vMx[qt])}, {vr(vMx[qt])}, {vr(vMx[qt] + 1)}")
    g("s_nop 11")
    for qt in range(2):
        g(f"v_mov_b32 {vr(16 + 2 * qt)}, {vr(OA[qt] + 8)}")
        both_halves(g, 16 + 2 * qt, 17 + 2 * qt)
    g("s_branch Lnorm")


GA, BI = 64, 4
RING = [r for r in range(24, 64, 4)] + [r for r in range(144, 248, 4)]
vL, vLb, vGG = 248, 249, 252
WOF, OF = 144, 4


def gemm(G):
    g, o = G.g, G.o
    steps = [int(x) for x in o.steps.split(",")]
    assert sum(steps) == 14 and len(steps) == 3
    sWp, sKV, sRec, sWb, sPair, sOwn = sTT, sA + 1, sA + 2, sA + 3, sA + 4, sA + 5
    sHb = sA + 6
    g.label("Lgemm")
    kv_setup(G, sKV, sPair, sRec, 8, 3, 16)
    g(f"""
    v_lshrrev_b32 v3, 2, v0
    v_min_u32 v3, 5, v3
    v_lshlrev_b32 v3, 2, v3
    v_add_u32 v3, {sr(sPair)}, v3
    v_and_b32 v3, 31, v3
    v_lshl_add_u32 v2, v16, 5, v3
    v_lshlrev_b32 v2, 7, v2
    v_lshlrev_b32 {vr(vL)}, 4, v0
    v_add_u32 {vr(vLb)}, 4096, {vr(vL)}
    s_add_u32 {sr(sOwn)}, {sr(sWp)}, {sr(sCP) if o.orot else 0}
    s_and_b32 {sr(sOwn)}, {sr(sOwn)}, 3
    """)
    kv = lambda groups, tag: kv_load(G, vL, sKV, sPair, sRec, groups, tag)
    for sg in range(4):
        g(f"""
        s_add_u32 {sr(sT0)}, {sr(sOwn)}, {1 + sg}
        s_and_b32 {sr(sT0)}, {sr(sT0)}, 3
        s_lshl_b32 {sr(sT1)}, {sr(sRT)}, 2
        s_add_u32 {sr(sHb + sg)}, {sr(sT0)}, {sr(sT1)}
        """)
    g("s_barrier")
    G.poll(2, 3, sleep=2)
    G.stamp(4)
    kv([2, 3], "kv2")
    G.h_stores(vL)
    G.const_init(1)
    g("s_barrier")
    g.wait(vm="all")
    G.set_flag(f"""
    s_lshl_b32 {sr(sT1)}, {sr(sCS)}, 4
    s_add_u32 {sr(sT1)}, {sr(sT1)}, {sr(sRB)}
    s_lshl_b32 {sr(sT1)}, {sr(sT1)}, 2
    s_add_u32 {sr(sT1)}, {sr(sT1)}, {sr(sWp)}
    s_lshl_b32 {sr(sT1)}, {sr(sT1)}, 7
    s_add_u32 {sr(sT1)}, {sr(sT1)}, {FH}""", 2, 3)
    kv([4, 5], "kv3")
    g(f"""
    s_mul_i32 {sr(sT2)}, {sr(sCP)}, 160
    s_cmp_eq_u32 {sr(sWp)}, 0
    s_cselect_b32 {sr(sT1)}, 0, {OOB}
    s_add_u32 {sr(sT1)}, {sr(sT1)}, {sr(sT2)}
    v_lshrrev_b32 v2, 4, v0
    v_lshlrev_b32 v2, 3, v2
    """)
    for n in range(5):
        g.vmem(f"buffer_load_dwordx2 {vr(GA + 2 * n, 2)}, v2, {sr(SB2, 4)}, {sr(sT1)} offen offset:{32 * n}", "b2")

    def frag(i, k):
        return RING[(i % 4) * 9 + k]

    def loads(i):
        L = []
        for n in range(5):
            L.append(lambda n=n: g.vmem(f"buffer_load_dwordx4 {vr(frag(i, n), 4)}, {vr(vL if n < 4 else vLb)}, {sr(SWS, 4)}, {sr(sWb)} offen offset:{(n % 4) * 1024} sc1", ("f", i)))
        for sg in range(4):
            def h(sg=sg):
                g.vmem(f"buffer_load_dwordx4 {vr(frag(i, 5 + sg), 4)}, {vr(vL)}, {sr(SWS, 4)}, {sr(sHb + sg)} offen sc1", ("f", i))
                g(f"s_add_u32 {sr(sHb + sg)}, {sr(sHb + sg)}, 4096")
                if sg == 3:
                    g(f"s_add_u32 {sr(sWb)}, {sr(sWb)}, {4 * 40960}")
            L.append(h)
        return L

    def step(i):
        pend = loads(i + 3) if i + 3 < 14 else []
        g.wait(vm=("f", i))
        L = None
        if i == 13:
            L = G.lab("skip")
            g(f"s_cmp_ge_u32 {sr(sWp)}, 2\ns_cbranch_scc1 {L}")
        k = 0
        for n in range(5):
            for sg in range(4):
                a = GA + 20 * sg + 4 * n
                c = vr(BI + 4 * n, 4) if i == 0 else vr(a, 4)
                g(f"v_mfma_f32_16x16x32_bf16 {vr(a, 4)}, {vr(frag(i, n), 4)}, {vr(frag(i, 5 + sg), 4)}, {c}")
                k += 1
                if k % 2 == 1 and pend:
                    pend.pop(0)()
        if L:
            g.label(L)

    def start_ffn2():
        g(f"""
        s_lshl_b32 {sr(sT0)}, {sr(sRT)}, 1
        v_lshrrev_b32 v2, 1, v0
        v_min_u32 v2, 14, v2
        v_and_b32 v3, 1, v0
        v_lshl_add_u32 v2, v2, 6, v3
        v_add_u32 v2, {sr(sT0)}, v2
        v_and_b32 v3, 15, v0
        v_lshlrev_b32 v3, 2, v3
        v_add_u32 v3, 960, v3
        v_cmp_gt_u32 vcc, 32, v0
        s_lshl_b32 {sr(sT0)}, {sr(sJ)}, 3
        s_add_u32 {sr(sT0)}, {sr(sT0)}, 896
        v_cndmask_b32 v2, v3, v2, vcc
        v_and_b32 v3, 7, v0
        v_cmp_gt_u32 vcc, 48, v0
        v_add_u32 v3, {sr(sT0)}, v3
        s_nop 0
        v_cndmask_b32 v2, v3, v2, vcc
        v_lshlrev_b32 v2, 7, v2
        v_add_u32 v2, {FH}, v2
        """)
        G.poll(2, 3, sleep=4)
        G.stamp(5)
        for n in range(5):
            for hf in range(2):
                g(f"v_lshlrev_b32 {vr(BI + 4 * n + 2 * hf)}, 16, {vr(GA + 2 * n + hf)}")
                g(f"v_and_b32 {vr(BI + 4 * n + 2 * hf + 1)}, 0xffff0000, {vr(GA + 2 * n + hf)}")
        g("v_and_b32 v2, 15, v0\nv_lshlrev_b32 v2, 2, v2")
        for sg in range(4):
            g(f"s_lshl_b32 {sr(sT0)}, {sr(sHb + sg)}, 6\ns_add_u32 {sr(sT0)}, {sr(sT0)}, {GOFF}")
            g.vmem(f"buffer_load_dword {vr(vGG + sg)}, v2, {sr(SWS, 4)}, {sr(sT0)} offen sc1", "g")
            g(f"""
            s_mul_i32 {sr(sHb + sg)}, {sr(sHb + sg)}, 54
            s_add_u32 {sr(sHb + sg)}, {sr(sHb + sg)}, {sr(sWp)}
            s_lshl_b32 {sr(sHb + sg)}, {sr(sHb + sg)}, 10
            s_add_u32 {sr(sHb + sg)}, {sr(sHb + sg)}, {HOFF}
            """)
        g(f"""
        s_mul_i32 {sr(sWb)}, {sr(sWp)}, 40960
        s_mul_i32 {sr(sT0)}, {sr(sCP)}, 5120
        s_add_u32 {sr(sWb)}, {sr(sWb)}, {sr(sT0)}
        s_add_u32 {sr(sWb)}, {sr(sWb)}, {WPOFF}
        """)
        for i in range(3):
            for f in loads(i):
                f()

    done = 0
    g.wait(lg="all")
    g("s_barrier")
    start_ffn2()
    for _ in range(steps[0]):
        step(done); done += 1
    g.wait(vm="kv3")
    g("s_barrier")
    kv([6, 7], "kv4")
    for _ in range(steps[1]):
        step(done); done += 1
    g.wait(vm="kv4")
    g("s_barrier")
    for _ in range(steps[2]):
        step(done); done += 1
    G.stamp(6)
    g(f"""
    s_mul_i32 {sr(sWb)}, {sr(sWp)}, {5 * 40960}
    s_mul_i32 {sr(sT0)}, {sr(sCP)}, 5120
    s_add_u32 {sr(sWb)}, {sr(sWb)}, {sr(sT0)}
    s_add_u32 {sr(sWb)}, {sr(sWb)}, {WPOFF + 54 * 40960}
    """)
    for s in range(5):
        for n in range(5):
            g.vmem(f"buffer_load_dwordx4 {vr(WOF + 20 * s + 4 * n, 4)}, {vr(vL if n < 4 else vLb)}, {sr(SWS, 4)}, {sr(sWb)} offen offset:{(n % 4) * 1024} sc1", "wo")
        g(f"s_add_u32 {sr(sWb)}, {sr(sWb)}, 40960")
    for sg in range(4):
        g(f"v_sub_f32 {vr(vGG + sg)}, 1.0, {vr(vGG + sg)}")
    for sg in range(4):
        for r in range(20):
            g(f"v_mul_f32 {vr(GA + 20 * sg + r)}, {vr(GA + 20 * sg + r)}, {vr(vGG + sg)}")
    vRW, vOut, vRR = 250, 251, 252
    g(f"""
    s_mul_i32 {sr(sT0)}, {sr(sWp)}, 15360
    s_add_u32 {sr(sT0)}, {sr(sT0)}, {REDOFF}
    v_add_u32 {vr(vRW)}, {sr(sT0)}, {vr(vL)}
    s_lshl_b32 {sr(sT0)}, {sr(sRT)}, 6
    s_lshl_b32 {sr(sT1)}, {sr(sOwn)}, 4
    s_add_u32 {sr(sT0)}, {sr(sT0)}, {sr(sT1)}
    v_and_b32 v2, 15, v0
    v_add_u32 v2, {sr(sT0)}, v2
    v_mul_u32_u24 v2, 1280, v2
    v_lshrrev_b32 v3, 4, v0
    v_lshl_add_u32 v2, v3, 3, v2
    s_mul_i32 {sr(sT0)}, {sr(sCP)}, 160
    v_add_u32 {vr(vOut)}, {sr(sT0)}, v2
    """)
    for sg in range(4):
        g(f"""
        s_add_u32 {sr(sT0)}, {sr(sOwn)}, {1 + sg}
        s_and_b32 {sr(sT0)}, {sr(sT0)}, 3
        s_lshl_b32 {sr(sT1)}, {sr(sRT)}, 2
        s_add_u32 {sr(sT0)}, {sr(sT0)}, {sr(sT1)}
        s_mul_i32 {sr(sT0)}, {sr(sT0)}, 20480
        s_mul_i32 {sr(sT1)}, {sr(sWp)}, 5120
        s_add_u32 {sr(sT0)}, {sr(sT0)}, {sr(sT1)}
        s_add_u32 {sr(sHb + sg)}, {sr(sT0)}, {OOFF}
        """)
    for sg in range(3):
        g(f"""
        s_add_u32 {sr(sT0)}, {sr(sWp)}, {3 - sg}
        s_and_b32 {sr(sT0)}, {sr(sT0)}, 3
        s_mul_i32 {sr(sT0)}, {sr(sT0)}, 15360
        s_add_u32 {sr(sT0)}, {sr(sT0)}, {REDOFF + sg * 5120}
        v_add_u32 {vr(vRR + sg)}, {sr(sT0)}, {vr(vL)}
        """)
    g(f"""
    s_lshl_b32 {sr(sT0)}, {sr(sRT)}, 5
    s_lshl_b32 {sr(sT1)}, {sr(sWp)}, 3
    s_add_u32 {sr(sT0)}, {sr(sT0)}, {sr(sT1)}
    s_add_u32 {sr(sT0)}, {sr(sT0)}, {FO // 128}
    v_and_b32 v2, 7, v0
    v_add_u32 v2, {sr(sT0)}, v2
    v_lshlrev_b32 v2, 7, v2
    """)
    G.stamp(7)
    G.poll(2, 3, sleep=o.osleep)
    G.stamp(8)

    def oload(sg):
        for s in range(5):
            g.vmem(f"buffer_load_dwordx4 {vr(OF + 20 * (sg % 3) + 4 * s, 4)}, {vr(vL if s < 4 else vLb)}, {sr(SWS, 4)}, {sr(sHb + sg)} offen offset:{(s % 4) * 1024} sc1", ("o", sg, s))

    def rwrite(sg):
        return [lambda n=n: g.lds(f"ds_write_b128 {vr(vRW)}, {vr(GA + 20 * sg + 4 * n, 4)} offset:{sg * 5120 + n * 1024}", "rw") for n in range(5)]

    for sg in range(3):
        oload(sg)
    for sg in range(4):
        pend = rwrite(sg - 1) if sg else []
        k = 0
        for s in range(5):
            g.wait(vm=("o", sg, s))
            for n in range(5):
                a = GA + 20 * sg + 4 * n
                g(f"v_mfma_f32_16x16x32_bf16 {vr(a, 4)}, {vr(WOF + 20 * s + 4 * n, 4)}, {vr(OF + 20 * (sg % 3) + 4 * s, 4)}, {vr(a, 4)}")
                k += 1
                if k >= 8 and pend:
                    pend.pop(0)()
            if sg == 3 and s == 2:
                g.wait(lg="all")
                g("s_barrier")
                for x in range(3):
                    for n in range(5):
                        g.lds(f"ds_read_b128 {vr(GA + 20 * x + 4 * n, 4)}, {vr(vRR + x)} offset:{n * 1024}", ("rr", x))
        if sg == 0:
            oload(3)
    G.stamp(9)
    g.wait(lg=("rr", 1))
    for r in range(20):
        g(f"v_add_f32 {vr(GA + r)}, {vr(GA + r)}, {vr(GA + 20 + r)}")
    g.wait(lg=("rr", 2))
    for r in range(20):
        g(f"v_add_f32 {vr(GA + 60 + r)}, {vr(GA + 60 + r)}, {vr(GA + 40 + r)}")
    for n in range(5):
        a = GA + 4 * n
        for r in range(4):
            g(f"v_add_f32 {vr(a + r)}, {vr(a + r)}, {vr(a + 60 + r)}")
        g(f"v_cvt_pk_bf16_f32 {vr(a)}, {vr(a)}, {vr(a + 1)}\nv_cvt_pk_bf16_f32 {vr(a + 1)}, {vr(a + 2)}, {vr(a + 3)}")
        g(f"buffer_store_dwordx2 {vr(a, 2)}, {vr(vOut)}, {sr(SOUT, 4)}, 0 offen offset:{32 * n}")
    if o.stamps:
        g("s_waitcnt vmcnt(0)")
    G.stamp(10)
    G.dump_stamps()


def phase2(G):
    g = G.g
    st = g.state()
    G.role = 'attn'
    attention(G)
    g.restore(st)
    G.role = 'gemm'
    gemm(G)
```

```python
import sys, math, argparse
from asmlib import *

NAME = "gated_mix__mha_block__dense_activation_squared_relu__prompt_kernel"

FQ, FH, FO, GOFF, TSOFF = 0x0, 0x20000, 0x40000, 0x60000, 0x80000
QOFF, KVOFF, HOFF, OOFF, WPOFF, WS_SIZE = 0x100000, 0x400000, 0x900000, 0x1000000, 0x1280000, 0x1580000
OOB = 0x7F000000
QSCALE = math.log2(math.e) / math.sqrt(20.0)
LDS_BYTES = 163840
NREC, REC = 48, 3072
REDOFF = 16 * REC
SPIN = 1 << 21

sW, sRB, sCS, sJ, sH = 3, 4, 5, 6, 7
SX, SWQ, SW1, SWS, SW2, SWO, SOUT, SB1, SB2, SGW, SDBG, SCODE = (8 + 4 * i for i in range(12))
sM0, sT0, sT1, sT2, sRT, sCP, sTT, sCH = 56, 57, 58, 59, 60, 61, 62, 63
sSPIN, sSCALE, sHS, sT3, sT4, sT5 = 64, 65, 66, 67, 68, 69
sA = 70
sTS = 80


def f32hex(x):
    import struct
    return hex(struct.unpack("<I", struct.pack("<f", x))[0])


class Gen:
    def __init__(self, opt):
        self.o = opt
        self.g = Stream()
        self.nlab = 0
        self.role = ''

    def lab(self, base):
        self.nlab += 1
        return f"L{base}_{self.nlab}"

    def stamp(self, k):
        if self.o.diag:
            g = self.g
            pt, us = (int(x) for x in self.o.diag.split(":"))
            if k == 0:
                g(f"s_memrealtime s[98:99]\ns_waitcnt lgkmcnt(0)\ns_add_u32 s98, s98, {us * 100}")
            if k == pt and (k < 1 or self.role == self.o.diag_role):
                L = self.lab("diag")
                g.label(L)
                g(f"s_memrealtime s[100:101]\ns_waitcnt lgkmcnt(0)\ns_sub_u32 s100, s100, s98\ns_cmp_lt_i32 s100, 0\ns_cbranch_scc1 {L}")
                g.lg_done = len(g.lg)
            return
        if not self.o.stamps:
            return
        g = self.g
        g(f"{'s_memtime' if self.o.stamps == 2 else 's_memrealtime'} {sr(100, 2)}\ns_waitcnt lgkmcnt(0)\ns_mov_b32 {sr(sTS + k)}, s100")
        g.lg_done = len(g.lg)

    def dump_stamps(self):
        if not self.o.stamps:
            return
        g = self.g
        g(f"s_lshl_b32 {sr(sT0)}, s2, 3\ns_add_u32 {sr(sT0)}, {sr(sT0)}, {sr(sW)}\ns_lshl_b32 {sr(sT0)}, {sr(sT0)}, 6")
        g(f"s_add_u32 {sr(sT0)}, {sr(sT0)}, {TSOFF}\nv_mov_b32 v1, 0\ns_mov_b64 exec, 1")
        for k in range(16):
            g(f"v_mov_b32 v2, {sr(sTS + k)}")
            g(f"buffer_store_dword v2, v1, {sr(SWS, 4)}, {sr(sT0)} offen offset:{4 * k}")
        g("s_mov_b64 exec, -1")

    def dma(self, srd, vaddr, soff, ldsoff, tag, m0base=sM0, sbase=None, flags=""):
        g = self.g
        g(f"s_add_u32 m0, {sr(m0base)}, {ldsoff}")
        if sbase is None:
            g(f"s_mov_b32 {sr(sT0)}, {soff}")
        else:
            g(f"s_add_u32 {sr(sT0)}, {sr(sbase)}, {soff}")
        g.vmem(f"buffer_load_dwordx4 {vr(vaddr)}, {sr(srd, 4)}, {sr(sT0)} offen {flags} lds", tag)

    def poll(self, vaddr, vtmp, srd=SWS, sleep=0):
        g = self.g
        L, E = self.lab("poll"), self.lab("polld")
        g(f"s_mov_b32 {sr(sSPIN)}, {SPIN}")
        g.label(L)
        g(f"buffer_load_dword {vr(vtmp)}, {vr(vaddr)}, {sr(srd, 4)}, 0 offen sc1")
        g(f"s_sub_u32 {sr(sSPIN)}, {sr(sSPIN)}, 1")
        g(f"s_cbranch_scc1 {E}")
        g("s_waitcnt vmcnt(0)")
        g(f"v_cmp_ne_u32 vcc, 1, {vr(vtmp)}")
        g(f"s_cbranch_vccz {E}")
        if sleep:
            g(f"s_sleep {sleep}")
        g(f"s_branch {L}")
        g.label(E)
        g("s_waitcnt vmcnt(0)")
        g.vm_done = len(g.vm)

    def set_flag(self, sidx_expr_lines, va, vb):
        g = self.g
        g(sidx_expr_lines)
        g(f"v_mov_b32 {vr(va)}, 0\nv_mov_b32 {vr(vb)}, 1\ns_mov_b64 exec, 1")
        g.vmem(f"buffer_store_dword {vr(vb)}, {vr(va)}, {sr(SWS, 4)}, {sr(sT1)} offen sc1", "flag")
        g("s_mov_b64 exec, -1")

    def prologue(self):
        g = self.g
        g("s_cmp_ge_u32 s2, 256\ns_cbranch_scc1 Lend")
        for srd, slot in ((SX, 0), (SWQ, 1), (SW1, 4), (SWS, 11), (SB1, 5), (SGW, 8), (SDBG, 10), (SW2, 6), (SWO, 2), (SOUT, 9), (SB2, 7)):
            g(f"s_load_dwordx2 {sr(srd, 2)}, s[0:1], {8 * slot}")
        self.stamp(0)
        g("v_lshrrev_b32 v2, 6, v0\nv_and_b32 v0, 63, v0")
        g(f"v_readfirstlane_b32 {sr(sW)}, v2")
        for srd, n in ((SX, 2048 * 1280), (SWQ, 640 * 3840), (SW1, 640 * 3456), (SWS, WS_SIZE), (SB1, 3456), (SGW, 1280),
                       (SDBG, 256), (SW2, 1728 * 1280), (SWO, 640 * 1280), (SOUT, 2048 * 1280), (SB2, 1280)):
            g(f"s_mov_b32 {sr(srd + 2)}, {n}\ns_mov_b32 {sr(srd + 3)}, 0x20000")
        g(f"""
        s_getpc_b64 {sr(SCODE, 2)}
        s_mov_b32 {sr(SCODE + 2)}, CODE_BYTES
        s_mov_b32 {sr(SCODE + 3)}, 0x20000
        s_and_b32 {sr(sT0)}, s2, 7
        s_lshr_b32 {sr(sT1)}, s2, 3
        s_lshr_b32 {sr(sRB)}, {sr(sT0)}, 2
        s_lshl_b32 {sr(sRB)}, {sr(sRB)}, 3
        s_and_b32 {sr(sT2)}, {sr(sT1)}, 7
        s_add_u32 {sr(sRB)}, {sr(sRB)}, {sr(sT2)}
        s_lshr_b32 {sr(sCS)}, {sr(sT1)}, 3
        s_lshl_b32 {sr(sCS)}, {sr(sCS)}, 2
        s_and_b32 {sr(sT3)}, {sr(sT0)}, 3
        s_add_u32 {sr(sCS)}, {sr(sCS)}, {sr(sT3)}
        s_lshr_b32 {sr(sJ)}, s2, 5
        s_and_b32 {sr(sT3)}, {sr(sT1)}, 3
        s_lshl_b32 {sr(sH)}, {sr(sT0)}, 2
        s_add_u32 {sr(sH)}, {sr(sH)}, {sr(sT3)}
        s_mov_b32 {sr(sRT)}, {sr(sH)}
        s_lshr_b32 {sr(sCP)}, {sr(sT1)}, 2
        s_and_b32 {sr(sTT)}, {sr(sW)}, 3
        s_lshl_b32 {sr(sM0)}, {sr(sTT)}, 10
        s_lshr_b32 {sr(sCH)}, {sr(sW)}, 2
        """)
        if self.o.code_prefetch:
            L = self.lab("nopf")
            g(f"""
            s_cmp_lg_u32 {sr(sW)}, 3
            s_cbranch_scc1 {L}
            s_lshl_b32 {sr(sT2)}, {sr(sT2)}, 13
            v_lshlrev_b32 v1, 7, v0
            buffer_load_dword v30, v1, {sr(SCODE, 4)}, {sr(sT2)} offen
            """)
            g.label(L)
        g(f"""
        s_and_b32 {sr(sT0)}, {sr(sRB)}, 7
        s_lshr_b32 {sr(sT1)}, {sr(sT0)}, 2
        s_add_u32 {sr(sT0)}, {sr(sT0)}, {sr(sT1)}
        s_lshr_b32 {sr(sT1)}, {sr(sCS)}, 2
        s_mul_i32 {sr(sT1)}, {sr(sT1)}, 5
        s_lshr_b32 {sr(sT1)}, {sr(sT1)}, 1
        s_add_u32 {sr(sT0)}, {sr(sT0)}, {sr(sT1)}
        s_cmp_ge_u32 {sr(sT0)}, 10
        s_cselect_b32 {sr(sT1)}, 10, 0
        s_sub_u32 {sr(sT0)}, {sr(sT0)}, {sr(sT1)}
        ROTFIX
        s_lshl_b32 {sr(sA)}, {sr(sT0)}, 7
        s_mul_i32 {sr(sA + 1)}, {sr(sT0)}, {64 * 3840}
        s_mul_i32 {sr(sA + 2)}, {sr(sT0)}, {64 * 3456}
        """)
        fix = {0: f"s_mov_b32 {sr(sT0)}, 0", 1: "s_nop 0",
               2: f"s_lshr_b32 {sr(sT0)}, {sr(sCS)}, 2|s_xor_b32 {sr(sT0)}, {sr(sT0)}, {sr(sRB)}|s_and_b32 {sr(sT0)}, {sr(sT0)}, 1|s_mul_i32 {sr(sT0)}, {sr(sT0)}, 5",
               4: f"s_lshr_b32 {sr(sT0)}, {sr(sCS)}, 2|s_add_u32 {sr(sT0)}, {sr(sT0)}, {sr(sRB)}|s_and_b32 {sr(sT0)}, {sr(sT0)}, 3|s_mul_i32 {sr(sT0)}, {sr(sT0)}, 5|s_lshr_b32 {sr(sT0)}, {sr(sT0)}, 1"}[self.o.rot]
        i = g.lines.index("ROTFIX")
        g.lines[i:i + 1] = fix.split("|")
        g(f"""
        v_lshrrev_b32 v2, 3, v0
        v_lshrrev_b32 v3, 4, v0
        s_lshl_b32 {sr(sT0)}, {sr(sRB)}, 7
        s_lshl_b32 {sr(sT1)}, {sr(sTT)}, 3
        s_add_u32 {sr(sT0)}, {sr(sT0)}, {sr(sT1)}
        v_add_u32 v2, {sr(sT0)}, v2
        v_mul_u32_u24 v4, 1280, v2
        s_and_b32 {sr(sT0)}, {sr(sW)}, 1
        s_lshl_b32 {sr(sT0)}, {sr(sT0)}, 2
        v_or_b32 v7, {sr(sT0)}, v3
        v_and_b32 v8, 7, v0
        v_xor_b32 v7, v7, v8
        v_lshl_add_u32 v4, v7, 4, v4
        s_lshl_b32 {sr(sT0)}, {sr(sTT)}, 2
        v_add_u32 v2, {sr(sT0)}, v3
        s_and_b32 {sr(sT0)}, {sr(sW)}, 2
        s_lshl_b32 {sr(sT0)}, {sr(sT0)}, 1
        v_or_b32 v7, {sr(sT0)}, v3
        v_lshlrev_b32 v7, 1, v7
        v_and_b32 v8, 15, v0
        v_xor_b32 v7, v7, v8
        v_lshlrev_b32 v7, 4, v7
        s_lshl_b32 {sr(sT0)}, {sr(sCS)}, 8
        v_add_u32 v7, {sr(sT0)}, v7
        v_mul_u32_u24 v5, 3840, v2
        v_add_u32 v5, v5, v7
        v_mul_u32_u24 v6, 3456, v2
        v_add_u32 v6, v6, v7
        s_waitcnt lgkmcnt(0)
        """)
        if self.o.tlb:
            L = self.lab("notlb")
            g(f"s_cmp_lg_u32 {sr(sW)}, 6\ns_cbranch_scc1 {L}\nv_lshlrev_b32 v1, {self.o.tlb}, v0")
            for srd in (SWS, SOUT, SW1, SB1, SB2, SDBG):
                g(f"buffer_load_dword v255, v1, {sr(srd, 4)}, 0 offen")
            g.label(L)
        g(f"s_cmp_eq_u32 {sr(sCS)}, 15\ns_cbranch_scc1 Lgate")

    vXG, vWG, vW1G = 4, 5, 6

    def adv(self, reg, step):
        self.g(f"s_add_u32 {sr(reg)}, {sr(reg)}, {step}\ns_cmp_eq_u32 {sr(reg)}, {10 * step}\ns_cselect_b32 {sr(reg)}, 0, {sr(reg)}")

    def dma4(self, srd, va, sreg, quarter, step, lds, tag):
        for q in range(4):
            self.dma(srd, va, q * quarter, lds + q * 4096, tag, sbase=sreg)
        self.adv(sreg, step)

    def dmaX(self, s):
        self.dma4(SX, self.vXG, sA, 32 * 1280, 128, (s % 5) * 32768, ("A", s))

    def dmaW(self, s):
        self.dma4(SWQ, self.vWG, sA + 1, 16 * 3840, 64 * 3840, (s % 5) * 32768 + 16384, ("A", s))

    def dmaB(self, t):
        self.dma4(SW1, self.vW1G, sA + 2, 16 * 3456, 64 * 3456, t * 16384, ("B", t))

    def rd(self, mn, dst, n, areg, off, tag, base):
        g = self.g
        if not (0 <= off - base[areg] <= 65535):
            nb = off & ~16383
            g(f"v_add_u32 {vr(areg)}, {(nb - base[areg]) & 0xFFFFFFFF}, {vr(areg)}")
            base[areg] = nb
        g.lds(f"{mn} {vr(dst, n)}, {vr(areg)} offset:{off - base[areg]}", tag)

    def x_read_addr(self, d0, d1, srow):
        self.g(f"""
        v_lshrrev_b32 v3, 4, v0
        v_and_b32 v2, 15, v0
        v_add_u32 {vr(d0)}, {sr(srow)}, v2
        v_lshlrev_b32 {vr(d0)}, 7, {vr(d0)}
        v_lshrrev_b32 v20, 1, v2
        v_xor_b32 v20, v20, v3
        v_xor_b32 v21, 4, v20
        v_lshl_add_u32 {vr(d1)}, v21, 4, {vr(d0)}
        v_lshl_add_u32 {vr(d0)}, v20, 4, {vr(d0)}
        """)

    def w_read_addr(self, dsts, sfirst, t):
        g = self.g
        g(f"""
        v_lshrrev_b32 {vr(t)}, 4, v0
        v_bfe_u32 {vr(t + 1)}, v0, 2, 2
        v_and_b32 {vr(t + 2)}, 3, v0
        v_lshl_add_u32 {vr(t + 3)}, {vr(t)}, 3, {vr(t + 1)}
        v_lshlrev_b32 {vr(t + 3)}, 8, {vr(t + 3)}
        v_lshl_add_u32 {vr(t + 3)}, {vr(t + 2)}, 3, {vr(t + 3)}
        v_and_b32 {vr(t)}, 1, {vr(t)}
        v_lshl_add_u32 {vr(t)}, {vr(t)}, 2, {vr(t + 1)}
        """)
        if sfirst is not None:
            g(f"v_xor_b32 {vr(t)}, {sr(sfirst)}, {vr(t)}")
        for n, d in enumerate(dsts):
            g(f"v_xor_b32 {vr(t + 1)}, {n}, {vr(t)}\nv_lshl_add_u32 {vr(d)}, {vr(t + 1)}, 5, {vr(t + 3)}")

    def clean_load(self):
        g = self.g
        g("v_and_b32 v2, 15, v0\nv_lshlrev_b32 v2, 2, v2")
        g.vmem(f"buffer_load_dword v3, v2, {sr(SDBG, 4)}, 0 offen sc1", "clean")

    aXR, aWR, aST, aACC, aBUF = (7, 8), (9, 10, 11, 12), (13, 14, 15, 16), 64, 128

    def a_setup(self):
        g = self.g
        sTH, sAC = sA + 3, sA + 4
        g(f"s_and_b32 {sr(sTH)}, {sr(sW)}, 1\ns_lshr_b32 {sr(sAC)}, {sr(sW)}, 1\ns_lshl_b32 {sr(sT0)}, {sr(sTH)}, 6")
        self.x_read_addr(*self.aXR, sT0)
        g(f"s_lshl_b32 {sr(sT0)}, {sr(sAC)}, 2")
        self.w_read_addr(self.aWR, sT0, 20)
        LV, LD = self.lab("stv"), self.lab("std")
        g(f"""
        s_mul_i32 {sr(sT0)}, {sr(sCS)}, 205
        s_lshr_b32 {sr(sT0)}, {sr(sT0)}, 10
        s_mul_i32 {sr(sT1)}, {sr(sT0)}, 5
        s_sub_u32 {sr(sT1)}, {sr(sCS)}, {sr(sT1)}
        s_lshl_b32 {sr(sT2)}, {sr(sRB)}, 1
        s_add_u32 {sr(sT2)}, {sr(sT2)}, {sr(sTH)}
        s_lshl_b32 {sr(sT2)}, {sr(sT2)}, 1
        s_cmp_eq_u32 {sr(sT0)}, 0
        s_mov_b32 {sr(sA + 5)}, 2560
        s_cselect_b32 {sr(sA + 5)}, 1280, {sr(sA + 5)}
        s_mov_b32 {sr(sT4)}, {KVOFF}
        s_cselect_b32 {sr(sT4)}, {QOFF}, {sr(sT4)}
        s_mul_i32 {sr(sT2)}, {sr(sT2)}, {sr(sA + 5)}
        s_add_u32 {sr(sT4)}, {sr(sT4)}, {sr(sT2)}
        s_lshl_b32 {sr(sT3)}, {sr(sA + 5)}, 6
        s_cmp_eq_u32 {sr(sT0)}, 2
        s_cbranch_scc1 {LV}
        s_lshl_b32 {sr(sT1)}, {sr(sT1)}, 5
        s_lshl_b32 {sr(sT2)}, {sr(sAC)}, 4
        s_add_u32 {sr(sT1)}, {sr(sT1)}, {sr(sT2)}
        v_add_u32 v22, {sr(sT1)}, v3
        v_lshlrev_b32 v17, 4, v2
        v_add_u32 v17, {sr(sT4)}, v17
        """)
        for n in range(4):
            g(f"""
            v_add_u32 v18, {4 * n}, v22
            v_mul_u32_u24 v19, 205, v18
            v_lshrrev_b32 v19, 10, v19
            v_mul_u32_u24 v20, 5, v19
            v_sub_u32 v20, v18, v20
            v_mul_lo_u32 v19, v19, {sr(sT3)}
            v_lshl_add_u32 v19, v20, 8, v19
            v_add_u32 {vr(self.aST[n])}, v19, v17
            """)
        g(f"s_branch {LD}")
        g.label(LV)
        g(f"""
        s_lshl_b32 {sr(sT1)}, {sr(sT1)}, 7
        s_lshl_b32 {sr(sT2)}, {sr(sAC)}, 6
        s_add_u32 {sr(sT1)}, {sr(sT1)}, {sr(sT2)}
        v_add_u32 v22, {sr(sT1)}, v2
        v_mul_u32_u24 v17, 320, v3
        s_add_u32 {sr(sT4)}, {sr(sT4)}, 1280
        v_add_u32 v17, {sr(sT4)}, v17
        """)
        for n in range(4):
            g(f"""
            v_add_u32 v18, {16 * n}, v22
            v_mul_u32_u24 v19, 3277, v18
            v_lshrrev_b32 v19, 16, v19
            v_mul_u32_u24 v20, 20, v19
            v_sub_u32 v20, v18, v20
            v_mul_lo_u32 v19, v19, {sr(sT3)}
            v_lshl_add_u32 v19, v20, 4, v19
            v_add_u32 {vr(self.aST[n])}, v19, v17
            """)
        g.label(LD)

    def a_pass(self, swap):
        g, o = self.g, self.o
        base = {r: 0 for r in self.aXR + self.aWR}
        xreg = lambda s, kk, t: self.aBUF + 64 * (s % 2) + (kk * 4 + t) * 4
        wreg = lambda s, n, kk: self.aBUF + 64 * (s % 2) + 32 + n * 8 + kk * 4

        def reads(s):
            q = (s % 5) * 32768
            X = [lambda kk=kk, t=t: self.rd("ds_read_b128", xreg(s, kk, t), 4, self.aXR[kk], q + t * 2048, ("x", s, t), base)
                 for t in range(4) for kk in range(2)]
            W = [lambda n=n, kk=kk, u=u: self.rd("ds_read_b64_tr_b16", wreg(s, n, kk) + 2 * u, 2, self.aWR[n], q + 16384 + kk * 8192 + u * 1024, ("w", s, n), base)
                 for n in range(4) for kk in range(2) for u in range(2)]
            return W[:4] + X + W[4:]

        g("s_barrier")
        self.stamp(1)
        for f in reads(0):
            f()
        for s in range(10):
            g.wait(lg="all")
            g("s_barrier")
            if o.fine == "A" and 1 <= s <= 7:
                self.stamp(8 + s)
            pend = reads(s + 1) if s < 9 else []
            for n in range(4):
                for t in range(4):
                    for kk in range(2):
                        a = self.aACC + (n * 4 + t) * 4
                        w, x = vr(wreg(s, n, kk), 4), vr(xreg(s, kk, t), 4)
                        A, B = (x, w) if swap else (w, x)
                        g(f"v_mfma_f32_16x16x32_bf16 {vr(a, 4)}, {A}, {B}, {'0' if s == 0 and kk == 0 else vr(a, 4)}")
                        if pend:
                            pend.pop(0)()

    def a_phase1(self):
        g, o = self.g, self.o
        self.a_setup()
        g(f"s_cmp_eq_u32 {sr(sCS)}, 14\ns_cselect_b32 {sr(sT0)}, {OOB}, 0\nv_add_u32 v6, {sr(sT0)}, v6")
        for t in range(o.b2_stage):
            self.adv(sA + 2, 64 * 3456)
        if o.aprio:
            g(f"s_setprio {o.aprio}")
        g(f"s_cmp_ge_u32 {sr(sCS)}, 10\ns_cbranch_scc1 LpassA_v")
        st = g.state()
        self.a_pass(False)
        g("s_branch LepiA")
        g.restore(st)
        g.label("LpassA_v")
        self.a_pass(True)
        g.label("LepiA")
        self.stamp(2)
        self.clean_load()
        L = self.lab("noq")
        g(f"s_nop 2\ns_cmp_ge_u32 {sr(sCS)}, 5\ns_cbranch_scc1 {L}")
        g(f"s_mov_b32 {sr(sT0)}, {f32hex(QSCALE)}")
        for r in range(64):
            g(f"v_mul_f32 {vr(self.aACC + r)}, {sr(sT0)}, {vr(self.aACC + r)}")
        g.label(L)
        for n in range(4):
            for T in range(2):
                a = self.aACC + 16 * n + 8 * T
                for q in range(4):
                    g(f"v_cvt_pk_bf16_f32 {vr(a + q)}, {vr(a + 2 * q)}, {vr(a + 2 * q + 1)}")
                g.vmem(f"buffer_store_dwordx4 {vr(a, 4)}, {vr(self.aST[n])}, {sr(SWS, 4)}, {sr(sA + 5) if T else 0} offen sc1", "stA")
        g("s_setprio 0\ns_barrier")
        for t in range(o.b2_stage, 10):
            self.dmaB(t)
        g.wait(vm="stA")
        self.check_clean()
        self.set_flag(f"""
        s_lshl_b32 {sr(sT1)}, {sr(sCS)}, 1
        s_add_u32 {sr(sT1)}, {sr(sT1)}, {sr(sA + 4)}
        s_lshl_b32 {sr(sT1)}, {sr(sT1)}, 5
        s_lshl_b32 {sr(sT2)}, {sr(sRB)}, 1
        s_add_u32 {sr(sT1)}, {sr(sT1)}, {sr(sT2)}
        s_add_u32 {sr(sT1)}, {sr(sT1)}, {sr(sA + 3)}
        s_lshl_b32 {sr(sT1)}, {sr(sT1)}, 7""", 2, 3)
        self.stamp(3)
        g.wait(vm=("B", 9))
        g("s_barrier\ns_branch Lattn")

    gXR, gWR, gACC, gX = (7, 8), (1, 2, 4, 5, 7, 8, 9, 10), 32, 96

    def gx(self, s, kk, t):
        return self.gX + ((2 * s + kk) * 2 + t) * 4

    def gacc(self, n, t):
        return self.gACC + ((n >> 1) * 2 + t) * 8 + (n & 1) * 4

    def g_phase1(self):
        g, o = self.g, self.o
        g.label("Lg1")
        fn = {"x": self.dmaX, "w": self.dmaW, "b": self.dmaB}
        sched = [[it for it in grp.split(",") if it] for grp in o.order.split("/")]
        assert len(sched) == 12 and o.b2_stage >= 4
        for k, grp in enumerate(sched):
            for it in grp:
                st_ = int(it[1]) if it[0] != "b" else 10 + int(it[1]) // 2
                assert st_ <= max(4, k + 3), (k, it)
        assert sorted(sum(sched, [])) == sorted([f"x{i}" for i in range(10)] + [f"w{i}" for i in range(10)] + [f"b{i}" for i in range(o.b2_stage)])
        issue = lambda k: [fn[it[0]](int(it[1])) for it in sched[k]]
        if o.gprio:
            g(f"s_setprio {o.gprio}")
        g(f"s_lshl_b32 {sr(sT1)}, {sr(sCS)}, 8\nv_lshlrev_b32 v9, 2, v0")
        g.vmem(f"buffer_load_dword v10, v9, {sr(SB1, 4)}, {sr(sT1)} offen", "b1")
        issue(0)
        g(f"""
        s_cmp_eq_u32 {sr(sCS)}, 14
        s_cselect_b32 {sr(sT0)}, {OOB}, 0
        v_add_u32 v6, {sr(sT0)}, v6
        s_lshl_b32 {sr(sT0)}, {sr(sTT)}, 5
        """)
        self.x_read_addr(*self.gXR, sT0)
        base = {r: 0 for r in self.gXR + self.gWR}
        for s in range(10):
            g.wait(vm=("A", s), lg="all")
            g("s_barrier")
            for t in range(2):
                for kk in range(2):
                    self.rd("ds_read_b128", self.gx(s, kk, t), 4, self.gXR[kk], (s % 5) * 32768 + t * 2048, ("x", s), base)
            issue(s + 1)
            if s == 7:
                g("v_lshlrev_b32 v9, 3, v3")
                for n in range(8):
                    for hf in range(2):
                        g.lds(f"ds_bpermute_b32 {vr(12 + 2 * n + hf)}, v9, v10 offset:{32 * n + 4 * hf}", "b1p")
            if s == 8:
                for n in range(8):
                    for hf in range(2):
                        for t in range(2):
                            g(f"v_lshlrev_b32 {vr(self.gacc(n, t) + 2 * hf)}, 16, {vr(12 + 2 * n + hf)}")
                            g(f"v_and_b32 {vr(self.gacc(n, t) + 2 * hf + 1)}, 0xffff0000, {vr(12 + 2 * n + hf)}")
        self.w_read_addr(self.gWR, None, 12)
        for r in self.gWR:
            base[r] = 0
        g.wait(vm=("B", o.b1_stage - 1), lg="all")
        g("s_barrier")
        issue(11)
        g("v_and_b32 v11, 15, v0\nv_lshlrev_b32 v11, 2, v11")
        g.vmem(f"buffer_load_dword v3, v11, {sr(SDBG, 4)}, 0 offen sc1", "clean")
        self.stamp(2)
        g(f"s_setprio {o.bprio}")
        g(f"s_cmp_eq_u32 {sr(sCS)}, 14\ns_cbranch_scc1 Lgatez")
        frs = [(s, n, kk) for s in range(10) for n in range(8) for kk in range(2)]
        free, where, nxt, half = [12, 16, 20, 24, 28], {}, 0, None

        def issue_read():
            nonlocal nxt, half
            if half is None:
                if nxt >= len(frs) or not free or len(where) >= o.wdepth:
                    return False
                s, n, kk = frs[nxt]
                if n == 0 and kk == 0 and s == o.b1_stage:
                    g.wait(vm=("B", o.b2_stage - 1))
                    g("s_barrier")
                if n == 0 and kk == 0 and s == o.b2_stage:
                    g("s_barrier")
                where[frs[nxt]] = free.pop(0)
                half = 0
            s, n, kk = frs[nxt]
            self.rd("ds_read_b64_tr_b16", where[frs[nxt]] + 2 * half, 2, self.gWR[n], s * 16384 + kk * 8192 + half * 1024, ("w", s, n, kk), base)
            if half == 1:
                half = None; nxt += 1
            else:
                half = 1
            return True

        while issue_read():
            pass
        for s in range(10):
            if o.fine == "B" and s in (1, 3, 5, 7, 9):
                self.stamp(11 + (1, 3, 5, 7, 9).index(s))
            for n in range(8):
                for m in range(4):
                    t, kk = m >> 1, m & 1
                    while (s, n, kk) not in where or (nxt < len(frs) and frs[nxt] == (s, n, kk)):
                        assert issue_read()
                    if m == 0 and (s, n, 1) in where and not (nxt < len(frs) and frs[nxt] == (s, n, 1)):
                        g.wait(lg=("w", s, n, 1))
                    else:
                        g.wait(lg=("w", s, n, kk))
                    a = self.gacc(n, t)
                    g(f"v_mfma_f32_16x16x32_bf16 {vr(a, 4)}, {vr(where[(s, n, kk)], 4)}, {vr(self.gx(s, kk, t), 4)}, {vr(a, 4)}")
                    if t == 1:
                        free.append(where.pop((s, n, kk)))
                    issue_read()
                    if len(where) < o.wdepth - 1:
                        issue_read()
            free.extend(self.gx(s, kk, t) for kk in range(2) for t in range(2))
        self.stamp(3)
        g("s_nop 7")
        for b in range(8):
            a = self.gACC + 8 * b
            for r in range(8):
                g(f"v_max_f32 {vr(a + r)}, 0, {vr(a + r)}")
            for r in range(8):
                g(f"v_mul_f32 {vr(a + r)}, {vr(a + r)}, {vr(a + r)}")
            for q in range(4):
                g(f"v_cvt_pk_bf16_f32 {vr(a + q)}, {vr(a + 2 * q)}, {vr(a + 2 * q + 1)}")
        g(f"""
        s_lshl_b32 {sr(sT0)}, {sr(sRB)}, 3
        s_lshl_b32 {sr(sT1)}, {sr(sTT)}, 1
        s_add_u32 {sr(sT0)}, {sr(sT0)}, {sr(sT1)}
        s_mul_i32 {sr(sT0)}, {sr(sT0)}, 54
        s_lshl_b32 {sr(sT1)}, {sr(sCS)}, 2
        s_add_u32 {sr(sT0)}, {sr(sT0)}, {sr(sT1)}
        s_lshl_b32 {sr(sT0)}, {sr(sT0)}, 10
        s_add_u32 {sr(sHS)}, {sr(sT0)}, {HOFF}
        s_cmp_eq_u32 {sr(sCS)}, 13
        s_cselect_b32 {sr(sSCALE)}, {OOB}, {sr(sHS)}
        """)
        g.label("Lgclean")
        g("s_setprio 0")
        g("v_mov_b32 v2, v11\ns_waitcnt vmcnt(0)")
        self.check_clean()
        g("s_branch Lgemm")
        g.label("Lgatez")
        g("s_waitcnt vmcnt(0)\ns_barrier")
        g(f"v_lshlrev_b32 v4, 4, v0\ns_lshl_b32 {sr(sT1)}, {sr(sM0)}, 2\ns_add_u32 {sr(sT1)}, {sr(sT1)}, {3 * 16384}")
        for src, dst in ((0, 0), (256, 256), (0, 1280), (256, 1536)):
            self.dma(SGW, 4, src, dst, "gw", m0base=sT1)
        g(f"s_barrier\ns_add_u32 {sr(sT1)}, {sr(sT1)}, {sr(sA)}")
        g(f"v_lshrrev_b32 v5, 4, v0\nv_lshlrev_b32 v5, 4, v5\nv_add_u32 v5, {sr(sT1)}, v5")
        g("s_waitcnt vmcnt(0)")
        for half in range(2):
            for k in range(10):
                g(f"ds_read_b128 {vr(32 + 4 * k, 4)}, v5 offset:{64 * (10 * half + k)}")
            g("s_waitcnt lgkmcnt(0)")
            for k in range(10):
                kk = 10 * half + k
                for t in range(2):
                    g(f"v_mfma_f32_16x16x32_bf16 {vr(80 + 4 * t, 4)}, {vr(32 + 4 * k, 4)}, {vr(self.gx(kk >> 1, kk & 1, t), 4)}, {'0' if kk == 0 else vr(80 + 4 * t, 4)}")
        g(f"""
        s_nop 7
        v_cmp_gt_u32 vcc, 16, v0
        v_lshlrev_b32 v4, 2, v0
        s_lshl_b32 {sr(sT0)}, {sr(sRB)}, 9
        v_cndmask_b32 v80, v84, v80, vcc
        v_mul_f32 v80, {f32hex(-math.log2(math.e))}, v80
        v_exp_f32 v80, v80
        s_lshl_b32 {sr(sT1)}, {sr(sTT)}, 7
        v_add_f32 v80, 1.0, v80
        v_rcp_f32 v80, v80
        s_add_u32 {sr(sT0)}, {sr(sT0)}, {sr(sT1)}
        s_add_u32 {sr(sT0)}, {sr(sT0)}, {GOFF}
        s_mov_b32 exec_hi, 0
        buffer_store_dword v80, v4, {sr(SWS, 4)}, {sr(sT0)} offen sc1
        s_mov_b32 exec_hi, -1
        s_mov_b32 {sr(sHS)}, {OOB}
        s_mov_b32 {sr(sSCALE)}, {OOB}
        s_branch Lgclean
        """)

    def phase1(self):
        g = self.g
        g(f"s_cmp_ge_u32 {sr(sW)}, 4\ns_cbranch_scc1 Lg1")
        st = g.state()
        self.role = "attn"
        self.a_phase1()
        g.restore(st)
        self.role = "gemm"
        self.g_phase1()

    def check_clean(self):
        g = self.g
        L = self.lab("clean")
        g(f"v_cmp_ne_u32 vcc, 1, v3\ns_cbranch_vccz {L}")
        st = g.state()
        self.poll(2, 3, SDBG)
        g.restore(st)
        g.label(L)

    def const_init(self, part):
        g = self.g
        g(f"""
        v_and_b32 v14, 31, v0
        v_lshrrev_b32 v15, 5, v0
        s_lshl_b32 {sr(sT0)}, {sr(sW)}, 1
        v_add_u32 v15, {sr(sT0)}, v15
        v_mul_u32_u24 v15, {REC}, v15
        v_lshl_add_u32 v13, v14, 4, v15
        v_and_b32 v15, 23, v14
        v_cmp_eq_u32 vcc, 16, v15
        v_mov_b32 v15, 0x3f803f80
        v_mov_b32 v1, 0x3f80
        v_cndmask_b32 v5, 0, v15, vcc
        v_cmp_eq_u32 vcc, 20, v14
        v_mov_b32 v14, v5
        v_mov_b32 v15, v5
        v_cndmask_b32 v4, v5, v1, vcc
        """)
        if part == 0:
            for r0 in (0, 8):
                g.lds(f"ds_write_b64 v13, v[4:5] offset:{2560 + r0 * REC}", "cw")
                g.lds(f"ds_write_b64 v13, v[14:15] offset:{2568 + r0 * REC}", "cw")
        else:
            for k in range(4):
                g(f"v_add_u32 v13, {8 * REC}, v13")
                g.lds(f"ds_write_b64 v13, v[4:5] offset:2560", "cw")
                g.lds(f"ds_write_b64 v13, v[14:15] offset:2568", "cw")

    def gate(self):
        g = self.g
        g.label("Lgate")
        L = self.lab("noclr")
        g(f"""
        s_mul_i32 {sr(sT0)}, {sr(sRB)}, {192 * 128}
        s_mul_i32 {sr(sT1)}, {sr(sW)}, {24 * 128}
        s_add_u32 {sr(sT0)}, {sr(sT0)}, {sr(sT1)}
        v_lshlrev_b32 v2, 7, v0
        v_mov_b32 v3, 0
        s_mov_b64 exec, 0xffffff
        buffer_store_dword v3, v2, {sr(SWS, 4)}, {sr(sT0)} offen sc1
        s_mov_b64 exec, -1
        """)
        self.pack()
        self.stamp(3)
        self.clean_load()
        g("s_waitcnt vmcnt(0) lgkmcnt(0)")
        self.check_clean()
        g(f"""
        s_barrier
        s_mov_b32 {sr(sHS)}, {OOB}
        s_mov_b32 {sr(sSCALE)}, {OOB}
        s_cmp_ge_u32 {sr(sW)}, 4
        s_cbranch_scc1 Lgemm
        s_branch Lattn
        """)

    def pack(self):
        g = self.g
        g.vm, g.lg, g.vm_done, g.lg_done = [], [], 0, 0
        sRing, sSrc, sDst = sA, sA + 1, sA + 2
        AD = {"w2": 32, "main": 40, "rem": 48}
        g(f"s_mul_i32 {sr(sRing)}, {sr(sW)}, 20480\ns_mul_i32 {sr(sT2)}, {sr(sW)}, 160")
        for q in range(5):
            g(f"""
            v_add_u32 v2, {64 * q}, v0
            v_mul_u32_u24 v3, 6554, v2
            v_lshrrev_b32 v3, 16, v3
            v_mul_u32_u24 v4, 10, v3
            v_sub_u32 v2, v2, v4
            v_lshlrev_b32 v2, 4, v2
            v_add_u32 v2, {sr(sT2)}, v2
            v_mul_u32_u24 v4, 1280, v3
            v_add_u32 {vr(AD['w2'] + q)}, v4, v2
            v_lshrrev_b32 v5, 4, v3
            v_and_b32 v6, 7, v3
            v_bfe_u32 v7, v3, 3, 1
            v_mul_u32_u24 v7, 20, v7
            v_lshl_add_u32 v7, v5, 3, v7
            v_add_u32 v7, v7, v6
            v_mul_u32_u24 v7, 1280, v7
            v_add_u32 {vr(AD['main'] + q)}, v7, v2
            v_bfe_u32 v7, v3, 2, 2
            v_lshl_add_u32 v7, v7, 1, v5
            v_mul_u32_u24 v7, 20, v7
            v_and_b32 v6, 3, v3
            v_add3_u32 v7, v7, v6, 16
            v_mul_u32_u24 v7, 1280, v7
            v_add_u32 {vr(AD['rem'] + q)}, v7, v2
            """)
        g(f"""
        v_lshrrev_b32 v2, 2, v0
        v_mul_u32_u24 v2, 160, v2
        v_and_b32 v3, 3, v0
        v_lshl_add_u32 v2, v3, 3, v2
        v_add_u32 v8, {sr(sRing)}, v2
        v_lshlrev_b32 v9, 4, v0
        s_mul_i32 {sr(sT2)}, {sr(sW)}, 5120
        s_add_u32 {sr(sT2)}, {sr(sT2)}, {WPOFF}
        v_add_u32 v9, {sr(sT2)}, v9
        v_add_u32 v10, 4096, v9
        """)

        def load(rnd, srd, kind):
            for q in range(5):
                self.dma(srd, AD[kind] + q, 0, (rnd % 4) * 5120 + q * 1024, ("p", rnd), m0base=sRing, sbase=sSrc)

        def emit(rnd):
            g.wait(vm=("p", rnd))
            d = 96 + 20 * rnd
            for n in range(5):
                for u in range(2):
                    g.lds(f"ds_read_b64_tr_b16 {vr(d + 4 * n + 2 * u, 2)}, v8 offset:{(rnd % 4) * 5120 + u * 2560 + n * 32}", ("pr", rnd))

        def store(rnd):
            g.wait(lg=("pr", rnd))
            d = 96 + 20 * rnd
            for n in range(5):
                g.vmem(f"buffer_store_dwordx4 {vr(d + 4 * n, 4)}, {'v9' if n < 4 else 'v10'}, {sr(SWS, 4)}, {sr(sDst + rnd)} offen offset:{(n % 4) * 1024} sc1", "ps")

        for rnd in range(3):
            g(f"s_add_u32 {sr(sT1)}, {sr(sRB)}, {16 * rnd}\ns_mul_i32 {sr(sSrc)}, {sr(sT1)}, 40960\ns_mov_b32 {sr(sDst + rnd)}, {sr(sSrc)}")
            load(rnd, SW2, "w2")
        g(f"""
        s_mul_i32 {sr(sSrc)}, {sr(sRB)}, {40 * 1280}
        s_lshr_b32 {sr(sT1)}, {sr(sRB)}, 2
        s_add_u32 {sr(sT1)}, {sr(sT1)}, {sr(sRB)}
        s_add_u32 {sr(sT1)}, {sr(sT1)}, 54
        s_mul_i32 {sr(sDst + 3)}, {sr(sT1)}, 40960
        """)
        load(3, SWO, "main")
        emit(0)
        g("s_barrier")
        self.stamp(1)
        g(f"""
        s_lshl_b32 {sr(sT1)}, {sr(sRB)}, 2
        s_cmp_lg_u32 {sr(sW)}, 0
        s_cselect_b32 {sr(sT1)}, {OOB}, {sr(sT1)}
        v_mov_b32 v2, 0
        v_mov_b32 v3, 1
        s_mov_b64 exec, 1
        """)
        g.vmem(f"buffer_store_dword v3, v2, {sr(SDBG, 4)}, {sr(sT1)} offen sc1", "cl")
        g("s_mov_b64 exec, -1")
        g.wait(lg="all")
        LR, LJ = self.lab("prem"), self.lab("pjoin")
        g(f"s_cmp_ge_u32 {sr(sRB)}, 6\ns_cbranch_scc1 {LR}")
        g(f"s_add_u32 {sr(sT1)}, {sr(sRB)}, 48\ns_mul_i32 {sr(sSrc)}, {sr(sT1)}, 40960\ns_mov_b32 {sr(sDst + 4)}, {sr(sSrc)}")
        st = g.state()
        load(4, SW2, "w2")
        g(f"s_branch {LJ}")
        g.restore(st)
        g.label(LR)
        g(f"""
        s_sub_u32 {sr(sT1)}, {sr(sRB)}, 6
        s_mul_i32 {sr(sSrc)}, {sr(sT1)}, {160 * 1280}
        s_mul_i32 {sr(sT1)}, {sr(sT1)}, 5
        s_add_u32 {sr(sT1)}, {sr(sT1)}, 58
        s_mul_i32 {sr(sDst + 4)}, {sr(sT1)}, 40960
        s_cmp_ge_u32 {sr(sRB)}, 10
        s_cselect_b32 {sr(sDst + 4)}, {OOB}, {sr(sDst + 4)}
        """)
        load(4, SWO, "rem")
        g.label(LJ)
        for rnd in range(1, 5):
            emit(rnd)
        self.stamp(2)
        for rnd in range(5):
            store(rnd)

    def h_stores(self, vl16):
        g = self.g
        for b in range(8):
            s2, t = b >> 1, b & 1
            g(f"s_add_u32 {sr(sT0)}, {sr(sHS if s2 < 2 else sSCALE)}, {(t * 54 + s2) * 1024}")
            g.vmem(f"buffer_store_dwordx4 {vr(self.gACC + 8 * b, 4)}, {vr(vl16)}, {sr(SWS, 4)}, {sr(sT0)} offen sc1", "stH")

    def build(self):
        g = self.g
        self.prologue()
        self.phase1()
        self.gate()
        g.vm, g.lg, g.vm_done, g.lg_done = [], [], 0, 0
        from gen2 import phase2
        phase2(self)
        g.label("Lend")
        g("s_endpgm")
        g.label("Lcode_end")
        bad = hazard_check(g.lines)
        for b in bad:
            print("HAZARD", b, file=sys.stderr)
        head = open("gated_mix__mha_block__dense_activation_squared_relu__prompt.s.ref").read().split("; Override launch")[0]
        txt = head + f"; @launch grid=(256,1,1) block=(512,1,1) lds={LDS_BYTES}\n"
        txt += f""".amdgcn_target "amdgcn-amd-amdhsa--gfx950"
.text
.globl {NAME}
.p2align 8
.type {NAME},@function
{NAME}:
"""
        body = g.text().replace("CODE_BYTES", str(self.o.code_bytes))
        txt += body
        txt += f""".section .rodata,"a"
.p2align 6
.amdhsa_kernel {NAME}
  .amdhsa_next_free_vgpr 256
  .amdhsa_next_free_sgpr 102
  .amdhsa_accum_offset 256
  .amdhsa_group_segment_fixed_size 0
  .amdhsa_kernarg_size 96
  .amdhsa_user_sgpr_count 2
  .amdhsa_user_sgpr_kernarg_segment_ptr 1
  .amdhsa_system_sgpr_workgroup_id_x 1
.end_amdhsa_kernel
"""
        return txt, bad


def options(argv=None):
    p = argparse.ArgumentParser()
    p.add_argument("-o", default="gated_mix__mha_block__dense_activation_squared_relu__prompt.s")
    p.add_argument("--stamps", type=int, default=0)
    p.add_argument("--code_prefetch", type=int, default=1)
    p.add_argument("--order", default="x0,w0,x1,w1/x2,w2/x3,w3/x4,w4/x5,w5/x6,w6/x7,w7/x8,w8/x9,w9/b0,b1/b2,b3/b4,b5")
    p.add_argument("--rot", type=int, default=1)
    p.add_argument("--aprio", type=int, default=1)
    p.add_argument("--gprio", type=int, default=2)
    p.add_argument("--bprio", type=int, default=0)
    p.add_argument("--wdepth", type=int, default=7)
    p.add_argument("--b1_stage", type=int, default=2)
    p.add_argument("--b2_stage", type=int, default=6)
    p.add_argument("--steps", default="3,6,5")
    p.add_argument("--force_fallback", type=int, default=0)
    p.add_argument("--split", default="4,4,4,4")
    p.add_argument("--orot", type=int, default=1)
    p.add_argument("--qsleep", type=int, default=1)
    p.add_argument("--osleep", type=int, default=1)
    p.add_argument("--diag", default="")
    p.add_argument("--diag_role", default="gemm")
    p.add_argument("--tlb", type=int, default=0)
    p.add_argument("--hack", default="")
    p.add_argument("--fine", default="att")
    p.add_argument("--prio", type=int, default=1)
    o = p.parse_args(argv)
    o.code_bytes = 0
    return o


def code_size(txt):
    import subprocess, tempfile, os, re
    d = tempfile.mkdtemp()
    open(d + "/k.s", "w").write(txt)
    r = subprocess.run(["clang", "-x", "assembler", "-target", "amdgcn-amd-amdhsa", "-mcpu=gfx950", "-c", d + "/k.s", "-o", d + "/k.o"],
                       capture_output=True, text=True)
    if r.returncode:
        print(r.stderr[:3000]); raise SystemExit(1)
    r = subprocess.run(["llvm-readelf", "-S", d + "/k.o"], capture_output=True, text=True)
    m = re.search(r"\.text\s+PROGBITS\s+\S+\s+\S+\s+(\S+)", r.stdout)
    return int(m.group(1), 16)


if __name__ == "__main__":
    o = options()
    o.code_bytes = 4096
    txt, _ = Gen(o).build()
    sz = code_size(txt)
    o.code_bytes = (sz - 512) & ~3
    txt, bad = Gen(o).build()
    open(o.o, "w").write(txt)
    print(f"wrote {o.o}: code {sz} bytes, {len(txt)} chars, hazards {len(bad)}")
```

```python
from asmlib import *
from gen import *

SB = (64, 80, 96, 112)
OA = (32, 48)
QM = (128, 132)
QR = (136, 138)
KM = (140, 144)
KR = (148, 152)
VF = (160, 168)
vIDX, vFL, vQm, vQr, vGa, vL16, vCA, vCD, vKm, vKr, vV0, vV1, vOm, vOr, vG = 17, 18, 19, 20, 21, 22, 23, 24, 28, 29, 30, 31, 4, 5, 10
HX = 40
HXOFF = NREC * REC
sQ, sGb, saKV, saPair, saRec, sO0, sO1, sFO = 76, 77, 78, 79, 96, 97, 52, 53


BARS = (8, 24, 48)


def rec(t):
    return (t % NREC) * REC


def s_mfmas(n, dst=None):
    qt, t = n & 1, n >> 1
    d = SB[n % 4] if dst is None else dst
    kr = KR[(t >> 1) & 1] + 2 * (t & 1)
    return [f"v_mfma_f32_32x32x8_bf16 {vr(d, 16)}, {vr(kr, 2)}, {vr(QR[qt], 2)}, 0",
            f"v_mfma_f32_32x32x16_bf16 {vr(d, 16)}, {vr(KM[t & 1], 4)}, {vr(QM[qt], 4)}, {vr(d, 16)}"]


def pv_mfmas(n):
    qt, t = n & 1, n >> 1
    p, v = SB[n % 4], VF[t & 1]
    return [f"v_smfmac_f32_32x32x32_bf16 {vr(OA[qt], 16)}, {vr(v + 4 * u, 4)}, {vr(p + 8 * u, 8)}, {vr(vIDX)}" for u in range(2)]


def koff_code(g, dst, t0, t1):
    g(f"""
    v_bfe_u32 {vr(t0)}, v0, 3, 2
    v_and_b32 {vr(t1)}, 3, v0
    v_lshl_add_u32 {vr(t0)}, {vr(t0)}, 2, {vr(t1)}
    v_bfe_u32 {vr(t1)}, v0, 2, 1
    v_lshlrev_b32 {vr(t1)}, 3, {vr(t1)}
    v_lshl_add_u32 {vr(dst)}, {vr(t0)}, 4, {vr(t1)}
    """)


def row_max(g, src, dst, tmp):
    g(f"v_max3_f32 {vr(dst)}, {vr(src)}, {vr(src + 1)}, {vr(src + 2)}")
    for r in range(3, 15, 2):
        g(f"v_max3_f32 {vr(dst)}, {vr(dst)}, {vr(src + r)}, {vr(src + r + 1)}")
    g(f"v_max_f32 {vr(dst)}, {vr(dst)}, {vr(src + 15)}")


def both_halves(g, a, b):
    g(f"v_mov_b32 {vr(b)}, {vr(a)}\ns_nop 1\nv_permlane32_swap_b32 {vr(a)}, {vr(b)}")


def kv_scalar(G, sKV, sPair, sRec, first):
    G.g(f"""
    s_lshl_b32 {sr(sPair)}, {sr(sJ)}, 2
    s_add_u32 {sr(sPair)}, {sr(sPair)}, {sr(sTT)}
    s_add_u32 {sr(sPair)}, {sr(sPair)}, {first}
    s_and_b32 {sr(sPair)}, {sr(sPair)}, 31
    s_mul_i32 {sr(sKV)}, {sr(sH)}, {64 * 2560}
    s_add_u32 {sr(sKV)}, {sr(sKV)}, {KVOFF}
    s_mul_i32 {sr(sRec)}, {sr(sTT)}, {2 * REC}
    """)


def kv_columns(G, vtmp, vdst):
    G.g(f"""
    s_mul_i32 {sr(sT0)}, {sr(sH)}, 20
    s_add_u32 {sr(sT1)}, {sr(sT0)}, 19
    s_lshr_b32 {sr(sT0)}, {sr(sT0)}, 6
    s_lshr_b32 {sr(sT1)}, {sr(sT1)}, 6
    s_sub_u32 {sr(sT1)}, {sr(sT1)}, {sr(sT0)}
    v_and_b32 {vr(vdst)}, 1, v0
    v_mul_u32_u24 {vr(vdst)}, {sr(sT1)}, {vr(vdst)}
    v_add_u32 {vr(vdst + 1)}, {sr(sT0)}, {vr(vdst)}
    v_bfe_u32 {vr(vtmp)}, v0, 1, 1
    v_mul_u32_u24 {vr(vtmp)}, 10, {vr(vtmp)}
    v_add3_u32 {vr(vdst)}, {vr(vdst + 1)}, {vr(vtmp)}, 10
    """)


def kv_load(G, vl, sKV, sPair, sRec, groups, tag):
    g = G.g
    for grp in groups:
        g(f"s_mul_i32 {sr(sT1)}, {sr(sPair)}, 5120\ns_add_u32 {sr(sT1)}, {sr(sT1)}, {sr(sKV)}")
        for tau in range(2):
            for q in range(2):
                G.dma(SWS, vl, tau * 2560 + q * 1024, rec(8 * grp + tau) + q * 1024, tag, m0base=sRec, sbase=sT1, flags="sc1")
        g("s_mov_b32 exec_hi, 0")
        for tau in range(2):
            G.dma(SWS, vl, tau * 2560 + 2048, rec(8 * grp + tau) + 2048, tag, m0base=sRec, sbase=sT1, flags="sc1")
        g(f"s_mov_b32 exec_hi, -1\ns_add_u32 {sr(sPair)}, {sr(sPair)}, 4\ns_and_b32 {sr(sPair)}, {sr(sPair)}, 31")


def attn_setup(G):
    g = G.g
    kv_scalar(G, saKV, saPair, saRec, 0)
    kv_columns(G, 3, 64)
    g(f"""
    v_cmp_gt_u32 vcc, 4, v0
    v_lshlrev_b32 {vr(vL16)}, 4, v0
    v_lshrrev_b32 v66, 5, v0
    v_cndmask_b32 v2, v65, v64, vcc
    v_lshlrev_b32 v2, 5, v2
    v_add_u32 v2, {sr(saPair)}, v2
    v_lshlrev_b32 {vr(vFL)}, 7, v2
    v_and_b32 v67, 15, v0
    v_bfe_u32 v68, v0, 4, 1
    v_mul_u32_u24 v2, 1280, v68
    v_lshl_add_u32 {vr(vQr)}, v67, 4, v2
    v_lshl_add_u32 {vr(vQm)}, v66, 8, {vr(vQr)}
    v_lshlrev_b32 v2, 7, v68
    v_lshl_add_u32 {vr(vGa)}, v67, 2, v2
    s_lshl_b32 {sr(sT0)}, {sr(sH)}, 6
    s_lshl_b32 {sr(sT1)}, {sr(sJ)}, 3
    s_lshl_b32 {sr(sT2)}, {sr(sW)}, 1
    s_add_u32 {sr(sT1)}, {sr(sT1)}, {sr(sT2)}
    s_add_u32 {sr(sT0)}, {sr(sT0)}, {sr(sT1)}
    s_mul_i32 {sr(sQ)}, {sr(sT0)}, 1280
    s_add_u32 {sr(sQ)}, {sr(sQ)}, {QOFF}
    s_lshl_b32 {sr(sGb)}, {sr(sT1)}, 7
    s_add_u32 {sr(sGb)}, {sr(sGb)}, {GOFF}
    v_and_b32 v69, 31, v0
    v_mul_u32_u24 v2, 40960, v68
    v_lshl_add_u32 {vr(vOr)}, v67, 4, v2
    v_lshl_add_u32 {vr(vOm)}, v66, 8, {vr(vOr)}
    s_lshr_b32 {sr(sT0)}, {sr(sH)}, 1
    s_and_b32 {sr(sT0)}, {sr(sT0)}, 3
    s_and_b32 {sr(sT1)}, {sr(sH)}, 1
    s_lshl_b32 {sr(sT3)}, {sr(sT0)}, 10
    s_lshl_b32 {sr(sT4)}, {sr(sT1)}, 9
    s_add_u32 {sr(sT3)}, {sr(sT3)}, {sr(sT4)}
    v_add_u32 {vr(vOm)}, {sr(sT3)}, {vr(vOm)}
    s_lshl_b32 {sr(sT3)}, {sr(sT0)}, 8
    s_lshl_b32 {sr(sT4)}, {sr(sT1)}, 3
    s_add_u32 {sr(sT3)}, {sr(sT3)}, {sr(sT4)}
    s_add_u32 {sr(sT3)}, {sr(sT3)}, 4096
    v_add_u32 {vr(vOr)}, {sr(sT3)}, {vr(vOr)}
    s_lshl_b32 {sr(sT2)}, {sr(sJ)}, 2
    s_add_u32 {sr(sT2)}, {sr(sT2)}, {sr(sW)}
    s_mul_i32 {sr(sT3)}, {sr(sT2)}, {4 * 20480}
    s_lshr_b32 {sr(sT4)}, {sr(sH)}, 3
    s_mul_i32 {sr(sT4)}, {sr(sT4)}, 5120
    s_add_u32 {sr(sT3)}, {sr(sT3)}, {sr(sT4)}
    s_add_u32 {sr(sO0)}, {sr(sT3)}, {OOFF}
    s_add_u32 {sr(sO1)}, {sr(sO0)}, 20480
    s_lshl_b32 {sr(sT1)}, {sr(sT2)}, 5
    s_add_u32 {sr(sT1)}, {sr(sT1)}, {sr(sH)}
    s_lshl_b32 {sr(sT1)}, {sr(sT1)}, 7
    s_add_u32 {sr(sFO)}, {sr(sT1)}, {FO}
    """)
    G.const_regs(vCA, vCD)
    koff_code(g, 2, 3, 70)
    g(f"""
    v_lshl_add_u32 {vr(vKm)}, v66, 8, v2
    v_cmp_gt_u32 vcc, 32, v0
    v_add_u32 v2, 1024, v2
    v_mov_b32 v3, {2560 + 256 + 64}
    v_cndmask_b32 {vr(vKr)}, v3, v2, vcc
    v_mov_b32 {vr(vIDX)}, 0xdddddddd
    """)
    for u, dst in enumerate((vV0, vV1)):
        g(f"""
        v_add_u32 v2, {2 * u}, v66
        v_mul_u32_u24 v3, 320, v2
        v_lshl_add_u32 v3, v69, 4, v3
        v_add_u32 v3, 1280, v3
        v_lshlrev_b32 v2, 2, v2
        v_add_u32 v2, 12, v2
        v_and_b32 v2, 15, v2
        v_lshlrev_b32 v2, 4, v2
        v_add_u32 v2, 2560, v2
        v_cmp_gt_u32 vcc, 28, v69
        v_mov_b32 v70, {2560 + (9 if u == 0 else 1) * 16}
        v_mov_b32 v71, {2560 + 256 + (8 if u == 0 else 0) * 16}
        v_cndmask_b32 v2, v2, v70, vcc
        v_cmp_eq_u32 vcc, 20, v69
        s_nop 1
        v_cndmask_b32 v2, v2, v71, vcc
        v_cmp_gt_u32 vcc, 20, v69
        s_nop 1
        v_cndmask_b32 {vr(dst)}, v2, v3, vcc
        """)
    for r in range(32):
        if not HX <= OA[0] + r < HX + 8:
            g(f"v_mov_b32 {vr(OA[0] + r)}, 0")
    o = G.o
    g(f"""
    s_lshl_b32 {sr(sT0)}, {sr(sRT)}, 1
    v_lshrrev_b32 v2, 1, v0
    v_min_u32 v2, 14, v2
    v_and_b32 v3, 1, v0
    v_lshl_add_u32 v2, v2, 6, v3
    v_add_u32 v2, {sr(sT0)}, v2
    s_lshl_b32 {sr(sT0)}, {sr(sJ)}, 3
    s_add_u32 {sr(sT0)}, {sr(sT0)}, 896
    v_cmp_gt_u32 vcc, 32, v0
    v_and_b32 v3, 7, v0
    v_add_u32 v3, {sr(sT0)}, v3
    v_cndmask_b32 v2, v3, v2, vcc
    v_subrev_u32 v3, 40, v0
    v_lshlrev_b32 v3, 2, v3
    v_add_u32 v3, {sr(sTT)}, v3
    s_mul_i32 {sr(sT0)}, {sr(sTT)}, 5
    v_min_u32 v70, 58, v0
    v_cmp_gt_u32 vcc, 54, v0
    v_add_u32 v70, {sr(sT0)}, v70
    s_lshr_b32 {sr(sT0)}, {sr(sCP)}, 2
    v_cndmask_b32 v3, v70, v3, vcc
    s_sub_u32 {sr(sT0)}, 255, {sr(sT0)}
    s_lshl_b32 {sr(sT0)}, {sr(sT0)}, 2
    s_and_b32 {sr(sT1)}, {sr(sCP)}, 3
    s_add_u32 {sr(sT0)}, {sr(sT0)}, {sr(sT1)}
    v_lshlrev_b32 v3, 3, v3
    v_cmp_gt_u32 vcc, 40, v0
    v_sub_u32 v3, {sr(sT0)}, v3
    s_nop 0
    v_cndmask_b32 v2, v3, v2, vcc
    v_lshlrev_b32 v2, 7, v2
    v_add_u32 {vr(HX + 4)}, {FH}, v2
    v_lshrrev_b32 v2, 2, v0
    v_mul_u32_u24 v2, 160, v2
    v_and_b32 v3, 3, v0
    v_lshl_add_u32 v2, v3, 3, v2
    s_add_u32 {sr(sT0)}, {sr(saRec)}, {40 * REC}
    v_add_u32 {vr(HX + 5)}, {sr(sT0)}, v2
    s_add_u32 {sr(sT1)}, {sr(sTT)}, {sr(sCP) if o.orot else 0}
    s_and_b32 {sr(sT1)}, {sr(sT1)}, 3
    s_lshl_b32 {sr(sT1)}, {sr(sT1)}, 4
    s_lshl_b32 {sr(sT0)}, {sr(sRT)}, 6
    s_add_u32 {sr(sT0)}, {sr(sT0)}, {sr(sT1)}
    v_add_u32 v2, {sr(sT0)}, v67
    v_mul_u32_u24 v2, 1280, v2
    v_lshrrev_b32 v3, 4, v0
    v_lshl_add_u32 v2, v3, 3, v2
    s_mul_i32 {sr(sT0)}, {sr(sCP)}, 160
    v_add_u32 {vr(HX + 7)}, {sr(sT0)}, v2
    s_mul_i32 {sr(sT0)}, {sr(sTT)}, 20480
    s_add_u32 {sr(sT0)}, {sr(sT0)}, {REDOFF}
    v_add_u32 {vr(HX + 6)}, {sr(sT0)}, {vr(vL16)}
    s_lshl_b32 {sr(sT0)}, {sr(sRT)}, 5
    s_lshl_b32 {sr(sT1)}, {sr(sTT)}, 3
    s_add_u32 {sr(sT0)}, {sr(sT0)}, {sr(sT1)}
    s_add_u32 {sr(sT0)}, {sr(sT0)}, {FO // 128}
    v_and_b32 v2, 7, v0
    v_add_u32 v2, {sr(sT0)}, v2
    v_lshlrev_b32 {vr(HX)}, 7, v2
    """)
    for sg in range(3):
        g(f"""
        s_add_u32 {sr(sT0)}, {sr(sTT)}, {3 - sg}
        s_and_b32 {sr(sT0)}, {sr(sT0)}, 3
        s_mul_i32 {sr(sT0)}, {sr(sT0)}, 20480
        s_add_u32 {sr(sT0)}, {sr(sT0)}, {REDOFF + sg * 5120}
        v_add_u32 {vr(HX + 1 + sg)}, {sr(sT0)}, {vr(vL16)}
        """)
    g(f"""
    s_lshl_b32 {sr(sT0)}, {sr(sTT)}, 11
    s_add_u32 {sr(sT0)}, {sr(sT0)}, {HXOFF}
    v_add_u32 v1, {sr(sT0)}, {vr(vL16)}
    """)


def attention(G):
    g, o = G.g, G.o
    split = [int(x) for x in o.split.split(",")]
    g.label("Lattn")
    G.const_write(vCA, vCD, [0, 1, 2])
    g(f"v_add_u32 v6, {sr(saRec)}, {vr(vKm)}\nv_add_u32 v7, {sr(saRec)}, {vr(vKr)}\nv_add_u32 {vr(vCA)}, {24 * REC}, {vr(vCA)}")
    G.poll(vFL, 3, sleep=o.qsleep)
    G.stamp(4)
    for u in range(2):
        g.vmem(f"buffer_load_dwordx4 {vr(QM[u], 4)}, {vr(vQm)}, {sr(SWS, 4)}, {sr(sQ)} offen offset:{u * 512} sc1", "q")
    g.vmem(f"buffer_load_dwordx4 {vr(QR[0], 4)}, {vr(vQr)}, {sr(SWS, 4)}, {sr(sQ)} offen offset:1024 sc1", "q")
    kv_load(G, vL16, saKV, saPair, saRec, [0], "kv0")
    g.wait(vm="q")
    for r in range(2):
        g(f"v_swap_b32 {vr(QM[0] + 2 + r)}, {vr(QM[1] + r)}")
    g("s_mov_b32 exec_lo, 0")
    for r in range(4):
        g(f"v_mov_b32 {vr(QR[0] + r)}, 0")
    g("s_mov_b32 exec_lo, -1")
    g.wait(vm="all", lg="all")
    g.lds(f"ds_read2st64_b64 {vr(KR[0], 4)}, v7 offset0:0 offset1:6", "k0")
    g.lds(f"ds_read2st64_b64 {vr(KM[0], 4)}, v6 offset0:0 offset1:1", "k0")
    g.wait(lg="all")
    a0, a1 = s_mfmas(0), s_mfmas(1)
    g(a0[0]); g(a1[0]); g(a0[1]); g(a1[1])
    if o.b0_early:
        g("s_barrier")
        G.stamp(5)

    base = {vKm: 0, vKr: 0, vV0: 0, vV1: 0}

    def rebase(reg, off, span, lim):
        if not (0 <= off - base[reg] and off + span - base[reg] <= lim):
            g(f"v_add_u32 {vr(reg)}, {(off - base[reg]) & 0xFFFFFFFF}, {vr(reg)}")
            base[reg] = off
        return off - base[reg]

    def rdKm(t):
        b = rebase(vKm, rec(t), 512, 255 * 512) // 512
        g.lds(f"ds_read2st64_b64 {vr(KM[t & 1], 4)}, {vr(vKm)} offset0:{b} offset1:{b + 1}", ("km", t))

    def rdKr(t):
        b = rebase(vKr, rec(t), REC, 255 * 512) // 512
        g.lds(f"ds_read2st64_b64 {vr(KR[(t >> 1) & 1], 4)}, {vr(vKr)} offset0:{b} offset1:{b + 6}", ("kr", t))

    def rdV(t, u):
        r = (vV0, vV1)[u]
        g.lds(f"ds_read_b128 {vr(VF[t & 1] + 4 * u, 4)}, {vr(r)} offset:{rebase(r, rec(t), 0, 65535)}", ("v", t))

    def after_b0():
        rdKr(0); rdKm(0); rdKm(1)
        G.const_write(vCA, vCD, [0, 1, 2])
        for k in range(2):
            g.lds(f"ds_write_b128 v1, {vr(HX + 4 * k, 4)} offset:{1024 * k}", "hx")

    if o.b0_early:
        after_b0()
        g("s_nop 1")
    else:
        g("s_nop 10")
    for qt in range(2):
        row_max(g, SB[qt], 6 + 2 * qt, None)
    for qt in range(2):
        both_halves(g, 6 + 2 * qt, 7 + 2 * qt)
    for qt in range(2):
        g(f"v_max_f32 {vr(6 + 2 * qt)}, {vr(6 + 2 * qt)}, {vr(7 + 2 * qt)}")
    g("s_mov_b32 exec_lo, 0")
    for qt in range(2):
        g(f"v_cvt_pk_bf16_f32 {vr(QR[qt])}, -{vr(6 + 2 * qt)}, 0")
    g("s_mov_b32 exec_lo, -1")
    if not o.b0_early:
        g("s_barrier")
        G.stamp(5)
        after_b0()
    g(f"s_setprio {o.prio}")
    g.wait(lg=("km", 0))
    g(a0[0]); g(a0[1])
    g.wait(lg="hx")
    for r in range(8):
        g(f"v_mov_b32 {vr(HX + r)}, 0")
    g("s_nop 2")
    for n in range(128):
        qt, t = n & 1, n >> 1
        cur = SB[n % 4]
        m = (s_mfmas(n + 1) if n < 127 else [None, None]) + (pv_mfmas(n - 1) if n > 0 else [None, None])
        ex = [[], [], [], []]
        if qt == 0:
            ex[1].append(lambda: rdV(t, 0))
            ex[2].append(lambda: rdV(t, 1))
            if t + 1 < 64:
                ex[3].append(lambda: g.wait(lg=[("km", t + 1), ("kr", (t + 1) & ~1)]))
        else:
            ex[1].append(lambda: g.wait(lg=("v", t)))
            if t + 2 < 64:
                if t + 2 in BARS:
                    def bar():
                        g("s_barrier")
                        if t + 2 == 48:
                            for q2 in range(2):
                                g.vmem(f"buffer_load_dword {vr(vG + q2)}, {vr(vGa)}, {sr(SWS, 4)}, {sr(sGb)} offen offset:{q2 * 64} sc1", "g")
                    ex[1].append(bar)
                if (t + 2) % 8 == 0 and o.fine == "att":
                    ex[1].append(lambda: G.stamp(8 + (t + 2) // 8))
                ex[1].append(lambda: rdKm(t + 2))
                if t % 2 == 0:
                    ex[2].append(lambda: rdKr(t + 2))
        e = 0
        for i in range(4):
            if m[i]:
                g(m[i])
            for f in ex[i]:
                f()
            for _ in range(split[i]):
                g(f"v_exp_f32 {vr(cur + e)}, {vr(cur + e)}"); e += 1
    m = pv_mfmas(127)
    g(m[0]); g("s_nop 0"); g(m[1])
    g("s_setprio 0")
    g.wait(vm="g")
    G.stamp(6)
    g("v_mov_b32 v8, 0\nv_mov_b32 v9, 0\ns_nop 0")
    for qt in range(2):
        g(f"v_mov_b32 {vr(12 + 2 * qt)}, {vr(OA[qt] + 8)}\nv_mov_b32 {vr(13 + 2 * qt)}, {vr(OA[qt] + 8)}")
        for r in range(0, 12, 2):
            g(f"v_pk_fma_f32 v[8:9], {vr(OA[qt] + r, 2)}, 0, v[8:9] op_sel_hi:[1,0,1]")
        g(f"v_permlane32_swap_b32 {vr(12 + 2 * qt)}, {vr(13 + 2 * qt)}")
    g(f"""
    v_add_f32 v8, v8, v9
    v_min_f32 v2, v13, v15
    v_max_f32 v3, v13, v15
    v_add_f32 v2, v2, v8
    v_cmp_nle_f32 vcc, {f32hex(2.0 ** -30)}, v2
    s_mov_b64 {sr(sA + 2, 2)}, vcc
    v_cmp_nge_f32 vcc, {f32hex(2.0 ** 60)}, v3
    s_or_b64 vcc, vcc, {sr(sA + 2, 2)}
    """)
    g("s_branch Lfallback" if o.force_fallback else "s_cbranch_vccnz Lfallback")
    g.label("Lnorm")
    for qt in range(2):
        g(f"v_rcp_f32 {vr(12 + 2 * qt)}, {vr(13 + 2 * qt)}")
    g("s_nop 0")
    for qt in range(2):
        g(f"v_mul_f32 {vr(12 + 2 * qt)}, {vr(12 + 2 * qt)}, {vr(vG + qt)}")
    for qt in range(2):
        a = OA[qt]
        for r in range(0, 12, 2):
            g(f"v_pk_mul_f32 {vr(a + r, 2)}, {vr(a + r, 2)}, {vr(12 + 2 * qt, 2)} op_sel_hi:[1,0]")
        for q in range(6):
            g(f"v_cvt_pk_bf16_f32 {vr(a + q)}, {vr(a + 2 * q)}, {vr(a + 2 * q + 1)}")
        g(f"buffer_store_dwordx4 {vr(a, 4)}, {vr(vOm)}, {sr(SWS, 4)}, {sr((sO0, sO1)[qt])} offen sc1")
    g("s_mov_b32 exec_hi, 0")
    for qt in range(2):
        g(f"buffer_store_dwordx2 {vr(OA[qt] + 4, 2)}, {vr(vOr)}, {sr(SWS, 4)}, {sr((sO0, sO1)[qt])} offen sc1")
    g("s_mov_b32 exec_hi, -1")
    g("s_waitcnt vmcnt(0)")
    G.set_flag(f"s_mov_b32 {sr(sT1)}, {sr(sFO)}", 2, 3)
    G.stamp(7)
    G.dump_stamps()
    g("s_endpgm")
    fallback(G)


def fallback(G):
    g = G.g
    sK, sN = sA, sA + 1
    vMx = (20, 22)
    g.label("Lfallback")
    koff_code(g, 24, 2, 3)
    g(f"""
    v_lshrrev_b32 v6, 5, v0
    v_and_b32 v13, 31, v0
    v_lshl_add_u32 v25, v6, 8, v24
    v_mul_u32_u24 v26, 320, v6
    v_lshl_add_u32 v26, v13, 4, v26
    v_cmp_gt_u32 vcc, 20, v13
    s_mov_b64 {sr(sA + 4, 2)}, vcc
    v_cmp_eq_u32 vcc, 20, v13
    v_mov_b32 v2, 0x3f803f80
    v_mov_b32 v20, 0xff800000
    v_mov_b32 v22, 0xff800000
    """)
    for r in range(8):
        g(f"v_cndmask_b32 {vr(VF[0] + r)}, 0, v2, vcc")
    g("s_mov_b32 exec_lo, 0")
    for r in range(4):
        g(f"v_mov_b32 {vr(QR[0] + r)}, 0")
    g("s_mov_b32 exec_lo, -1")
    for r in range(32):
        g(f"v_mov_b32 {vr(OA[0] + r)}, 0")
    for ps in range(2):
        L = G.lab("fb")
        g(f"s_mul_i32 {sr(sK)}, {sr(sH)}, {64 * 2560}\ns_add_u32 {sr(sK)}, {sr(sK)}, {KVOFF}\ns_mov_b32 {sr(sN)}, 64")
        g.label(L)
        for u in range(2):
            g(f"buffer_load_dwordx2 {vr(KM[0] + 2 * u, 2)}, v25, {sr(SWS, 4)}, {sr(sK)} offen offset:{512 * u} sc1")
        g(f"buffer_load_dwordx2 {vr(KR[0], 2)}, v24, {sr(SWS, 4)}, {sr(sK)} offen offset:1024 sc1")
        if ps:
            g(f"s_mov_b64 exec, {sr(sA + 4, 2)}")
            for u in range(2):
                g(f"buffer_load_dwordx4 {vr(VF[0] + 4 * u, 4)}, v26, {sr(SWS, 4)}, {sr(sK)} offen offset:{1280 + 640 * u} sc1")
            g("s_mov_b64 exec, -1")
        g("s_waitcnt vmcnt(0)")
        a0, a1 = s_mfmas(0), s_mfmas(1)
        g(a0[0]); g(a1[0]); g(a0[1]); g(a1[1])
        g("s_nop 11")
        for qt in range(2):
            if ps == 0:
                row_max(g, SB[qt], 2, None)
                g(f"v_max_f32 {vr(vMx[qt])}, {vr(vMx[qt])}, v2")
            else:
                for r in range(16):
                    g(f"v_sub_f32 {vr(SB[qt] + r)}, {vr(SB[qt] + r)}, {vr(vMx[qt])}")
                for r in range(16):
                    g(f"v_exp_f32 {vr(SB[qt] + r)}, {vr(SB[qt] + r)}")
                g("s_nop 1")
                for x in pv_mfmas(qt):
                    g(x)
        g(f"s_add_u32 {sr(sK)}, {sr(sK)}, 2560\ns_sub_u32 {sr(sN)}, {sr(sN)}, 1\ns_cmp_lg_u32 {sr(sN)}, 0\ns_cbranch_scc1 {L}")
        if ps == 0:
            for qt in range(2):
                both_halves(g, vMx[qt], vMx[qt] + 1)
                g(f"v_max_f32 {vr(vMx[qt])}, {vr(vMx[qt])}, {vr(vMx[qt] + 1)}")
    g("s_nop 11")
    for qt in range(2):
        g(f"v_mov_b32 {vr(12 + 2 * qt)}, {vr(OA[qt] + 8)}")
        both_halves(g, 12 + 2 * qt, 13 + 2 * qt)
    g("s_branch Lnorm")


GA, BI = 64, 4
RING = [r for r in range(24, 64, 4)] + [r for r in range(144, 248, 4)]
vL, vLb, vGG = 248, 249, 252
sWp, sgKV, sgPair, sgRec, sHb = sTT, 73, 74, 75, 76
sPa, sPb, sPc, sPd, sPdst, sPcol, sOwn, sFH = 96, 97, 98, 99, 48, 49, 50, 51
SPK = SCODE
vgFL, vgPK = 11, 3


def gemm_setup(G):
    g, o = G.g, G.o
    kv_scalar(G, sgKV, sgPair, sgRec, 4)
    kv_columns(G, 28, 30)
    g(f"""
    v_lshrrev_b32 v28, 2, v0
    v_min_u32 v28, 6, v28
    v_lshlrev_b32 v28, 2, v28
    v_add_u32 v28, {sr(sgPair)}, v28
    v_and_b32 v28, 31, v28
    v_lshl_add_u32 v28, v30, 5, v28
    v_lshlrev_b32 {vr(vgFL)}, 7, v28
    v_mul_u32_u24 v28, 26, v0
    v_lshrrev_b32 v28, 8, v28
    v_mul_u32_u24 v28, {1280 - 160}, v28
    v_lshl_add_u32 {vr(vgPK)}, v0, 4, v28
    s_add_u32 {sr(sOwn)}, {sr(sWp)}, {sr(sCP) if o.orot else 0}
    s_and_b32 {sr(sOwn)}, {sr(sOwn)}, 3
    """)
    for sg in range(4):
        g(f"""
        s_add_u32 {sr(sT0)}, {sr(sOwn)}, {1 + sg}
        s_and_b32 {sr(sT0)}, {sr(sT0)}, 3
        s_lshl_b32 {sr(sT1)}, {sr(sRT)}, 2
        s_add_u32 {sr(sHb + sg)}, {sr(sT0)}, {sr(sT1)}
        """)
    LW, LJ = G.lab("pw2"), G.lab("pj")
    g(f"""
    s_lshl_b32 {sr(sT0)}, {sr(sCS)}, 4
    s_add_u32 {sr(sT0)}, {sr(sT0)}, {sr(sRB)}
    s_lshl_b32 {sr(sFH)}, {sr(sT0)}, 2
    s_add_u32 {sr(sFH)}, {sr(sFH)}, {sr(sWp)}
    s_lshl_b32 {sr(sFH)}, {sr(sFH)}, 7
    s_add_u32 {sr(sFH)}, {sr(sFH)}, {FH}
    s_sub_u32 {sr(sT0)}, 255, {sr(sT0)}
    s_lshr_b32 {sr(sT1)}, {sr(sT0)}, 1
    s_and_b32 {sr(sT0)}, {sr(sT0)}, 1
    s_lshl_b32 {sr(sT0)}, {sr(sT0)}, 2
    s_add_u32 {sr(sT0)}, {sr(sT0)}, {sr(sWp)}
    s_mul_i32 {sr(sPdst)}, {sr(sT1)}, 40960
    s_mul_i32 {sr(sT2)}, {sr(sT0)}, 5120
    s_add_u32 {sr(sPdst)}, {sr(sPdst)}, {sr(sT2)}
    s_add_u32 {sr(sPdst)}, {sr(sPdst)}, {WPOFF}
    s_mul_i32 {sr(sPcol)}, {sr(sT0)}, 160
    s_mov_b32 {sr(SPK + 3)}, 0x20000
    s_cmp_lt_u32 {sr(sT1)}, 54
    s_cbranch_scc1 {LW}
    s_mov_b64 {sr(SPK, 2)}, {sr(SWO, 2)}
    s_mov_b32 {sr(SPK + 2)}, {640 * 1280}
    s_cmp_ge_u32 {sr(sT1)}, 74
    s_cselect_b32 {sr(sPdst)}, {OOB}, {sr(sPdst)}
    s_sub_u32 {sr(sT1)}, {sr(sT1)}, 54
    s_mul_i32 {sr(sT2)}, {sr(sT1)}, 205
    s_lshr_b32 {sr(sT2)}, {sr(sT2)}, 10
    s_mul_i32 {sr(sT3)}, {sr(sT2)}, 5
    s_sub_u32 {sr(sT3)}, {sr(sT1)}, {sr(sT3)}
    s_mul_i32 {sr(sT2)}, {sr(sT2)}, 160
    s_mul_i32 {sr(sT4)}, {sr(sT3)}, 40
    s_cmp_eq_u32 {sr(sT3)}, 4
    s_cselect_b32 {sr(sT4)}, 16, {sr(sT4)}
    s_cselect_b32 {sr(sPa)}, 20, 8
    s_cselect_b32 {sr(sPb)}, 80, 20
    s_cselect_b32 {sr(sPc)}, 40, 4
    s_add_u32 {sr(sPd)}, {sr(sT2)}, {sr(sT4)}
    s_branch {LJ}
    """)
    g.label(LW)
    g(f"""
    s_mov_b64 {sr(SPK, 2)}, {sr(SW2, 2)}
    s_mov_b32 {sr(SPK + 2)}, {1728 * 1280}
    s_mov_b32 {sr(sPa)}, 16
    s_mov_b32 {sr(sPb)}, 8
    s_mov_b32 {sr(sPc)}, 4
    s_lshl_b32 {sr(sPd)}, {sr(sT1)}, 5
    """)
    g.label(LJ)
    for r in (sPa, sPb, sPc, sPd):
        g(f"s_mul_i32 {sr(r)}, {sr(r)}, 1280")
    g(f"""
    s_add_u32 {sr(sPd)}, {sr(sPd)}, {sr(sPcol)}
    s_lshl_b32 {sr(sT0)}, {sr(sRB)}, 3
    s_lshl_b32 {sr(sT1)}, {sr(sTT)}, 1
    s_add_u32 {sr(sT0)}, {sr(sT0)}, {sr(sT1)}
    s_mul_i32 {sr(sT0)}, {sr(sT0)}, 54
    s_lshl_b32 {sr(sT1)}, {sr(sCS)}, 2
    s_add_u32 {sr(sT0)}, {sr(sT0)}, {sr(sT1)}
    s_lshl_b32 {sr(sT0)}, {sr(sT0)}, 10
    s_add_u32 {sr(sT0)}, {sr(sT0)}, {HOFF}
    s_cmp_ge_u32 {sr(sCS)}, 14
    s_cselect_b32 {sr(sHS)}, {OOB}, {sr(sT0)}
    s_cmp_ge_u32 {sr(sCS)}, 13
    s_cselect_b32 {sr(sSCALE)}, {OOB}, {sr(sT0)}
    """)


def gemm(G):
    g, o = G.g, G.o
    steps = [int(x) for x in o.steps.split(",")]
    assert sum(steps) == 14 and len(steps) == 3 and steps[2] <= 4
    sWb, sWl, sWo, sOb = sA, sA + 1, sA + 2, SB1
    kv = lambda groups, tag: kv_load(G, vL, sgKV, sgPair, sgRec, groups, tag)
    g.label("Lgemm")
    vFO, vRR, vFH, vTR, vRW, vOut, vB2, vZ = 0, 1, 4, 5, 250, 251, 8, 10
    g(f"""
    v_lshlrev_b32 {vr(vL)}, 4, v0
    v_add_u32 {vr(vLb)}, 4096, {vr(vL)}
    s_lshl_b32 {sr(sT0)}, {sr(sTT)}, 11
    s_add_u32 {sr(sT0)}, {sr(sT0)}, {HXOFF}
    v_add_u32 v12, {sr(sT0)}, {vr(vL)}
    v_and_b32 v13, 15, v0
    v_lshlrev_b32 v13, 2, v13
    v_mov_b32 v14, 0
    v_mov_b32 v15, 1
    s_barrier
    """)
    G.poll(vgFL, 2, sleep=2)
    G.stamp(4)
    kv([1, 2], "kv1")
    g("s_mov_b32 exec_hi, 0xff")
    for q in range(8):
        g(f"s_mov_b32 {sr(sT1)}, {sr(sPd)}")
        for bit, r in ((4, sPa), (2, sPb), (1, sPc)):
            if q & bit:
                g(f"s_add_u32 {sr(sT1)}, {sr(sT1)}, {sr(r)}")
        G.dma(SPK, vgPK, 0, (40 + (q >> 2)) * REC + (q & 3) * 640, "pk", m0base=sgRec, sbase=sT1)
    g("s_mov_b32 exec_hi, -1")
    g.wait(vm="kv1")
    if o.kv34_early:
        kv([3, 4], "kv2")
    g("s_barrier")
    g.lds("ds_read_b128 v[4:7], v12 offset:1024", "hx")
    g.lds("ds_read_b128 v[0:3], v12", "hx")
    if not o.kv34_early:
        kv([3, 4], "kv2")
    g.wait(vm="pk", lg="hx")
    for n in range(5):
        for u in range(2):
            g.lds(f"ds_read_b64_tr_b16 {vr(96 + 4 * n + 2 * u, 2)}, {vr(vTR)} offset:{u * REC + n * 32}", "pr")
    g.lds(f"ds_read_b64 {vr(vRW, 2)}, v12 offset:1032", "hx")
    g.wait(lg="all")
    kv([5], "kv2")
    G.h_stores(vL)
    for n in range(5):
        g.vmem(f"buffer_store_dwordx4 {vr(96 + 4 * n, 4)}, {vr(vL if n < 4 else vLb)}, {sr(SWS, 4)}, {sr(sPdst)} offen offset:{(n % 4) * 1024} sc1", "ps")
    for sg in range(4):
        g(f"s_lshl_b32 {sr(sT0)}, {sr(sHb + sg)}, 6\ns_add_u32 {sr(sPa + sg)}, {sr(sT0)}, {GOFF}")
        g(f"""
        s_mul_i32 {sr(sT0)}, {sr(sHb + sg)}, 20480
        s_mul_i32 {sr(sT1)}, {sr(sWp)}, 5120
        s_add_u32 {sr(sT0)}, {sr(sT0)}, {sr(sT1)}
        s_add_u32 {sr(sOb + sg)}, {sr(sT0)}, {OOFF}
        s_mul_i32 {sr(sHb + sg)}, {sr(sHb + sg)}, 54
        s_add_u32 {sr(sHb + sg)}, {sr(sHb + sg)}, {sr(sWp)}
        s_lshl_b32 {sr(sHb + sg)}, {sr(sHb + sg)}, 10
        s_add_u32 {sr(sHb + sg)}, {sr(sHb + sg)}, {HOFF}
        """)
    g(f"""
    s_mul_i32 {sr(sWb)}, {sr(sWp)}, 40960
    s_mul_i32 {sr(sT0)}, {sr(sCP)}, 5120
    s_add_u32 {sr(sWb)}, {sr(sWb)}, {sr(sT0)}
    s_add_u32 {sr(sWb)}, {sr(sWb)}, {WPOFF}
    s_mul_i32 {sr(sWo)}, {sr(sWp)}, {4 * 40960}
    s_add_u32 {sr(sWo)}, {sr(sWo)}, {sr(sWb)}
    s_add_u32 {sr(sWo)}, {sr(sWo)}, {54 * 40960}
    s_mul_i32 {sr(sWl)}, {sr(sWp)}, 20480
    """)
    g.wait(vm="all")
    g("s_mov_b64 exec, 1")
    g.vmem(f"buffer_store_dword v15, v14, {sr(SWS, 4)}, {sr(sFH)} offen sc1", "flag")
    g("s_mov_b64 exec, -1")
    G.stamp(11 if o.fine != "B" else 99)
    g("s_barrier")
    kv([6, 7], "kv3")

    def frag(i, k):
        return RING[(i % 4) * 9 + k]

    def loads(i):
        L = []
        for n in range(5):
            L.append(lambda n=n: g.vmem(f"buffer_load_dwordx4 {vr(frag(i, n), 4)}, {vr(vL if n < 4 else vLb)}, {sr(SWS, 4)}, {sr(sWb)} offen offset:{(n % 4) * 1024} sc1", ("f", i)))
        for sg in range(4):
            def h(sg=sg):
                g.vmem(f"buffer_load_dwordx4 {vr(frag(i, 5 + sg), 4)}, {vr(vL)}, {sr(SWS, 4)}, {sr(sHb + sg)} offen sc1", ("f", i))
                g(f"s_add_u32 {sr(sHb + sg)}, {sr(sHb + sg)}, 4096")
                if sg == 3:
                    g(f"s_add_u32 {sr(sWb)}, {sr(sWb)}, {4 * 40960}")
            L.append(h)
        return L

    issued = [0]
    extra = []

    def step(i):
        pend = []
        if i + 3 < 14 and issued[0] == i + 3:
            pend = loads(i + 3); issued[0] += 1
        g.wait(vm=("f", i))
        L = None
        if i == 13:
            L = G.lab("skip")
            g(f"s_cmp_ge_u32 {sr(sWp)}, 2\ns_cbranch_scc1 {L}")
        k = 0
        for n in range(5):
            for sg in range(4):
                a = GA + 20 * sg + 4 * n
                c = "0" if i == 0 else vr(a, 4)
                g(f"v_mfma_f32_16x16x32_bf16 {vr(a, 4)}, {vr(frag(i, n), 4)}, {vr(frag(i, 5 + sg), 4)}, {c}")
                k += 1
                if k % 2 == 1 and pend:
                    pend.pop(0)()
                elif k % 4 == 2 and extra and i < 13:
                    extra.pop(0)()
        if L:
            g.label(L)

    G.poll(vFH, 12, sleep=4)
    G.stamp(5)
    for i in range(3):
        for f in loads(i):
            f()
        issued[0] += 1
    for sg in range(4):
        g.vmem(f"buffer_load_dword {vr(vGG + sg)}, v13, {sr(SWS, 4)}, {sr(sPa + sg)} offen sc1", "g")
    done = 0
    for _ in range(steps[0]):
        step(done); done += 1
    g.wait(vm="kv3")
    g("s_barrier")
    for s in range(4):
        for n in range(5):
            extra.append(lambda s=s, n=n: G.dma(SWS, vL, s * 40960 + n * 1024, REDOFF + s * 5120 + n * 1024, "wo", m0base=sWl, sbase=sWo, flags="sc1"))

    def wo4(n):
        g(f"s_add_u32 {sr(sT0)}, {sr(sWo)}, {4 * 40960 + n * 1024}")
        g.vmem(f"buffer_load_dwordx4 {vr(BI + 4 * n, 4)}, {vr(vL)}, {sr(SWS, 4)}, {sr(sT0)} offen sc1", "wo")
    assert steps[0] >= 1
    extra.extend(lambda n=n: wo4(n) for n in range(5))
    for _ in range(steps[1]):
        step(done); done += 1
    while issued[0] < 14:
        for f in loads(issued[0]):
            f()
        issued[0] += 1
    while extra:
        extra.pop(0)()
    g(f"s_mul_i32 {sr(sT1)}, {sr(sCP)}, 160\ns_lshl_b32 {sr(sT2)}, {sr(sTT)}, 10\ns_mov_b64 exec, 0x3ff")
    G.dma(SB2, vL, 0, HXOFF + 8192, "b2", m0base=sT2, sbase=sT1)
    g("s_mov_b64 exec, -1")
    G.stamp(12 if o.fine != "B" else 99)
    if steps[2]:
        g("s_barrier")
    for _ in range(steps[2]):
        step(done); done += 1
    G.stamp(6)
    wof = lambda s, n: (144 + 20 * s if s < 4 else BI) + 4 * n
    of = lambda sg, s: (24, 44, 224)[sg % 3] + 4 * s
    g.wait(vm="all")
    for s in range(4):
        for n in range(5):
            g.lds(f"ds_read_b128 {vr(wof(s, n), 4)}, {vr(vRW)} offset:{s * 5120 + n * 1024}", "wor")
    g(f"""
    v_lshrrev_b32 v246, 8, {vr(vL)}
    v_lshlrev_b32 v246, 3, v246
    s_add_u32 {sr(sT2)}, {sr(sT2)}, {HXOFF + 8192}
    v_add_u32 v246, {sr(sT2)}, v246
    """)
    for n in range(5):
        g.lds(f"ds_read_b64 {vr(24 + 2 * n, 2)}, v246 offset:{32 * n}", "b2r")
    for sg in range(4):
        if sg == 3:
            g.wait(lg="b2r")
            for k in range(10):
                a = GA + 60 + 2 * k
                g(f"v_lshlrev_b32 v44, 16, {vr(24 + k)}\nv_and_b32 v45, 0xffff0000, {vr(24 + k)}\nv_pk_add_f32 {vr(a, 2)}, {vr(a, 2)}, v[44:45]")
        g(f"v_sub_f32 {vr(244 + 0)}, 1.0, {vr(vGG + sg)}")
        for r in range(0, 20, 2):
            a = GA + 20 * sg + r
            g(f"v_pk_mul_f32 {vr(a, 2)}, {vr(a, 2)}, {vr(244, 2)} op_sel_hi:[1,0]")
    g.wait(lg="all")
    G.stamp(7)
    G.poll(vFO, 246, sleep=o.osleep)
    G.stamp(8)

    def oload(sg):
        for s in range(5):
            g.vmem(f"buffer_load_dwordx4 {vr(of(sg, s), 4)}, {vr(vL if s < 4 else vLb)}, {sr(SWS, 4)}, {sr(sOb + sg)} offen offset:{(s % 4) * 1024} sc1", ("o", sg, s))

    def rwrite(sg):
        return [lambda n=n: g.lds(f"ds_write_b128 {vr(vRW)}, {vr(GA + 20 * sg + 4 * n, 4)} offset:{sg * 5120 + n * 1024}", "rw") for n in range(5)]

    for sg in range(3):
        oload(sg)
    for sg in range(4):
        pend = rwrite(sg - 1) if sg else []
        k = 0
        for s in range(5):
            g.wait(vm=("o", sg, s))
            for n in range(5):
                a = GA + 20 * sg + 4 * n
                g(f"v_mfma_f32_16x16x32_bf16 {vr(a, 4)}, {vr(wof(s, n), 4)}, {vr(of(sg, s), 4)}, {vr(a, 4)}")
                k += 1
                if k >= 8 and pend:
                    pend.pop(0)()
            if sg == 3 and s == 2:
                g.wait(lg="all")
                g("s_barrier")
                for x in range(3):
                    for n in range(5):
                        g.lds(f"ds_read_b128 {vr(GA + 20 * x + 4 * n, 4)}, {vr(vRR + x)} offset:{n * 1024}", ("rr", x))
        if sg == 0:
            oload(3)
    G.stamp(9)
    g.wait(lg=("rr", 1))
    for r in range(0, 20, 2):
        g(f"v_pk_add_f32 {vr(GA + r, 2)}, {vr(GA + r, 2)}, {vr(GA + 20 + r, 2)}")
    g.wait(lg=("rr", 2))
    for r in range(0, 20, 2):
        g(f"v_pk_add_f32 {vr(GA + r, 2)}, {vr(GA + r, 2)}, {vr(GA + 40 + r, 2)}")
    for n in range(5):
        a = GA + 4 * n
        for r in range(0, 4, 2):
            g(f"v_pk_add_f32 {vr(a + r, 2)}, {vr(a + r, 2)}, {vr(a + 60 + r, 2)}")
        g(f"v_cvt_pk_bf16_f32 {vr(a)}, {vr(a)}, {vr(a + 1)}\nv_cvt_pk_bf16_f32 {vr(a + 1)}, {vr(a + 2)}, {vr(a + 3)}")
        g(f"buffer_store_dwordx2 {vr(a, 2)}, {vr(vOut)}, {sr(SOUT, 4)}, 0 offen offset:{32 * n}")
    if o.stamps:
        g("s_waitcnt vmcnt(0)")
    G.stamp(10)
    G.dump_stamps()


def phase2(G):
    g = G.g
    st = g.state()
    G.role = 'attn'
    attention(G)
    g.restore(st)
    G.role = 'gemm'
    gemm(G)
```

```python
import sys, math, argparse
from asmlib import *

NAME = "gated_mix__mha_block__dense_activation_squared_relu__prompt_kernel"

FQ, FH, FO, GOFF, TSOFF = 0x0, 0x20000, 0x40000, 0x60000, 0x80000
QOFF, KVOFF, HOFF, OOFF, WPOFF, WS_SIZE = 0x100000, 0x400000, 0x900000, 0x1000000, 0x1280000, 0x1580000
OOB = 0x7F000000
QSCALE = math.log2(math.e) / math.sqrt(20.0)
LDS_BYTES = 163840
NREC, REC = 48, 3072
REDOFF = 16 * REC
SPIN = 1 << 21

sW, sRB, sCS, sJ, sH = 3, 4, 5, 6, 7
SX, SWQ, SW1, SWS, SW2, SWO, SOUT, SB1, SB2, SGW, SDBG, SCODE = (8 + 4 * i for i in range(12))
sM0, sT0, sT1, sT2, sRT, sCP, sTT, sCH = 56, 57, 58, 59, 60, 61, 62, 63
sSPIN, sSCALE, sHS, sT3, sT4, sT5 = 64, 65, 66, 67, 68, 69
sA = 70
sTS = 80


def f32hex(x):
    import struct
    return hex(struct.unpack("<I", struct.pack("<f", x))[0])


class Gen:
    def __init__(self, opt):
        self.o = opt
        self.g = Stream()
        self.nlab = 0
        self.role = ''

    def lab(self, base):
        self.nlab += 1
        return f"L{base}_{self.nlab}"

    def stamp(self, k):
        if self.o.diag:
            g = self.g
            pt, us = (int(x) for x in self.o.diag.split(":"))
            if k == 0:
                g(f"s_memrealtime s[80:81]\ns_waitcnt lgkmcnt(0)\ns_add_u32 s80, s80, {us * 100}")
            if k == pt and (k < 1 or self.role == self.o.diag_role):
                L = self.lab("diag")
                g.label(L)
                g(f"s_memrealtime s[100:101]\ns_waitcnt lgkmcnt(0)\ns_sub_u32 s100, s100, s80\ns_cmp_lt_i32 s100, 0\ns_cbranch_scc1 {L}")
                g.lg_done = len(g.lg)
            return
        if not self.o.stamps or k > 15:
            return
        g = self.g
        g(f"{'s_memtime' if self.o.stamps == 2 else 's_memrealtime'} {sr(100, 2)}\ns_waitcnt lgkmcnt(0)\ns_mov_b32 {sr(sTS + k)}, s100")
        g.lg_done = len(g.lg)

    def dump_stamps(self):
        if not self.o.stamps:
            return
        g = self.g
        g(f"s_lshl_b32 {sr(sT0)}, s2, 3\ns_add_u32 {sr(sT0)}, {sr(sT0)}, {sr(sW)}\ns_lshl_b32 {sr(sT0)}, {sr(sT0)}, 6")
        g(f"s_add_u32 {sr(sT0)}, {sr(sT0)}, {TSOFF}\nv_mov_b32 v1, 0\ns_mov_b64 exec, 1")
        for k in range(16):
            g(f"v_mov_b32 v2, {sr(sTS + k)}")
            g(f"buffer_store_dword v2, v1, {sr(SWS, 4)}, {sr(sT0)} offen offset:{4 * k}")
        g("s_mov_b64 exec, -1")

    def dma(self, srd, vaddr, soff, ldsoff, tag, m0base=sM0, sbase=None, flags=""):
        g = self.g
        g(f"s_add_u32 m0, {sr(m0base)}, {ldsoff}")
        if sbase is None:
            g(f"s_mov_b32 {sr(sT0)}, {soff}")
        else:
            g(f"s_add_u32 {sr(sT0)}, {sr(sbase)}, {soff}")
        g.vmem(f"buffer_load_dwordx4 {vr(vaddr)}, {sr(srd, 4)}, {sr(sT0)} offen {flags} lds", tag)

    def poll(self, vaddr, vtmp, srd=SWS, sleep=0):
        g = self.g
        L, E = self.lab("poll"), self.lab("polld")
        g(f"s_mov_b32 {sr(sSPIN)}, {SPIN}")
        g.label(L)
        g(f"buffer_load_dword {vr(vtmp)}, {vr(vaddr)}, {sr(srd, 4)}, 0 offen sc1")
        g(f"s_sub_u32 {sr(sSPIN)}, {sr(sSPIN)}, 1")
        g(f"s_cbranch_scc1 {E}")
        g("s_waitcnt vmcnt(0)")
        g(f"v_cmp_ne_u32 vcc, 1, {vr(vtmp)}")
        g(f"s_cbranch_vccz {E}")
        if sleep:
            g(f"s_sleep {sleep}")
        g(f"s_branch {L}")
        g.label(E)
        g("s_waitcnt vmcnt(0)")
        g.vm_done = len(g.vm)

    def set_flag(self, sidx_expr_lines, va, vb):
        g = self.g
        g(sidx_expr_lines)
        g(f"v_mov_b32 {vr(va)}, 0\nv_mov_b32 {vr(vb)}, 1\ns_mov_b64 exec, 1")
        g.vmem(f"buffer_store_dword {vr(vb)}, {vr(va)}, {sr(SWS, 4)}, {sr(sT1)} offen sc1", "flag")
        g("s_mov_b64 exec, -1")

    def prologue(self):
        g = self.g
        g("s_cmp_ge_u32 s2, 256\ns_cbranch_scc1 Lend")
        for srd, slot in ((SX, 0), (SWQ, 1), (SW1, 4), (SWS, 11), (SB1, 5), (SGW, 8), (SDBG, 10), (SW2, 6), (SWO, 2), (SOUT, 9), (SB2, 7)):
            g(f"s_load_dwordx2 {sr(srd, 2)}, s[0:1], {8 * slot}")
        self.stamp(0)
        g("v_lshrrev_b32 v2, 6, v0\nv_and_b32 v0, 63, v0")
        g(f"v_readfirstlane_b32 {sr(sW)}, v2")
        for srd, n in ((SX, 2048 * 1280), (SWQ, 640 * 3840), (SW1, 640 * 3456), (SWS, WS_SIZE), (SB1, 3456), (SGW, 1280),
                       (SDBG, 256), (SW2, 1728 * 1280), (SWO, 640 * 1280), (SOUT, 2048 * 1280), (SB2, 1280)):
            g(f"s_mov_b32 {sr(srd + 2)}, {n}\ns_mov_b32 {sr(srd + 3)}, 0x20000")
        g(f"""
        s_getpc_b64 {sr(SCODE, 2)}
        s_mov_b32 {sr(SCODE + 2)}, CODE_BYTES
        s_mov_b32 {sr(SCODE + 3)}, 0x20000
        s_and_b32 {sr(sT0)}, s2, 7
        s_lshr_b32 {sr(sT1)}, s2, 3
        s_lshr_b32 {sr(sRB)}, {sr(sT0)}, 2
        s_lshl_b32 {sr(sRB)}, {sr(sRB)}, 3
        s_and_b32 {sr(sT2)}, {sr(sT1)}, 7
        s_add_u32 {sr(sRB)}, {sr(sRB)}, {sr(sT2)}
        s_lshr_b32 {sr(sCS)}, {sr(sT1)}, 3
        s_lshl_b32 {sr(sCS)}, {sr(sCS)}, 2
        s_and_b32 {sr(sT3)}, {sr(sT0)}, 3
        s_add_u32 {sr(sCS)}, {sr(sCS)}, {sr(sT3)}
        s_lshr_b32 {sr(sJ)}, s2, 5
        s_and_b32 {sr(sT3)}, {sr(sT1)}, 3
        s_lshl_b32 {sr(sH)}, {sr(sT0)}, 2
        s_add_u32 {sr(sH)}, {sr(sH)}, {sr(sT3)}
        s_mov_b32 {sr(sRT)}, {sr(sH)}
        s_lshr_b32 {sr(sCP)}, {sr(sT1)}, 2
        s_and_b32 {sr(sTT)}, {sr(sW)}, 3
        s_lshl_b32 {sr(sM0)}, {sr(sTT)}, 10
        s_lshr_b32 {sr(sCH)}, {sr(sW)}, 2
        """)
        if self.o.code_prefetch:
            L = self.lab("nopf")
            g(f"""
            s_cmp_lg_u32 {sr(sW)}, 3
            s_cbranch_scc1 {L}
            s_lshl_b32 {sr(sT2)}, {sr(sT2)}, 13
            v_lshlrev_b32 v1, 7, v0
            buffer_load_dword v127, v1, {sr(SCODE, 4)}, {sr(sT2)} offen
            """)
            g.label(L)
        g(f"""
        s_and_b32 {sr(sT0)}, {sr(sRB)}, 7
        s_lshr_b32 {sr(sT1)}, {sr(sT0)}, 2
        s_add_u32 {sr(sT0)}, {sr(sT0)}, {sr(sT1)}
        s_lshr_b32 {sr(sT1)}, {sr(sCS)}, 2
        s_mul_i32 {sr(sT1)}, {sr(sT1)}, 5
        s_lshr_b32 {sr(sT1)}, {sr(sT1)}, 1
        s_add_u32 {sr(sT0)}, {sr(sT0)}, {sr(sT1)}
        s_cmp_ge_u32 {sr(sT0)}, 10
        s_cselect_b32 {sr(sT1)}, 10, 0
        s_sub_u32 {sr(sT0)}, {sr(sT0)}, {sr(sT1)}
        ROTFIX
        s_lshl_b32 {sr(sA)}, {sr(sT0)}, 7
        s_mul_i32 {sr(sA + 1)}, {sr(sT0)}, {64 * 3840}
        s_mul_i32 {sr(sA + 2)}, {sr(sT0)}, {64 * 3456}
        """)
        fix = {0: f"s_mov_b32 {sr(sT0)}, 0", 1: "s_nop 0",
               2: f"s_lshr_b32 {sr(sT0)}, {sr(sCS)}, 2|s_xor_b32 {sr(sT0)}, {sr(sT0)}, {sr(sRB)}|s_and_b32 {sr(sT0)}, {sr(sT0)}, 1|s_mul_i32 {sr(sT0)}, {sr(sT0)}, 5",
               4: f"s_lshr_b32 {sr(sT0)}, {sr(sCS)}, 2|s_add_u32 {sr(sT0)}, {sr(sT0)}, {sr(sRB)}|s_and_b32 {sr(sT0)}, {sr(sT0)}, 3|s_mul_i32 {sr(sT0)}, {sr(sT0)}, 5|s_lshr_b32 {sr(sT0)}, {sr(sT0)}, 1"}[self.o.rot]
        i = g.lines.index("ROTFIX")
        g.lines[i:i + 1] = fix.split("|")
        g(f"""
        v_lshrrev_b32 v2, 3, v0
        v_lshrrev_b32 v3, 4, v0
        s_lshl_b32 {sr(sT0)}, {sr(sRB)}, 7
        s_lshl_b32 {sr(sT1)}, {sr(sTT)}, 3
        s_add_u32 {sr(sT0)}, {sr(sT0)}, {sr(sT1)}
        v_add_u32 v2, {sr(sT0)}, v2
        v_mul_u32_u24 v4, 1280, v2
        s_and_b32 {sr(sT0)}, {sr(sW)}, 1
        s_lshl_b32 {sr(sT0)}, {sr(sT0)}, 2
        v_or_b32 v7, {sr(sT0)}, v3
        v_and_b32 v8, 7, v0
        v_xor_b32 v7, v7, v8
        v_lshl_add_u32 v4, v7, 4, v4
        s_lshl_b32 {sr(sT0)}, {sr(sTT)}, 2
        v_add_u32 v2, {sr(sT0)}, v3
        s_and_b32 {sr(sT0)}, {sr(sW)}, 2
        s_lshl_b32 {sr(sT0)}, {sr(sT0)}, 1
        v_or_b32 v7, {sr(sT0)}, v3
        v_lshlrev_b32 v7, 1, v7
        v_and_b32 v8, 15, v0
        v_xor_b32 v7, v7, v8
        v_lshlrev_b32 v7, 4, v7
        s_lshl_b32 {sr(sT0)}, {sr(sCS)}, 8
        v_add_u32 v7, {sr(sT0)}, v7
        v_mul_u32_u24 v5, 3840, v2
        v_add_u32 v5, v5, v7
        v_mul_u32_u24 v6, 3456, v2
        v_add_u32 v6, v6, v7
        s_waitcnt lgkmcnt(0)
        """)
        if self.o.tlb:
            L = self.lab("notlb")
            g(f"s_cmp_lg_u32 {sr(sW)}, 6\ns_cbranch_scc1 {L}\nv_lshlrev_b32 v1, {self.o.tlb}, v0")
            for srd in (SWS, SOUT, SW1, SB1, SB2, SDBG):
                g(f"buffer_load_dword v255, v1, {sr(srd, 4)}, 0 offen")
            g.label(L)
        g(f"s_cmp_eq_u32 {sr(sCS)}, 15\ns_cbranch_scc1 Lgate")

    vXG, vWG, vW1G = 4, 5, 6

    def adv(self, reg, step):
        self.g(f"s_add_u32 {sr(reg)}, {sr(reg)}, {step}\ns_cmp_eq_u32 {sr(reg)}, {10 * step}\ns_cselect_b32 {sr(reg)}, 0, {sr(reg)}")

    def dma4(self, srd, va, sreg, quarter, step, lds, tag):
        for q in range(4):
            self.dma(srd, va, q * quarter, lds + q * 4096, tag, sbase=sreg)
        self.adv(sreg, step)

    def dmaX(self, s):
        self.dma4(SX, self.vXG, sA, 32 * 1280, 128, (s % 5) * 32768, ("A", s))

    def dmaW(self, s):
        self.dma4(SWQ, self.vWG, sA + 1, 16 * 3840, 64 * 3840, (s % 5) * 32768 + 16384, ("A", s))

    def dmaB(self, t):
        self.dma4(SW1, self.vW1G, sA + 2, 16 * 3456, 64 * 3456, t * 16384, ("B", t))

    def rd(self, mn, dst, n, areg, off, tag, base):
        g = self.g
        if not (0 <= off - base[areg] <= 65535):
            nb = off & ~16383
            g(f"v_add_u32 {vr(areg)}, {(nb - base[areg]) & 0xFFFFFFFF}, {vr(areg)}")
            base[areg] = nb
        g.lds(f"{mn} {vr(dst, n)}, {vr(areg)} offset:{off - base[areg]}", tag)

    def x_read_addr(self, d0, d1, srow):
        self.g(f"""
        v_lshrrev_b32 v3, 4, v0
        v_and_b32 v2, 15, v0
        v_add_u32 {vr(d0)}, {sr(srow)}, v2
        v_lshlrev_b32 {vr(d0)}, 7, {vr(d0)}
        v_lshrrev_b32 v20, 1, v2
        v_xor_b32 v20, v20, v3
        v_xor_b32 v21, 4, v20
        v_lshl_add_u32 {vr(d1)}, v21, 4, {vr(d0)}
        v_lshl_add_u32 {vr(d0)}, v20, 4, {vr(d0)}
        """)

    def w_read_addr(self, dsts, sfirst, t):
        g = self.g
        g(f"""
        v_lshrrev_b32 {vr(t)}, 4, v0
        v_bfe_u32 {vr(t + 1)}, v0, 2, 2
        v_and_b32 {vr(t + 2)}, 3, v0
        v_lshl_add_u32 {vr(t + 3)}, {vr(t)}, 3, {vr(t + 1)}
        v_lshlrev_b32 {vr(t + 3)}, 8, {vr(t + 3)}
        v_lshl_add_u32 {vr(t + 3)}, {vr(t + 2)}, 3, {vr(t + 3)}
        v_and_b32 {vr(t)}, 1, {vr(t)}
        v_lshl_add_u32 {vr(t)}, {vr(t)}, 2, {vr(t + 1)}
        """)
        if sfirst is not None:
            g(f"v_xor_b32 {vr(t)}, {sr(sfirst)}, {vr(t)}")
        for n, d in enumerate(dsts):
            g(f"v_xor_b32 {vr(t + 1)}, {n}, {vr(t)}\nv_lshl_add_u32 {vr(d)}, {vr(t + 1)}, 5, {vr(t + 3)}")

    def clean_load(self):
        g = self.g
        g("v_and_b32 v2, 15, v0\nv_lshlrev_b32 v2, 2, v2")
        g.vmem(f"buffer_load_dword v3, v2, {sr(SDBG, 4)}, 0 offen sc1", "clean")

    aXR, aWR, aST, aACC, aBUF = (7, 8), (9, 10, 11, 12), (13, 14, 15, 16), 64, 128

    def a_setup(self):
        g = self.g
        sTH, sAC = sA + 3, sA + 4
        g(f"s_and_b32 {sr(sTH)}, {sr(sW)}, 1\ns_lshr_b32 {sr(sAC)}, {sr(sW)}, 1\ns_lshl_b32 {sr(sT0)}, {sr(sTH)}, 6")
        self.x_read_addr(*self.aXR, sT0)
        g(f"s_lshl_b32 {sr(sT0)}, {sr(sAC)}, 2")
        self.w_read_addr(self.aWR, sT0, 20)
        LV, LD = self.lab("stv"), self.lab("std")
        g(f"""
        s_mul_i32 {sr(sT0)}, {sr(sCS)}, 205
        s_lshr_b32 {sr(sT0)}, {sr(sT0)}, 10
        s_mul_i32 {sr(sT1)}, {sr(sT0)}, 5
        s_sub_u32 {sr(sT1)}, {sr(sCS)}, {sr(sT1)}
        s_lshl_b32 {sr(sT2)}, {sr(sRB)}, 1
        s_add_u32 {sr(sT2)}, {sr(sT2)}, {sr(sTH)}
        s_lshl_b32 {sr(sT2)}, {sr(sT2)}, 1
        s_cmp_eq_u32 {sr(sT0)}, 0
        s_mov_b32 {sr(sA + 5)}, 2560
        s_cselect_b32 {sr(sA + 5)}, 1280, {sr(sA + 5)}
        s_mov_b32 {sr(sT4)}, {KVOFF}
        s_cselect_b32 {sr(sT4)}, {QOFF}, {sr(sT4)}
        s_mul_i32 {sr(sT2)}, {sr(sT2)}, {sr(sA + 5)}
        s_add_u32 {sr(sT4)}, {sr(sT4)}, {sr(sT2)}
        s_lshl_b32 {sr(sT3)}, {sr(sA + 5)}, 6
        s_cmp_eq_u32 {sr(sT0)}, 2
        s_cbranch_scc1 {LV}
        s_lshl_b32 {sr(sT1)}, {sr(sT1)}, 5
        s_lshl_b32 {sr(sT2)}, {sr(sAC)}, 4
        s_add_u32 {sr(sT1)}, {sr(sT1)}, {sr(sT2)}
        v_add_u32 v22, {sr(sT1)}, v3
        v_lshlrev_b32 v17, 4, v2
        v_add_u32 v17, {sr(sT4)}, v17
        """)
        for n in range(4):
            g(f"""
            v_add_u32 v18, {4 * n}, v22
            v_mul_u32_u24 v19, 205, v18
            v_lshrrev_b32 v19, 10, v19
            v_mul_u32_u24 v20, 5, v19
            v_sub_u32 v20, v18, v20
            v_mul_lo_u32 v19, v19, {sr(sT3)}
            v_lshl_add_u32 v19, v20, 8, v19
            v_add_u32 {vr(self.aST[n])}, v19, v17
            """)
        g(f"s_branch {LD}")
        g.label(LV)
        g(f"""
        s_lshl_b32 {sr(sT1)}, {sr(sT1)}, 7
        s_lshl_b32 {sr(sT2)}, {sr(sAC)}, 6
        s_add_u32 {sr(sT1)}, {sr(sT1)}, {sr(sT2)}
        v_add_u32 v22, {sr(sT1)}, v2
        v_mul_u32_u24 v17, 320, v3
        s_add_u32 {sr(sT4)}, {sr(sT4)}, 1280
        v_add_u32 v17, {sr(sT4)}, v17
        """)
        for n in range(4):
            g(f"""
            v_add_u32 v18, {16 * n}, v22
            v_mul_u32_u24 v19, 3277, v18
            v_lshrrev_b32 v19, 16, v19
            v_mul_u32_u24 v20, 20, v19
            v_sub_u32 v20, v18, v20
            v_mul_lo_u32 v19, v19, {sr(sT3)}
            v_lshl_add_u32 v19, v20, 4, v19
            v_add_u32 {vr(self.aST[n])}, v19, v17
            """)
        g.label(LD)

    def a_pass(self, swap):
        g, o = self.g, self.o
        base = {r: 0 for r in self.aXR + self.aWR}
        xreg = lambda s, kk, t: self.aBUF + 64 * (s % 2) + (kk * 4 + t) * 4
        wreg = lambda s, n, kk: self.aBUF + 64 * (s % 2) + 32 + n * 8 + kk * 4

        def reads(s):
            q = (s % 5) * 32768
            X = [lambda kk=kk, t=t: self.rd("ds_read_b128", xreg(s, kk, t), 4, self.aXR[kk], q + t * 2048, ("x", s, t), base)
                 for t in range(4) for kk in range(2)]
            W = [lambda n=n, kk=kk, u=u: self.rd("ds_read_b64_tr_b16", wreg(s, n, kk) + 2 * u, 2, self.aWR[n], q + 16384 + kk * 8192 + u * 1024, ("w", s, n), base)
                 for n in range(4) for kk in range(2) for u in range(2)]
            return W[:4] + X + W[4:]

        g("s_barrier")
        self.stamp(1)
        for f in reads(0):
            f()
        for s in range(10):
            g.wait(lg="all", vm="all")
            if s < 9:
                g("s_barrier")
            if o.fine == "A" and s in (0, 1, 2, 4, 6, 8, 9):
                self.stamp(9 + (0, 1, 2, 4, 6, 8, 9).index(s))
            pend = reads(s + 1) if s < 9 else []
            for n in range(4):
                for t in range(4):
                    for kk in range(2):
                        a = self.aACC + (n * 4 + t) * 4
                        w, x = vr(wreg(s, n, kk), 4), vr(xreg(s, kk, t), 4)
                        A, B = (x, w) if swap else (w, x)
                        g(f"v_mfma_f32_16x16x32_bf16 {vr(a, 4)}, {A}, {B}, {'0' if s == 0 and kk == 0 else vr(a, 4)}")
                        if pend:
                            pend.pop(0)()

    def a_phase1(self):
        g, o = self.g, self.o
        g("v_mov_b32 v125, v4\nv_mov_b32 v126, v5")
        self.a_setup()
        g(f"s_cmp_eq_u32 {sr(sCS)}, 14\ns_cselect_b32 {sr(sT0)}, {OOB}, 0\nv_add_u32 v6, {sr(sT0)}, v6")
        for t in range(o.b2_stage):
            self.adv(sA + 2, 64 * 3456)
        g(f"""
        s_lshl_b32 {sr(sT1)}, {sr(sCS)}, 1
        s_add_u32 {sr(sT1)}, {sr(sT1)}, {sr(sA + 4)}
        s_lshl_b32 {sr(sT1)}, {sr(sT1)}, 5
        s_lshl_b32 {sr(sT2)}, {sr(sRB)}, 1
        s_add_u32 {sr(sT1)}, {sr(sT1)}, {sr(sT2)}
        s_add_u32 {sr(sT1)}, {sr(sT1)}, {sr(sA + 3)}
        s_lshl_b32 {sr(sHS)}, {sr(sT1)}, 7""")
        from gen2 import attn_setup
        attn_setup(self)
        if o.a_st1:
            self.adv(sA, 128); self.adv(sA + 1, 64 * 3840)
            self.vXG, self.vWG = 125, 126
            self.dmaX(1); self.dmaW(1)
            self.vXG, self.vWG = 4, 5
        else:
            g("s_waitcnt vmcnt(0)")
        if o.aprio:
            g(f"s_setprio {o.aprio}")
        g(f"s_cmp_ge_u32 {sr(sCS)}, 10\ns_cbranch_scc1 LpassA_v")
        st = g.state()
        self.a_pass(False)
        g("s_branch LepiA")
        g.restore(st)
        g.label("LpassA_v")
        self.a_pass(True)
        g.label("LepiA")
        self.stamp(2)
        if o.b10_early:
            g("s_barrier")
        self.clean_load()
        L = self.lab("noq")
        g(f"s_nop 2\ns_cmp_ge_u32 {sr(sCS)}, 5\ns_cbranch_scc1 {L}")
        g(f"s_mov_b32 {sr(sT0)}, {f32hex(QSCALE)}")
        g(f"v_mov_b32 v8, {sr(sT0)}")
        for r in range(0, 64, 2):
            g(f"v_pk_mul_f32 {vr(self.aACC + r, 2)}, {vr(self.aACC + r, 2)}, v[8:9] op_sel_hi:[1,0]")
        g.label(L)
        for n in range(4):
            for T in range(2):
                a = self.aACC + 16 * n + 8 * T
                for q in range(4):
                    g(f"v_cvt_pk_bf16_f32 {vr(a + q)}, {vr(a + 2 * q)}, {vr(a + 2 * q + 1)}")
                g.vmem(f"buffer_store_dwordx4 {vr(a, 4)}, {vr(self.aST[n])}, {sr(SWS, 4)}, {sr(sA + 5) if T else 0} offen sc1", "stA")
        if not o.b10_early:
            g("s_barrier")
        if o.b1_stage < o.b2_stage:
            g("s_barrier")
        for t in range(o.b2_stage, 10):
            self.dmaB(t)
        g.wait(vm="stA")
        self.check_clean()
        self.set_flag(f"s_mov_b32 {sr(sT1)}, {sr(sHS)}", 2, 3)
        self.stamp(3)
        g.wait(vm=("B", 9))
        g("s_barrier\ns_branch Lattn")

    gXR, gWR, gACC, gX = (7, 8), (1, 2, 4, 5, 7, 8, 9, 10), 32, 96

    def gx(self, s, kk, t):
        return self.gX + ((2 * s + kk) * 2 + t) * 4

    def gacc(self, n, t):
        return self.gACC + ((n >> 1) * 2 + t) * 8 + (n & 1) * 4

    def g_phase1(self):
        g, o = self.g, self.o
        g.label("Lg1")
        fn = {"x": self.dmaX, "w": self.dmaW, "b": self.dmaB}
        sched = [[it for it in grp.split(",") if it] for grp in o.order.split("/")]
        assert len(sched) == 12 and o.b2_stage >= 6
        for k, grp in enumerate(sched):
            for it in grp:
                st_ = int(it[1]) if it[0] != "b" else 10 + int(it[1]) // 2
                assert st_ <= max(4, k + 3), (k, it)
        assert sorted(sum(sched, [])) == sorted([f"x{i}" for i in range(10)] + [f"w{i}" for i in range(10)] + [f"b{i}" for i in range(o.b2_stage)])
        def issue(k):
            for it in sched[k]:
                if o.a_st1 and it in ("x1", "w1"):
                    self.adv(*((sA, 128) if it == "x1" else (sA + 1, 64 * 3840)))
                else:
                    fn[it[0]](int(it[1]))
        if o.gprio:
            g(f"s_setprio {o.gprio}")
        g(f"s_lshl_b32 {sr(sT1)}, {sr(sCS)}, 8\nv_lshlrev_b32 v9, 2, v0")
        g.vmem(f"buffer_load_dword v10, v9, {sr(SB1, 4)}, {sr(sT1)} offen", "b1")
        issue(0)
        g(f"""
        s_cmp_eq_u32 {sr(sCS)}, 14
        s_cselect_b32 {sr(sT0)}, {OOB}, 0
        v_add_u32 v6, {sr(sT0)}, v6
        s_lshl_b32 {sr(sT0)}, {sr(sTT)}, 5
        """)
        self.x_read_addr(*self.gXR, sT0)
        from gen2 import gemm_setup
        g("v_lshlrev_b32 v9, 3, v3")
        gemm_setup(self)
        g.wait(vm="b1")
        for n in range(8):
            for hf in range(2):
                g.lds(f"ds_bpermute_b32 {vr(12 + 2 * n + hf)}, v9, v10 offset:{32 * n + 4 * hf}", ("b1p", n))
        for n in range(8):
            g.wait(lg=("b1p", n))
            for hf in range(2):
                for t in range(2):
                    g(f"v_lshlrev_b32 {vr(self.gacc(n, t) + 2 * hf)}, 16, {vr(12 + 2 * n + hf)}")
                    g(f"v_and_b32 {vr(self.gacc(n, t) + 2 * hf + 1)}, 0xffff0000, {vr(12 + 2 * n + hf)}")
        base = {r: 0 for r in self.gXR + self.gWR}
        for s in range(10):
            g.wait(vm=("A", s) if not (o.a_st1 and s == 1) else None, lg="all")
            g("s_barrier")
            for t in range(2):
                for kk in range(2):
                    self.rd("ds_read_b128", self.gx(s, kk, t), 4, self.gXR[kk], (s % 5) * 32768 + t * 2048, ("x", s), base)
            issue(s + 1)
        self.w_read_addr(self.gWR, None, 12)
        for r in self.gWR:
            base[r] = 0
        g.wait(vm=("B", o.b1_stage - 1), lg="all")
        g("s_barrier")
        issue(11)
        self.stamp(2)
        g(f"s_setprio {o.bprio}")
        g(f"s_cmp_eq_u32 {sr(sCS)}, 14\ns_cbranch_scc1 Lgatez")
        frs = [(s, n, kk) for s in range(10) for n in range(8) for kk in range(2)]
        free, where, nxt, half = [12, 16, 20, 24, 28], {}, 0, None

        def issue_read():
            nonlocal nxt, half
            if half is None:
                if nxt >= len(frs) or not free or len(where) >= o.wdepth:
                    return False
                s, n, kk = frs[nxt]
                if n == 0 and kk == 0 and s == o.b1_stage and o.b1_stage < o.b2_stage:
                    g.wait(vm=("B", o.b2_stage - 1))
                    g("s_barrier")
                if n == 0 and kk == 0 and s == o.b2_stage:
                    g("s_barrier")

                where[frs[nxt]] = free.pop(0)
                half = 0
            s, n, kk = frs[nxt]
            self.rd("ds_read_b64_tr_b16", where[frs[nxt]] + 2 * half, 2, self.gWR[n], s * 16384 + kk * 8192 + half * 1024, ("w", s, n, kk), base)
            if half == 1:
                half = None; nxt += 1
            else:
                half = 1
            return True

        while issue_read():
            pass
        for s in range(10):
            if o.fine == "B" and s in (1, 3, 5, 7, 9):
                self.stamp(11 + (1, 3, 5, 7, 9).index(s))
            for n in range(8):
                for m in range(4):
                    t, kk = m >> 1, m & 1
                    while (s, n, kk) not in where or (nxt < len(frs) and frs[nxt] == (s, n, kk)):
                        assert issue_read()
                    if m == 0 and (s, n, 1) in where and not (nxt < len(frs) and frs[nxt] == (s, n, 1)):
                        g.wait(lg=("w", s, n, 1))
                    else:
                        g.wait(lg=("w", s, n, kk))
                    a = self.gacc(n, t)
                    g(f"v_mfma_f32_16x16x32_bf16 {vr(a, 4)}, {vr(where[(s, n, kk)], 4)}, {vr(self.gx(s, kk, t), 4)}, {vr(a, 4)}")
                    if t == 1:
                        free.append(where.pop((s, n, kk)))
                    issue_read()
                    if len(where) < o.wdepth - 1:
                        issue_read()
            free.extend(self.gx(s, kk, t) for kk in range(2) for t in range(2))
        self.stamp(3)
        g("s_nop 7")
        for b in range(8):
            a = self.gACC + 8 * b
            for r in range(8):
                g(f"v_max_f32 {vr(a + r)}, 0, {vr(a + r)}")
            for r in range(0, 8, 2):
                g(f"v_pk_mul_f32 {vr(a + r, 2)}, {vr(a + r, 2)}, {vr(a + r, 2)}")
            for q in range(4):
                g(f"v_cvt_pk_bf16_f32 {vr(a + q)}, {vr(a + 2 * q)}, {vr(a + 2 * q + 1)}")
        g("s_setprio 0")
        g("s_branch Lgemm")
        g.label("Lgatez")
        g("s_setprio 0\ns_waitcnt vmcnt(0)")
        if o.b1_stage < o.b2_stage:
            g("s_barrier")
        g(f"v_lshlrev_b32 v4, 4, v0\ns_lshl_b32 {sr(sT1)}, {sr(sM0)}, 2\ns_add_u32 {sr(sT1)}, {sr(sT1)}, {5 * 16384}")
        for src, dst in ((0, 0), (256, 256), (0, 1280), (256, 1536)):
            self.dma(SGW, 4, src, dst, "gw", m0base=sT1)
        g(f"s_barrier\ns_add_u32 {sr(sT1)}, {sr(sT1)}, {sr(sA)}")
        g(f"v_lshrrev_b32 v5, 4, v0\nv_lshlrev_b32 v5, 4, v5\nv_add_u32 v5, {sr(sT1)}, v5")
        g("s_waitcnt vmcnt(0)")
        for half in range(2):
            for k in range(10):
                g(f"ds_read_b128 {vr(32 + 4 * k, 4)}, v5 offset:{64 * (10 * half + k)}")
            g("s_waitcnt lgkmcnt(0)")
            for k in range(10):
                kk = 10 * half + k
                for t in range(2):
                    g(f"v_mfma_f32_16x16x32_bf16 {vr(80 + 4 * t, 4)}, {vr(32 + 4 * k, 4)}, {vr(self.gx(kk >> 1, kk & 1, t), 4)}, {'0' if kk == 0 else vr(80 + 4 * t, 4)}")
        g(f"""
        s_nop 7
        v_cmp_gt_u32 vcc, 16, v0
        v_lshlrev_b32 v4, 2, v0
        s_lshl_b32 {sr(sT0)}, {sr(sRB)}, 9
        v_cndmask_b32 v80, v84, v80, vcc
        v_mul_f32 v80, {f32hex(-math.log2(math.e))}, v80
        v_exp_f32 v80, v80
        s_lshl_b32 {sr(sT1)}, {sr(sTT)}, 7
        v_add_f32 v80, 1.0, v80
        v_rcp_f32 v80, v80
        s_add_u32 {sr(sT0)}, {sr(sT0)}, {sr(sT1)}
        s_add_u32 {sr(sT0)}, {sr(sT0)}, {GOFF}
        s_mov_b32 exec_hi, 0
        buffer_store_dword v80, v4, {sr(SWS, 4)}, {sr(sT0)} offen sc1
        s_mov_b32 exec_hi, -1
        s_branch Lgemm
        """)

    def phase1(self):
        g = self.g
        g(f"s_cmp_ge_u32 {sr(sW)}, 4\ns_cbranch_scc1 Lg1")
        st = g.state()
        self.role = "attn"
        self.a_phase1()
        g.restore(st)
        self.role = "gemm"
        self.g_phase1()

    def check_clean(self):
        g = self.g
        L = self.lab("clean")
        g(f"v_cmp_ne_u32 vcc, 1, v3\ns_cbranch_vccz {L}")
        st = g.state()
        self.poll(2, 3, SDBG)
        g.restore(st)
        g.label(L)

    def const_regs(self, a, d):
        self.g(f"""
        v_and_b32 {vr(d + 2)}, 31, v0
        v_lshrrev_b32 {vr(d + 3)}, 5, v0
        s_lshl_b32 {sr(sT0)}, {sr(sTT)}, 1
        v_add_u32 {vr(d + 3)}, {sr(sT0)}, {vr(d + 3)}
        v_mul_u32_u24 {vr(d + 3)}, {REC}, {vr(d + 3)}
        v_lshl_add_u32 {vr(a)}, {vr(d + 2)}, 4, {vr(d + 3)}
        v_and_b32 {vr(d + 3)}, 23, {vr(d + 2)}
        v_cmp_eq_u32 vcc, 16, {vr(d + 3)}
        v_mov_b32 {vr(d + 3)}, 0x3f803f80
        v_mov_b32 {vr(d)}, 0x3f80
        v_cndmask_b32 {vr(d + 1)}, 0, {vr(d + 3)}, vcc
        v_cmp_eq_u32 vcc, 20, {vr(d + 2)}
        v_mov_b32 {vr(d + 2)}, {vr(d + 1)}
        v_mov_b32 {vr(d + 3)}, {vr(d + 1)}
        v_cndmask_b32 {vr(d)}, {vr(d + 1)}, {vr(d)}, vcc
        """)

    def const_write(self, a, d, groups):
        g = self.g
        cur = 0
        for grp in groups:
            if (grp - cur) * 8 * REC + 2560 > 65535:
                g(f"v_add_u32 {vr(a)}, {(grp - cur) * 8 * REC}, {vr(a)}")
                cur = grp
            g.lds(f"ds_write_b128 {vr(a)}, {vr(d, 4)} offset:{2560 + (grp - cur) * 8 * REC}", "cw")

    def gate(self):
        g = self.g
        g.label("Lgate")
        g(f"""
        s_mul_i32 {sr(sT0)}, {sr(sRB)}, {192 * 128}
        s_mul_i32 {sr(sT1)}, {sr(sW)}, {24 * 128}
        s_add_u32 {sr(sT0)}, {sr(sT0)}, {sr(sT1)}
        v_lshlrev_b32 v2, 7, v0
        v_mov_b32 v3, 0
        s_mov_b64 exec, 0xffffff
        buffer_store_dword v3, v2, {sr(SWS, 4)}, {sr(sT0)} offen sc1
        s_mov_b64 exec, -1
        s_waitcnt vmcnt(0)
        s_barrier
        s_cmp_ge_u32 {sr(sW)}, 4
        s_cbranch_scc1 Lgate_g
        s_lshl_b32 {sr(sT1)}, {sr(sRB)}, 2
        s_cmp_lg_u32 {sr(sW)}, 0
        s_cselect_b32 {sr(sT1)}, {OOB}, {sr(sT1)}
        v_mov_b32 v2, 1
        s_mov_b64 exec, 1
        buffer_store_dword v2, v3, {sr(SDBG, 4)}, {sr(sT1)} offen sc1
        s_mov_b64 exec, -1
        """)
        from gen2 import attn_setup
        attn_setup(self)
        g("v_and_b32 v2, 15, v0\nv_lshlrev_b32 v2, 2, v2")
        self.poll(2, 3, SDBG, sleep=32)
        self.poll(18, 3, sleep=16)
        g("s_branch Lattn")
        g.label("Lgate_g")
        from gen2 import gemm_setup
        gemm_setup(self)
        g("s_branch Lgemm")

    def h_stores(self, vl16):
        g = self.g
        for b in range(8):
            s2, t = b >> 1, b & 1
            g(f"s_add_u32 {sr(sT0)}, {sr(sHS if s2 < 2 else sSCALE)}, {(t * 54 + s2) * 1024}")
            g.vmem(f"buffer_store_dwordx4 {vr(self.gACC + 8 * b, 4)}, {vr(vl16)}, {sr(SWS, 4)}, {sr(sT0)} offen sc1", "stH")

    def build(self):
        g = self.g
        self.prologue()
        self.phase1()
        self.gate()
        g.vm, g.lg, g.vm_done, g.lg_done = [], [], 0, 0
        from gen2 import phase2
        phase2(self)
        g.label("Lend")
        g("s_endpgm")
        g.label("Lcode_end")
        bad = hazard_check(g.lines)
        for b in bad:
            print("HAZARD", b, file=sys.stderr)
        head = open("gated_mix__mha_block__dense_activation_squared_relu__prompt.s.ref").read().split("; Override launch")[0]
        txt = head + f"; @launch grid=(256,1,1) block=(512,1,1) lds={LDS_BYTES}\n"
        txt += f""".amdgcn_target "amdgcn-amd-amdhsa--gfx950"
.text
.globl {NAME}
.p2align 8
.type {NAME},@function
{NAME}:
"""
        body = g.text().replace("CODE_BYTES", str(self.o.code_bytes))
        txt += body
        txt += f""".section .rodata,"a"
.p2align 6
.amdhsa_kernel {NAME}
  .amdhsa_next_free_vgpr 256
  .amdhsa_next_free_sgpr 102
  .amdhsa_accum_offset 256
  .amdhsa_group_segment_fixed_size 0
  .amdhsa_kernarg_size 96
  .amdhsa_user_sgpr_count 2
  .amdhsa_user_sgpr_kernarg_segment_ptr 1
  .amdhsa_system_sgpr_workgroup_id_x 1
.end_amdhsa_kernel
"""
        return txt, bad


def options(argv=None):
    p = argparse.ArgumentParser()
    p.add_argument("-o", default="gated_mix__mha_block__dense_activation_squared_relu__prompt.s")
    p.add_argument("--stamps", type=int, default=0)
    p.add_argument("--code_prefetch", type=int, default=1)
    p.add_argument("--order", default="x0,w0,x1,w1/x2,w2/x3,w3/x4,w4/x5,w5/x6,w6/x7,w7/x8,w8/x9,w9/b0,b1/b2,b3/b4,b5")
    p.add_argument("--rot", type=int, default=1)
    p.add_argument("--aprio", type=int, default=1)
    p.add_argument("--gprio", type=int, default=2)
    p.add_argument("--bprio", type=int, default=0)
    p.add_argument("--wdepth", type=int, default=7)
    p.add_argument("--a_st1", type=int, default=1)
    p.add_argument("--b0_early", type=int, default=0)
    p.add_argument("--b10_early", type=int, default=1)
    p.add_argument("--b0_stage", type=int, default=10)
    p.add_argument("--b1_stage", type=int, default=2)
    p.add_argument("--b2_stage", type=int, default=6)
    p.add_argument("--steps", default="5,5,4")
    p.add_argument("--kv34_early", type=int, default=0)
    p.add_argument("--hfirst", type=int, default=0)
    p.add_argument("--force_fallback", type=int, default=0)
    p.add_argument("--split", default="4,4,4,4")
    p.add_argument("--orot", type=int, default=1)
    p.add_argument("--qsleep", type=int, default=1)
    p.add_argument("--osleep", type=int, default=1)
    p.add_argument("--diag", default="")
    p.add_argument("--diag_role", default="gemm")
    p.add_argument("--tlb", type=int, default=0)
    p.add_argument("--hack", default="")
    p.add_argument("--fine", default="att")
    p.add_argument("--prio", type=int, default=1)
    o = p.parse_args(argv)
    o.code_bytes = 0
    return o


def code_size(txt):
    import subprocess, tempfile, os, re
    d = tempfile.mkdtemp()
    open(d + "/k.s", "w").write(txt)
    r = subprocess.run(["clang", "-x", "assembler", "-target", "amdgcn-amd-amdhsa", "-mcpu=gfx950", "-c", d + "/k.s", "-o", d + "/k.o"],
                       capture_output=True, text=True)
    if r.returncode:
        print(r.stderr[:3000]); raise SystemExit(1)
    r = subprocess.run(["llvm-readelf", "-S", d + "/k.o"], capture_output=True, text=True)
    m = re.search(r"\.text\s+PROGBITS\s+\S+\s+\S+\s+(\S+)", r.stdout)
    return int(m.group(1), 16)


if __name__ == "__main__":
    o = options()
    o.code_bytes = 4096
    txt, _ = Gen(o).build()
    sz = code_size(txt)
    o.code_bytes = (sz - 512) & ~3
    txt, bad = Gen(o).build()
    open(o.o, "w").write(txt)
    print(f"wrote {o.o}: code {sz} bytes, {len(txt)} chars, hazards {len(bad)}")
```

```python
from asmlib import *
from gen import *

SB = (64, 80, 96, 112)
OA = (32, 48)
QM = (128, 132)
QR = (136, 138)
KM = (140, 144)
KR = (148, 152)
VF = (160, 168)
vIDX, vFL, vQm, vQr, vGa, vL16, vCA, vCD, vKm, vKr, vV0, vV1, vOm, vOr, vG = 17, 18, 19, 20, 21, 22, 23, 24, 28, 29, 30, 31, 4, 5, 10
HX = 40
HXOFF = NREC * REC
sQ, sGb, saKV, saPair, saRec, sO0, sO1, sFO = 76, 77, 78, 79, 96, 97, 52, 53


BARS = (8, 24, 48)


def rec(t):
    return (t % NREC) * REC


def s_mfmas(n, dst=None):
    qt, t = n & 1, n >> 1
    d = SB[n % 4] if dst is None else dst
    kr = KR[(t >> 1) & 1] + 2 * (t & 1)
    return [f"v_mfma_f32_32x32x8_bf16 {vr(d, 16)}, {vr(kr, 2)}, {vr(QR[qt], 2)}, 0",
            f"v_mfma_f32_32x32x16_bf16 {vr(d, 16)}, {vr(KM[t & 1], 4)}, {vr(QM[qt], 4)}, {vr(d, 16)}"]


def pv_mfmas(n):
    qt, t = n & 1, n >> 1
    p, v = SB[n % 4], VF[t & 1]
    return [f"v_smfmac_f32_32x32x32_bf16 {vr(OA[qt], 16)}, {vr(v + 4 * u, 4)}, {vr(p + 8 * u, 8)}, {vr(vIDX)}" for u in range(2)]


def koff_code(g, dst, t0, t1):
    g(f"""
    v_bfe_u32 {vr(t0)}, v0, 3, 2
    v_and_b32 {vr(t1)}, 3, v0
    v_lshl_add_u32 {vr(t0)}, {vr(t0)}, 2, {vr(t1)}
    v_bfe_u32 {vr(t1)}, v0, 2, 1
    v_lshlrev_b32 {vr(t1)}, 3, {vr(t1)}
    v_lshl_add_u32 {vr(dst)}, {vr(t0)}, 4, {vr(t1)}
    """)


def row_max(g, src, dst, tmp):
    g(f"v_max3_f32 {vr(dst)}, {vr(src)}, {vr(src + 1)}, {vr(src + 2)}")
    for r in range(3, 15, 2):
        g(f"v_max3_f32 {vr(dst)}, {vr(dst)}, {vr(src + r)}, {vr(src + r + 1)}")
    g(f"v_max_f32 {vr(dst)}, {vr(dst)}, {vr(src + 15)}")


def both_halves(g, a, b):
    g(f"v_mov_b32 {vr(b)}, {vr(a)}\ns_nop 1\nv_permlane32_swap_b32 {vr(a)}, {vr(b)}")


def kv_scalar(G, sKV, sPair, sRec, first):
    G.g(f"""
    s_lshl_b32 {sr(sPair)}, {sr(sJ)}, 2
    s_add_u32 {sr(sPair)}, {sr(sPair)}, {sr(sTT)}
    s_add_u32 {sr(sPair)}, {sr(sPair)}, {first}
    s_and_b32 {sr(sPair)}, {sr(sPair)}, 31
    s_mul_i32 {sr(sKV)}, {sr(sH)}, {64 * 2560}
    s_add_u32 {sr(sKV)}, {sr(sKV)}, {KVOFF}
    s_mul_i32 {sr(sRec)}, {sr(sTT)}, {2 * REC}
    """)


def kv_columns(G, vtmp, vdst):
    G.g(f"""
    s_mul_i32 {sr(sT0)}, {sr(sH)}, 20
    s_add_u32 {sr(sT1)}, {sr(sT0)}, 19
    s_lshr_b32 {sr(sT0)}, {sr(sT0)}, 6
    s_lshr_b32 {sr(sT1)}, {sr(sT1)}, 6
    s_sub_u32 {sr(sT1)}, {sr(sT1)}, {sr(sT0)}
    v_and_b32 {vr(vdst)}, 1, v0
    v_mul_u32_u24 {vr(vdst)}, {sr(sT1)}, {vr(vdst)}
    v_add_u32 {vr(vdst + 1)}, {sr(sT0)}, {vr(vdst)}
    v_bfe_u32 {vr(vtmp)}, v0, 1, 1
    v_mul_u32_u24 {vr(vtmp)}, 10, {vr(vtmp)}
    v_add3_u32 {vr(vdst)}, {vr(vdst + 1)}, {vr(vtmp)}, 10
    """)


def kv_load(G, vl, sKV, sPair, sRec, groups, tag):
    g = G.g
    for grp in groups:
        g(f"s_mul_i32 {sr(sT1)}, {sr(sPair)}, 5120\ns_add_u32 {sr(sT1)}, {sr(sT1)}, {sr(sKV)}")
        for tau in range(2):
            for q in range(2):
                G.dma(SWS, vl, tau * 2560 + q * 1024, rec(8 * grp + tau) + q * 1024, tag, m0base=sRec, sbase=sT1, flags="sc1")
        g("s_mov_b32 exec_hi, 0")
        for tau in range(2):
            G.dma(SWS, vl, tau * 2560 + 2048, rec(8 * grp + tau) + 2048, tag, m0base=sRec, sbase=sT1, flags="sc1")
        g(f"s_mov_b32 exec_hi, -1\ns_add_u32 {sr(sPair)}, {sr(sPair)}, 4\ns_and_b32 {sr(sPair)}, {sr(sPair)}, 31")


def attn_setup(G, part=None):
    g = G.g
    if part != 1:
        attn_setup0(G)
    if part != 0:
        attn_setup1(G)


def attn_setup0(G):
    g = G.g
    kv_scalar(G, saKV, saPair, saRec, 0)
    kv_columns(G, 3, 64)
    g(f"""
    v_cmp_gt_u32 vcc, 4, v0
    v_lshlrev_b32 {vr(vL16)}, 4, v0
    v_lshrrev_b32 v66, 5, v0
    v_cndmask_b32 v2, v65, v64, vcc
    v_lshlrev_b32 v2, 5, v2
    v_add_u32 v2, {sr(saPair)}, v2
    v_lshlrev_b32 {vr(vFL)}, 7, v2
    v_and_b32 v67, 15, v0
    v_bfe_u32 v68, v0, 4, 1
    v_mul_u32_u24 v2, 1280, v68
    v_lshl_add_u32 {vr(vQr)}, v67, 4, v2
    v_lshl_add_u32 {vr(vQm)}, v66, 8, {vr(vQr)}
    v_lshlrev_b32 v2, 7, v68
    v_lshl_add_u32 {vr(vGa)}, v67, 2, v2
    s_lshl_b32 {sr(sT0)}, {sr(sH)}, 6
    s_lshl_b32 {sr(sT1)}, {sr(sJ)}, 3
    s_lshl_b32 {sr(sT2)}, {sr(sW)}, 1
    s_add_u32 {sr(sT1)}, {sr(sT1)}, {sr(sT2)}
    s_add_u32 {sr(sT0)}, {sr(sT0)}, {sr(sT1)}
    s_mul_i32 {sr(sQ)}, {sr(sT0)}, 1280
    s_add_u32 {sr(sQ)}, {sr(sQ)}, {QOFF}
    s_lshl_b32 {sr(sGb)}, {sr(sT1)}, 7
    s_add_u32 {sr(sGb)}, {sr(sGb)}, {GOFF}
    v_and_b32 v69, 31, v0
    v_mul_u32_u24 v2, 40960, v68
    v_lshl_add_u32 {vr(vOr)}, v67, 4, v2
    v_lshl_add_u32 {vr(vOm)}, v66, 8, {vr(vOr)}
    s_lshr_b32 {sr(sT0)}, {sr(sH)}, 1
    s_and_b32 {sr(sT0)}, {sr(sT0)}, 3
    s_and_b32 {sr(sT1)}, {sr(sH)}, 1
    s_lshl_b32 {sr(sT3)}, {sr(sT0)}, 10
    s_lshl_b32 {sr(sT4)}, {sr(sT1)}, 9
    s_add_u32 {sr(sT3)}, {sr(sT3)}, {sr(sT4)}
    v_add_u32 {vr(vOm)}, {sr(sT3)}, {vr(vOm)}
    s_lshl_b32 {sr(sT3)}, {sr(sT0)}, 8
    s_lshl_b32 {sr(sT4)}, {sr(sT1)}, 3
    s_add_u32 {sr(sT3)}, {sr(sT3)}, {sr(sT4)}
    s_add_u32 {sr(sT3)}, {sr(sT3)}, 4096
    v_add_u32 {vr(vOr)}, {sr(sT3)}, {vr(vOr)}
    s_lshl_b32 {sr(sT2)}, {sr(sJ)}, 2
    s_add_u32 {sr(sT2)}, {sr(sT2)}, {sr(sW)}
    s_mul_i32 {sr(sT3)}, {sr(sT2)}, {4 * 20480}
    s_lshr_b32 {sr(sT4)}, {sr(sH)}, 3
    s_mul_i32 {sr(sT4)}, {sr(sT4)}, 5120
    s_add_u32 {sr(sT3)}, {sr(sT3)}, {sr(sT4)}
    s_add_u32 {sr(sO0)}, {sr(sT3)}, {OOFF}
    s_add_u32 {sr(sO1)}, {sr(sO0)}, 20480
    s_lshl_b32 {sr(sT1)}, {sr(sT2)}, 5
    s_add_u32 {sr(sT1)}, {sr(sT1)}, {sr(sH)}
    s_lshl_b32 {sr(sT1)}, {sr(sT1)}, 7
    s_add_u32 {sr(sFO)}, {sr(sT1)}, {FO}
    """)
    G.const_regs(vCA, vCD)
    koff_code(g, 2, 3, 70)
    g(f"""
    v_lshl_add_u32 {vr(vKm)}, v66, 8, v2
    v_cmp_gt_u32 vcc, 32, v0
    v_add_u32 v2, 1024, v2
    v_mov_b32 v3, {2560 + 256 + 64}
    v_cndmask_b32 {vr(vKr)}, v3, v2, vcc
    v_mov_b32 {vr(vIDX)}, 0xdddddddd
    """)
    for u, dst in enumerate((vV0, vV1)):
        g(f"""
        v_add_u32 v2, {2 * u}, v66
        v_mul_u32_u24 v3, 320, v2
        v_lshl_add_u32 v3, v69, 4, v3
        v_add_u32 v3, 1280, v3
        v_lshlrev_b32 v2, 2, v2
        v_add_u32 v2, 12, v2
        v_and_b32 v2, 15, v2
        v_lshlrev_b32 v2, 4, v2
        v_add_u32 v2, 2560, v2
        v_cmp_gt_u32 vcc, 28, v69
        v_mov_b32 v70, {2560 + (9 if u == 0 else 1) * 16}
        v_mov_b32 v71, {2560 + 256 + (8 if u == 0 else 0) * 16}
        v_cndmask_b32 v2, v2, v70, vcc
        v_cmp_eq_u32 vcc, 20, v69
        s_nop 1
        v_cndmask_b32 v2, v2, v71, vcc
        v_cmp_gt_u32 vcc, 20, v69
        s_nop 1
        v_cndmask_b32 {vr(dst)}, v2, v3, vcc
        """)
    for r in range(32):
        if not HX <= OA[0] + r < HX + 8:
            g(f"v_mov_b32 {vr(OA[0] + r)}, 0")


def attn_setup1(G):
    g, o = G.g, G.o
    g(f"""
    s_lshl_b32 {sr(sT0)}, {sr(sRT)}, 1
    v_lshrrev_b32 v2, 1, v0
    v_min_u32 v2, 14, v2
    v_and_b32 v3, 1, v0
    v_lshl_add_u32 v2, v2, 6, v3
    v_add_u32 v2, {sr(sT0)}, v2
    s_lshl_b32 {sr(sT0)}, {sr(sJ)}, 3
    s_add_u32 {sr(sT0)}, {sr(sT0)}, 896
    v_cmp_gt_u32 vcc, 32, v0
    v_and_b32 v3, 7, v0
    v_add_u32 v3, {sr(sT0)}, v3
    v_cndmask_b32 v2, v3, v2, vcc
    v_subrev_u32 v3, 40, v0
    v_lshlrev_b32 v3, 2, v3
    v_add_u32 v3, {sr(sTT)}, v3
    s_mul_i32 {sr(sT0)}, {sr(sTT)}, 5
    v_min_u32 v1, 58, v0
    v_cmp_gt_u32 vcc, 54, v0
    v_add_u32 v1, {sr(sT0)}, v1
    s_lshr_b32 {sr(sT0)}, {sr(sCP)}, 2
    v_cndmask_b32 v3, v1, v3, vcc
    s_sub_u32 {sr(sT0)}, 255, {sr(sT0)}
    s_lshl_b32 {sr(sT0)}, {sr(sT0)}, 2
    s_and_b32 {sr(sT1)}, {sr(sCP)}, 3
    s_add_u32 {sr(sT0)}, {sr(sT0)}, {sr(sT1)}
    v_lshlrev_b32 v3, 3, v3
    v_cmp_gt_u32 vcc, 40, v0
    v_sub_u32 v3, {sr(sT0)}, v3
    s_nop 0
    v_cndmask_b32 v2, v3, v2, vcc
    v_lshlrev_b32 v2, 7, v2
    v_add_u32 {vr(HX + 4)}, {FH}, v2
    v_lshrrev_b32 v2, 2, v0
    v_mul_u32_u24 v2, 160, v2
    v_and_b32 v3, 3, v0
    v_lshl_add_u32 v2, v3, 3, v2
    s_add_u32 {sr(sT0)}, {sr(saRec)}, {40 * REC}
    v_add_u32 {vr(HX + 5)}, {sr(sT0)}, v2
    s_add_u32 {sr(sT1)}, {sr(sTT)}, {sr(sCP) if o.orot else 0}
    s_and_b32 {sr(sT1)}, {sr(sT1)}, 3
    s_lshl_b32 {sr(sT1)}, {sr(sT1)}, 4
    s_lshl_b32 {sr(sT0)}, {sr(sRT)}, 6
    s_add_u32 {sr(sT0)}, {sr(sT0)}, {sr(sT1)}
    v_and_b32 v2, 15, v0
    v_add_u32 v2, {sr(sT0)}, v2
    v_mul_u32_u24 v2, 1280, v2
    v_lshrrev_b32 v3, 4, v0
    v_lshl_add_u32 v2, v3, 3, v2
    s_mul_i32 {sr(sT0)}, {sr(sCP)}, 160
    v_add_u32 {vr(HX + 7)}, {sr(sT0)}, v2
    s_mul_i32 {sr(sT0)}, {sr(sTT)}, 20480
    s_add_u32 {sr(sT0)}, {sr(sT0)}, {REDOFF}
    v_add_u32 {vr(HX + 6)}, {sr(sT0)}, {vr(vL16)}
    s_lshl_b32 {sr(sT0)}, {sr(sRT)}, 5
    s_lshl_b32 {sr(sT1)}, {sr(sTT)}, 3
    s_add_u32 {sr(sT0)}, {sr(sT0)}, {sr(sT1)}
    s_add_u32 {sr(sT0)}, {sr(sT0)}, {FO // 128}
    v_and_b32 v2, 7, v0
    v_add_u32 v2, {sr(sT0)}, v2
    v_lshlrev_b32 {vr(HX)}, 7, v2
    """)
    for sg in range(3):
        g(f"""
        s_add_u32 {sr(sT0)}, {sr(sTT)}, {3 - sg}
        s_and_b32 {sr(sT0)}, {sr(sT0)}, 3
        s_mul_i32 {sr(sT0)}, {sr(sT0)}, 20480
        s_add_u32 {sr(sT0)}, {sr(sT0)}, {REDOFF + sg * 5120}
        v_add_u32 {vr(HX + 1 + sg)}, {sr(sT0)}, {vr(vL16)}
        """)
    g(f"""
    s_lshl_b32 {sr(sT0)}, {sr(sTT)}, 11
    s_add_u32 {sr(sT0)}, {sr(sT0)}, {HXOFF}
    v_add_u32 v1, {sr(sT0)}, {vr(vL16)}
    """)


def attention(G):
    g, o = G.g, G.o
    split = [int(x) for x in o.split.split(",")]
    g.label("Lattn")
    G.const_write(vCA, vCD, [0, 1, 2])
    g(f"v_add_u32 v6, {sr(saRec)}, {vr(vKm)}\nv_add_u32 v7, {sr(saRec)}, {vr(vKr)}\nv_add_u32 {vr(vCA)}, {24 * REC}, {vr(vCA)}")
    if o.b3_stage < 10 and not o.b3_late:
        g("s_waitcnt vmcnt(0)\ns_barrier")
    G.poll(vFL, 3, sleep=o.qsleep)
    G.stamp(4)
    for u in range(2):
        g.vmem(f"buffer_load_dwordx4 {vr(QM[u], 4)}, {vr(vQm)}, {sr(SWS, 4)}, {sr(sQ)} offen offset:{u * 512} sc1", "q")
    g.vmem(f"buffer_load_dwordx4 {vr(QR[0], 4)}, {vr(vQr)}, {sr(SWS, 4)}, {sr(sQ)} offen offset:1024 sc1", "q")
    kv_load(G, vL16, saKV, saPair, saRec, [0], "kv0")
    if o.b3_stage < 10 and o.b3_late:
        g("s_barrier")
    g.wait(vm="q")
    for r in range(2):
        g(f"v_swap_b32 {vr(QM[0] + 2 + r)}, {vr(QM[1] + r)}")
    g("s_mov_b32 exec_lo, 0")
    for r in range(4):
        g(f"v_mov_b32 {vr(QR[0] + r)}, 0")
    g("s_mov_b32 exec_lo, -1")
    g.wait(vm="all", lg="all")
    g.lds(f"ds_read2st64_b64 {vr(KR[0], 4)}, v7 offset0:0 offset1:6", "k0")
    g.lds(f"ds_read2st64_b64 {vr(KM[0], 4)}, v6 offset0:0 offset1:1", "k0")
    g.wait(lg="all")
    a0, a1 = s_mfmas(0), s_mfmas(1)
    g(a0[0]); g(a1[0]); g(a0[1]); g(a1[1])
    if o.b0_early:
        g("s_barrier")
        G.stamp(5)

    base = {vKm: 0, vKr: 0, vV0: 0, vV1: 0}

    def rebase(reg, off, span, lim):
        if not (0 <= off - base[reg] and off + span - base[reg] <= lim):
            g(f"v_add_u32 {vr(reg)}, {(off - base[reg]) & 0xFFFFFFFF}, {vr(reg)}")
            base[reg] = off
        return off - base[reg]

    def rdKm(t):
        b = rebase(vKm, rec(t), 512, 255 * 512) // 512
        g.lds(f"ds_read2st64_b64 {vr(KM[t & 1], 4)}, {vr(vKm)} offset0:{b} offset1:{b + 1}", ("km", t))

    def rdKr(t):
        b = rebase(vKr, rec(t), REC, 255 * 512) // 512
        g.lds(f"ds_read2st64_b64 {vr(KR[(t >> 1) & 1], 4)}, {vr(vKr)} offset0:{b} offset1:{b + 6}", ("kr", t))

    def rdV(t, u):
        r = (vV0, vV1)[u]
        g.lds(f"ds_read_b128 {vr(VF[t & 1] + 4 * u, 4)}, {vr(r)} offset:{rebase(r, rec(t), 0, 65535)}", ("v", t))

    def after_b0():
        rdKr(0); rdKm(0); rdKm(1)
        G.const_write(vCA, vCD, [0, 1, 2])
        for k in range(2):
            g.lds(f"ds_write_b128 v1, {vr(HX + 4 * k, 4)} offset:{1024 * k}", "hx")
        g.lds(f"ds_write_b64 v1, {vr(vOm, 2)} offset:8192", "hx")

    if o.b0_early:
        after_b0()
        g("s_nop 1")
    else:
        g("s_nop 10")
    for qt in range(2):
        row_max(g, SB[qt], 6 + 2 * qt, None)
    for qt in range(2):
        both_halves(g, 6 + 2 * qt, 7 + 2 * qt)
    for qt in range(2):
        g(f"v_max_f32 {vr(6 + 2 * qt)}, {vr(6 + 2 * qt)}, {vr(7 + 2 * qt)}")
    g("s_mov_b32 exec_lo, 0")
    for qt in range(2):
        g(f"v_cvt_pk_bf16_f32 {vr(QR[qt])}, -{vr(6 + 2 * qt)}, 0")
    g("s_mov_b32 exec_lo, -1")
    if not o.b0_early:
        g("s_barrier")
        G.stamp(5)
        after_b0()
    g(f"s_setprio {o.prio}")
    g.wait(lg=("km", 0))
    g(a0[0]); g(a0[1])
    g.wait(lg="hx")
    for r in range(8):
        g(f"v_mov_b32 {vr(HX + r)}, 0")
    g("s_nop 2")
    for n in range(128):
        qt, t = n & 1, n >> 1
        cur = SB[n % 4]
        m = (s_mfmas(n + 1) if n < 127 else [None, None]) + (pv_mfmas(n - 1) if n > 0 else [None, None])
        ex = [[], [], [], []]
        if qt == 0:
            ex[1].append(lambda: rdV(t, 0))
            ex[2].append(lambda: rdV(t, 1))
            if t + 1 < 64:
                ex[3].append(lambda: g.wait(lg=[("km", t + 1), ("kr", (t + 1) & ~1)]))
        else:
            ex[1].append(lambda: g.wait(lg=("v", t)))
            if t + 2 < 64:
                if t + 2 in BARS:
                    def bar():
                        g("s_barrier")
                        if t + 2 == 48:
                            for q2 in range(2):
                                g.vmem(f"buffer_load_dword {vr(vG + q2)}, {vr(vGa)}, {sr(SWS, 4)}, {sr(sGb)} offen offset:{q2 * 64} sc1", "g")
                    ex[1].append(bar)
                if (t + 2) % 8 == 0 and o.fine == "att":
                    ex[1].append(lambda: G.stamp(8 + (t + 2) // 8))
                ex[1].append(lambda: rdKm(t + 2))
                if t % 2 == 0:
                    ex[2].append(lambda: rdKr(t + 2))
        e = 0
        for i in range(4):
            if m[i]:
                g(m[i])
            for f in ex[i]:
                f()
            for _ in range(split[i]):
                g(f"v_exp_f32 {vr(cur + e)}, {vr(cur + e)}"); e += 1
    m = pv_mfmas(127)
    g(m[0]); g("s_nop 0"); g(m[1])
    g("s_nop 0")
    g.wait(vm="g")
    G.stamp(6)
    g("v_mov_b32 v8, 0\nv_mov_b32 v9, 0\ns_nop 0")
    for qt in range(2):
        g(f"v_mov_b32 {vr(12 + 2 * qt)}, {vr(OA[qt] + 8)}\nv_mov_b32 {vr(13 + 2 * qt)}, {vr(OA[qt] + 8)}")
        for r in range(0, 12, 2):
            g(f"v_pk_fma_f32 v[8:9], {vr(OA[qt] + r, 2)}, 0, v[8:9] op_sel_hi:[1,0,1]")
        g(f"v_permlane32_swap_b32 {vr(12 + 2 * qt)}, {vr(13 + 2 * qt)}")
    g(f"""
    v_add_f32 v8, v8, v9
    v_min_f32 v2, v13, v15
    v_max_f32 v3, v13, v15
    v_add_f32 v2, v2, v8
    v_cmp_nle_f32 vcc, {f32hex(2.0 ** -30)}, v2
    s_mov_b64 {sr(sA + 2, 2)}, vcc
    v_cmp_nge_f32 vcc, {f32hex(2.0 ** 60)}, v3
    s_or_b64 vcc, vcc, {sr(sA + 2, 2)}
    """)
    g("s_branch Lfallback" if o.force_fallback else "s_cbranch_vccnz Lfallback")
    g.label("Lnorm")
    for qt in range(2):
        g(f"v_rcp_f32 {vr(12 + 2 * qt)}, {vr(13 + 2 * qt)}")
    g("s_nop 0")
    for qt in range(2):
        g(f"v_mul_f32 {vr(12 + 2 * qt)}, {vr(12 + 2 * qt)}, {vr(vG + qt)}")
    for qt in range(2):
        a = OA[qt]
        for r in range(0, 12, 2):
            g(f"v_pk_mul_f32 {vr(a + r, 2)}, {vr(a + r, 2)}, {vr(12 + 2 * qt, 2)} op_sel_hi:[1,0]")
        for q in range(6):
            g(f"v_cvt_pk_bf16_f32 {vr(a + q)}, {vr(a + 2 * q)}, {vr(a + 2 * q + 1)}")
        g(f"buffer_store_dwordx4 {vr(a, 4)}, {vr(vOm)}, {sr(SWS, 4)}, {sr((sO0, sO1)[qt])} offen sc1")
    g("s_mov_b32 exec_hi, 0")
    for qt in range(2):
        g(f"buffer_store_dwordx2 {vr(OA[qt] + 4, 2)}, {vr(vOr)}, {sr(SWS, 4)}, {sr((sO0, sO1)[qt])} offen sc1")
    g("s_mov_b32 exec_hi, -1\ns_barrier")
    if not o.tags:
        g("s_waitcnt vmcnt(0)")
        G.set_flag(f"s_mov_b32 {sr(sT1)}, {sr(sFO)}", 2, 3)
    G.stamp(7)
    G.dump_stamps()
    g("s_endpgm")
    fallback(G)


def fallback(G):
    g = G.g
    sK, sN = sA, sA + 1
    vMx = (20, 22)
    g.label("Lfallback")
    koff_code(g, 24, 2, 3)
    g(f"""
    v_lshrrev_b32 v6, 5, v0
    v_and_b32 v13, 31, v0
    v_lshl_add_u32 v25, v6, 8, v24
    v_mul_u32_u24 v26, 320, v6
    v_lshl_add_u32 v26, v13, 4, v26
    v_cmp_gt_u32 vcc, 20, v13
    s_mov_b64 {sr(sA + 4, 2)}, vcc
    v_cmp_eq_u32 vcc, 20, v13
    v_mov_b32 v2, 0x3f803f80
    v_mov_b32 v20, 0xff800000
    v_mov_b32 v22, 0xff800000
    """)
    for r in range(8):
        g(f"v_cndmask_b32 {vr(VF[0] + r)}, 0, v2, vcc")
    g("s_mov_b32 exec_lo, 0")
    for r in range(4):
        g(f"v_mov_b32 {vr(QR[0] + r)}, 0")
    g("s_mov_b32 exec_lo, -1")
    for r in range(32):
        g(f"v_mov_b32 {vr(OA[0] + r)}, 0")
    for ps in range(2):
        L = G.lab("fb")
        g(f"s_mul_i32 {sr(sK)}, {sr(sH)}, {64 * 2560}\ns_add_u32 {sr(sK)}, {sr(sK)}, {KVOFF}\ns_mov_b32 {sr(sN)}, 64")
        g.label(L)
        for u in range(2):
            g(f"buffer_load_dwordx2 {vr(KM[0] + 2 * u, 2)}, v25, {sr(SWS, 4)}, {sr(sK)} offen offset:{512 * u} sc1")
        g(f"buffer_load_dwordx2 {vr(KR[0], 2)}, v24, {sr(SWS, 4)}, {sr(sK)} offen offset:1024 sc1")
        if ps:
            g(f"s_mov_b64 exec, {sr(sA + 4, 2)}")
            for u in range(2):
                g(f"buffer_load_dwordx4 {vr(VF[0] + 4 * u, 4)}, v26, {sr(SWS, 4)}, {sr(sK)} offen offset:{1280 + 640 * u} sc1")
            g("s_mov_b64 exec, -1")
        g("s_waitcnt vmcnt(0)")
        a0, a1 = s_mfmas(0), s_mfmas(1)
        g(a0[0]); g(a1[0]); g(a0[1]); g(a1[1])
        g("s_nop 11")
        for qt in range(2):
            if ps == 0:
                row_max(g, SB[qt], 2, None)
                g(f"v_max_f32 {vr(vMx[qt])}, {vr(vMx[qt])}, v2")
            else:
                for r in range(16):
                    g(f"v_sub_f32 {vr(SB[qt] + r)}, {vr(SB[qt] + r)}, {vr(vMx[qt])}")
                for r in range(16):
                    g(f"v_exp_f32 {vr(SB[qt] + r)}, {vr(SB[qt] + r)}")
                g("s_nop 1")
                for x in pv_mfmas(qt):
                    g(x)
        g(f"s_add_u32 {sr(sK)}, {sr(sK)}, 2560\ns_sub_u32 {sr(sN)}, {sr(sN)}, 1\ns_cmp_lg_u32 {sr(sN)}, 0\ns_cbranch_scc1 {L}")
        if ps == 0:
            for qt in range(2):
                both_halves(g, vMx[qt], vMx[qt] + 1)
                g(f"v_max_f32 {vr(vMx[qt])}, {vr(vMx[qt])}, {vr(vMx[qt] + 1)}")
    g("s_nop 11")
    for qt in range(2):
        g(f"v_mov_b32 {vr(12 + 2 * qt)}, {vr(OA[qt] + 8)}")
        both_halves(g, 12 + 2 * qt, 13 + 2 * qt)
    g("s_branch Lnorm")


GA, BI = 64, 4
RING = [r for r in range(24, 64, 4)] + [r for r in range(144, 248, 4)]
vL, vLb, vGG = 248, 249, 252
sWp, sgKV, sgPair, sgRec, sHb = sTT, 73, 74, 75, 76
sPa, sPb, sPc, sPd, sPdst, sPcol, sOwn, sFH = 96, 97, 98, 99, 48, 49, 50, 51
SPK = SCODE
vgFL, vgPK = 11, 3


def gemm_setup(G, part=None):
    if part != 1:
        gemm_setup0(G)
    if part != 0:
        gemm_setup1(G)


def gemm_setup0(G):
    g, o = G.g, G.o
    kv_scalar(G, sgKV, sgPair, sgRec, 4)
    kv_columns(G, 28, 30)
    g(f"""
    v_lshrrev_b32 v28, 2, v0
    v_min_u32 v28, 6, v28
    v_lshlrev_b32 v28, 2, v28
    v_add_u32 v28, {sr(sgPair)}, v28
    v_and_b32 v28, 31, v28
    v_lshl_add_u32 v28, v30, 5, v28
    v_lshlrev_b32 {vr(vgFL)}, 7, v28
    v_mul_u32_u24 v28, 26, v0
    v_lshrrev_b32 v28, 8, v28
    v_mul_u32_u24 v28, {1280 - 160}, v28
    v_lshl_add_u32 {vr(vgPK)}, v0, 4, v28
    s_add_u32 {sr(sOwn)}, {sr(sWp)}, {sr(sCP) if o.orot else 0}
    s_and_b32 {sr(sOwn)}, {sr(sOwn)}, 3
    """)
    for sg in range(4):
        g(f"""
        s_add_u32 {sr(sT0)}, {sr(sOwn)}, {1 + sg}
        s_and_b32 {sr(sT0)}, {sr(sT0)}, 3
        s_lshl_b32 {sr(sT1)}, {sr(sRT)}, 2
        s_add_u32 {sr(sHb + sg)}, {sr(sT0)}, {sr(sT1)}
        """)


def gemm_setup1(G):
    g = G.g
    LW, LJ = G.lab("pw2"), G.lab("pj")
    g(f"""
    s_lshl_b32 {sr(sT0)}, {sr(sCS)}, 4
    s_add_u32 {sr(sT0)}, {sr(sT0)}, {sr(sRB)}
    s_lshl_b32 {sr(sFH)}, {sr(sT0)}, 2
    s_add_u32 {sr(sFH)}, {sr(sFH)}, {sr(sWp)}
    s_lshl_b32 {sr(sFH)}, {sr(sFH)}, 7
    s_add_u32 {sr(sFH)}, {sr(sFH)}, {FH}
    s_sub_u32 {sr(sT0)}, 255, {sr(sT0)}
    s_lshr_b32 {sr(sT1)}, {sr(sT0)}, 1
    s_and_b32 {sr(sT0)}, {sr(sT0)}, 1
    s_lshl_b32 {sr(sT0)}, {sr(sT0)}, 2
    s_add_u32 {sr(sT0)}, {sr(sT0)}, {sr(sWp)}
    s_mul_i32 {sr(sPdst)}, {sr(sT1)}, 40960
    s_mul_i32 {sr(sT2)}, {sr(sT0)}, 5120
    s_add_u32 {sr(sPdst)}, {sr(sPdst)}, {sr(sT2)}
    s_add_u32 {sr(sPdst)}, {sr(sPdst)}, {WPOFF}
    s_mul_i32 {sr(sPcol)}, {sr(sT0)}, 160
    s_mov_b32 {sr(SPK + 3)}, 0x20000
    s_cmp_lt_u32 {sr(sT1)}, 54
    s_cbranch_scc1 {LW}
    s_mov_b64 {sr(SPK, 2)}, {sr(SWO, 2)}
    s_mov_b32 {sr(SPK + 2)}, {640 * 1280}
    s_cmp_ge_u32 {sr(sT1)}, 74
    s_cselect_b32 {sr(sPdst)}, {OOB}, {sr(sPdst)}
    s_sub_u32 {sr(sT1)}, {sr(sT1)}, 54
    s_mul_i32 {sr(sT2)}, {sr(sT1)}, 205
    s_lshr_b32 {sr(sT2)}, {sr(sT2)}, 10
    s_mul_i32 {sr(sT3)}, {sr(sT2)}, 5
    s_sub_u32 {sr(sT3)}, {sr(sT1)}, {sr(sT3)}
    s_mul_i32 {sr(sT2)}, {sr(sT2)}, 160
    s_mul_i32 {sr(sT4)}, {sr(sT3)}, 40
    s_cmp_eq_u32 {sr(sT3)}, 4
    s_cselect_b32 {sr(sT4)}, 16, {sr(sT4)}
    s_cselect_b32 {sr(sPa)}, 20, 8
    s_cselect_b32 {sr(sPb)}, 80, 20
    s_cselect_b32 {sr(sPc)}, 40, 4
    s_add_u32 {sr(sPd)}, {sr(sT2)}, {sr(sT4)}
    s_branch {LJ}
    """)
    g.label(LW)
    g(f"""
    s_mov_b64 {sr(SPK, 2)}, {sr(SW2, 2)}
    s_mov_b32 {sr(SPK + 2)}, {1728 * 1280}
    s_mov_b32 {sr(sPa)}, 16
    s_mov_b32 {sr(sPb)}, 8
    s_mov_b32 {sr(sPc)}, 4
    s_lshl_b32 {sr(sPd)}, {sr(sT1)}, 5
    """)
    g.label(LJ)
    for r in (sPa, sPb, sPc, sPd):
        g(f"s_mul_i32 {sr(r)}, {sr(r)}, 1280")
    g(f"""
    s_add_u32 {sr(sPd)}, {sr(sPd)}, {sr(sPcol)}
    s_lshl_b32 {sr(sT0)}, {sr(sRB)}, 3
    s_lshl_b32 {sr(sT1)}, {sr(sTT)}, 1
    s_add_u32 {sr(sT0)}, {sr(sT0)}, {sr(sT1)}
    s_mul_i32 {sr(sT0)}, {sr(sT0)}, 54
    s_lshl_b32 {sr(sT1)}, {sr(sCS)}, 2
    s_add_u32 {sr(sT0)}, {sr(sT0)}, {sr(sT1)}
    s_lshl_b32 {sr(sT0)}, {sr(sT0)}, 10
    s_add_u32 {sr(sT0)}, {sr(sT0)}, {HOFF}
    s_cmp_ge_u32 {sr(sCS)}, 14
    s_cselect_b32 {sr(sHS)}, {OOB}, {sr(sT0)}
    s_cmp_ge_u32 {sr(sCS)}, 13
    s_cselect_b32 {sr(sSCALE)}, {OOB}, {sr(sT0)}
    """)


def gemm(G):
    g, o = G.g, G.o
    steps = [int(x) for x in o.steps.split(",")]
    assert sum(steps) == 14 and len(steps) == 3 and steps[2] <= 4
    sWb, sWl, sWo, sOb = sA, sA + 1, sA + 2, SB1
    kv = lambda groups, tag: kv_load(G, vL, sgKV, sgPair, sgRec, groups, tag)
    g.label("Lgemm")
    vFO, vRR, vFH, vTR, vRW, vOut, vB2, vZ = 0, 1, 4, 5, 250, 251, 8, 10
    g(f"""
    v_lshlrev_b32 {vr(vL)}, 4, v0
    v_add_u32 {vr(vLb)}, 4096, {vr(vL)}
    s_lshl_b32 {sr(sT0)}, {sr(sTT)}, 11
    s_add_u32 {sr(sT0)}, {sr(sT0)}, {HXOFF}
    v_add_u32 v12, {sr(sT0)}, {vr(vL)}
    v_and_b32 v13, 15, v0
    v_lshlrev_b32 v13, 2, v13
    v_mov_b32 v14, 0
    v_mov_b32 v15, 1
    v_mov_b32 v16, -1
    v_mov_b32 v17, -1
    v_mov_b32 v18, -1
    v_mov_b32 v19, -1
    s_barrier
    """)
    G.poll(vgFL, 2, sleep=2)
    G.stamp(4)
    kv([1, 2], "kv1")
    g("s_mov_b32 exec_hi, 0xff")
    for q in range(8):
        g(f"s_mov_b32 {sr(sT1)}, {sr(sPd)}")
        for bit, r in ((4, sPa), (2, sPb), (1, sPc)):
            if q & bit:
                g(f"s_add_u32 {sr(sT1)}, {sr(sT1)}, {sr(r)}")
        G.dma(SPK, vgPK, 0, (40 + (q >> 2)) * REC + (q & 3) * 640, "pk", m0base=sgRec, sbase=sT1)
    g("s_mov_b32 exec_hi, -1")
    g.wait(vm="kv1")
    if o.kv34_early:
        kv([3, 4], "kv2")
    g("s_barrier")
    g.lds("ds_read_b128 v[4:7], v12 offset:1024", "hx")
    g.lds("ds_read_b128 v[0:3], v12", "hx")
    if not o.kv34_early:
        kv([3, 4], "kv2")
    g.wait(vm="pk", lg="hx")
    for n in range(5):
        for u in range(2):
            g.lds(f"ds_read_b64_tr_b16 {vr(96 + 4 * n + 2 * u, 2)}, {vr(vTR)} offset:{u * REC + n * 32}", "pr")
    g.lds(f"ds_read_b64 {vr(vRW, 2)}, v12 offset:1032", "hx")
    g.lds(f"ds_read_b64 v[6:7], v12 offset:8192", "hx")
    g.wait(lg="all")
    kv([5], "kv2")
    G.h_stores(vL)
    for n in range(5):
        g.vmem(f"buffer_store_dwordx4 {vr(96 + 4 * n, 4)}, {vr(vL if n < 4 else vLb)}, {sr(SWS, 4)}, {sr(sPdst)} offen offset:{(n % 4) * 1024} sc1", "ps")
    for sg in range(4):
        g(f"s_lshl_b32 {sr(sT0)}, {sr(sHb + sg)}, 6\ns_add_u32 {sr(sPa + sg)}, {sr(sT0)}, {GOFF}")
        g(f"""
        s_mul_i32 {sr(sT0)}, {sr(sHb + sg)}, 20480
        s_mul_i32 {sr(sT1)}, {sr(sWp)}, 5120
        s_add_u32 {sr(sT0)}, {sr(sT0)}, {sr(sT1)}
        s_add_u32 {sr(sOb + sg)}, {sr(sT0)}, {OOFF}
        s_mul_i32 {sr(sHb + sg)}, {sr(sHb + sg)}, 54
        s_add_u32 {sr(sHb + sg)}, {sr(sHb + sg)}, {sr(sWp)}
        s_lshl_b32 {sr(sHb + sg)}, {sr(sHb + sg)}, 10
        s_add_u32 {sr(sHb + sg)}, {sr(sHb + sg)}, {HOFF}
        """)
    g(f"""
    s_mul_i32 {sr(sWb)}, {sr(sWp)}, 40960
    s_mul_i32 {sr(sT0)}, {sr(sCP)}, 5120
    s_add_u32 {sr(sWb)}, {sr(sWb)}, {sr(sT0)}
    s_add_u32 {sr(sWb)}, {sr(sWb)}, {WPOFF}
    s_mul_i32 {sr(sWo)}, {sr(sWp)}, {4 * 40960}
    s_add_u32 {sr(sWo)}, {sr(sWo)}, {sr(sWb)}
    s_add_u32 {sr(sWo)}, {sr(sWo)}, {54 * 40960}
    s_mul_i32 {sr(sWl)}, {sr(sWp)}, 20480
    """)
    g.wait(vm="all")
    g("s_mov_b64 exec, 1")
    g.vmem(f"buffer_store_dword v15, v14, {sr(SWS, 4)}, {sr(sFH)} offen sc1", "flag")
    g("s_mov_b64 exec, -1")
    G.stamp(11 if o.fine != "B" else 99)
    if o.tags:
        g(f"""
        s_lshl_b32 {sr(sT2)}, {sr(sJ)}, 2
        s_add_u32 {sr(sT2)}, {sr(sT2)}, {sr(sTT)}
        s_mul_i32 {sr(sT3)}, {sr(sT2)}, {4 * 20480}
        s_lshr_b32 {sr(sT4)}, {sr(sH)}, 3
        s_mul_i32 {sr(sT4)}, {sr(sT4)}, 5120
        s_add_u32 {sr(sT3)}, {sr(sT3)}, {sr(sT4)}
        s_add_u32 {sr(sT3)}, {sr(sT3)}, {OOFF}
        s_add_u32 {sr(sT4)}, {sr(sT3)}, 20480
        s_lshl_b32 {sr(sT2)}, {sr(sT2)}, 5
        s_add_u32 {sr(sT2)}, {sr(sT2)}, {sr(sH)}
        s_lshl_b32 {sr(sT2)}, {sr(sT2)}, 7
        s_add_u32 {sr(sFH)}, {sr(sT2)}, {FO}
        """)
        for r in (sT3, sT4):
            g.vmem(f"buffer_store_dwordx4 v[16:19], v6, {sr(SWS, 4)}, {sr(r)} offen sc1", "mark")
        g("s_mov_b32 exec_hi, 0")
        for r in (sT3, sT4):
            g.vmem(f"buffer_store_dwordx2 v[16:17], v7, {sr(SWS, 4)}, {sr(r)} offen sc1", "mark")
        g("s_mov_b32 exec_hi, -1")
    g("s_barrier")
    kv([6, 7], "kv3")

    def frag(i, k):
        return RING[(i % 4) * 9 + k]

    def loads(i):
        L = []
        for n in range(5):
            L.append(lambda n=n: g.vmem(f"buffer_load_dwordx4 {vr(frag(i, n), 4)}, {vr(vL if n < 4 else vLb)}, {sr(SWS, 4)}, {sr(sWb)} offen offset:{(n % 4) * 1024} sc1", ("f", i)))
        for sg in range(4):
            def h(sg=sg):
                g.vmem(f"buffer_load_dwordx4 {vr(frag(i, 5 + sg), 4)}, {vr(vL)}, {sr(SWS, 4)}, {sr(sHb + sg)} offen sc1", ("f", i))
                g(f"s_add_u32 {sr(sHb + sg)}, {sr(sHb + sg)}, 4096")
                if sg == 3:
                    g(f"s_add_u32 {sr(sWb)}, {sr(sWb)}, {4 * 40960}")
            L.append(h)
        return L

    issued = [0]
    extra = []

    def step(i):
        pend = []
        if i + 3 < 14 and issued[0] == i + 3:
            pend = loads(i + 3); issued[0] += 1
        g.wait(vm=("f", i))
        L = None
        if i == 13:
            L = G.lab("skip")
            g(f"s_cmp_ge_u32 {sr(sWp)}, 2\ns_cbranch_scc1 {L}")
        k = 0
        for n in range(5):
            for sg in range(4):
                a = GA + 20 * sg + 4 * n
                c = "0" if i == 0 else vr(a, 4)
                g(f"v_mfma_f32_16x16x32_bf16 {vr(a, 4)}, {vr(frag(i, n), 4)}, {vr(frag(i, 5 + sg), 4)}, {c}")
                k += 1
                if k % 2 == 1 and pend:
                    pend.pop(0)()
                elif k % 4 == 2 and extra and i < 13:
                    extra.pop(0)()
        if L:
            g.label(L)

    G.poll(vFH, 12, sleep=4)
    G.stamp(5)
    if o.tags:
        g("s_mov_b64 exec, 1")
        g.vmem(f"buffer_store_dword v15, v14, {sr(SWS, 4)}, {sr(sFH)} offen sc1", "flag")
        g("s_mov_b64 exec, -1")
    for i in range(3):
        for f in loads(i):
            f()
        issued[0] += 1
    for sg in range(4):
        g.vmem(f"buffer_load_dword {vr(vGG + sg)}, v13, {sr(SWS, 4)}, {sr(sPa + sg)} offen sc1", "g")
    done = 0
    for _ in range(steps[0]):
        step(done); done += 1
    g.wait(vm="kv3")
    g("s_barrier")
    for s in range(4):
        for n in range(5):
            extra.append(lambda s=s, n=n: G.dma(SWS, vL, s * 40960 + n * 1024, REDOFF + s * 5120 + n * 1024, "wo", m0base=sWl, sbase=sWo, flags="sc1"))

    def wo4(n):
        g(f"s_add_u32 {sr(sT0)}, {sr(sWo)}, {4 * 40960 + n * 1024}")
        g.vmem(f"buffer_load_dwordx4 {vr(BI + 4 * n, 4)}, {vr(vL)}, {sr(SWS, 4)}, {sr(sT0)} offen sc1", "wo")
    assert steps[0] >= 1
    extra.extend(lambda n=n: wo4(n) for n in range(5))
    for _ in range(steps[1]):
        step(done); done += 1
    while issued[0] < 14:
        for f in loads(issued[0]):
            f()
        issued[0] += 1
    while extra:
        extra.pop(0)()
    g(f"s_mul_i32 {sr(sT1)}, {sr(sCP)}, 160\ns_lshl_b32 {sr(sT2)}, {sr(sTT)}, 11\ns_mov_b64 exec, 0x3ff")
    G.dma(SB2, vL, 0, HXOFF + 9216, "b2", m0base=sT2, sbase=sT1)
    g("s_mov_b64 exec, -1")
    if o.tags:
        G.poll(vFO, vLb, sleep=4)
        g(f"v_add_u32 {vr(vLb)}, 4096, {vr(vL)}")
    G.stamp(12 if o.fine != "B" else 99)
    g("s_barrier")
    for _ in range(steps[2]):
        step(done); done += 1
    G.stamp(6)
    wof = lambda s, n: (144 + 20 * s if s < 4 else BI) + 4 * n
    of = lambda sg, s: (24, 44, 224)[sg % 3] + 4 * s

    def oload(sg):
        for s in range(5):
            g.vmem(f"buffer_load_dwordx4 {vr(of(sg, s), 4)}, {vr(vL if s < 4 else vLb)}, {sr(SWS, 4)}, {sr(sOb + sg)} offen offset:{(s % 4) * 1024} sc1", ("o", sg, s))

    g.wait(vm="all")
    first = list(range(o.ospin))
    if o.tags:
        for sg in first:
            oload(sg)
    g(f"""
    v_lshrrev_b32 v246, 8, {vr(vL)}
    v_lshlrev_b32 v246, 3, v246
    s_add_u32 {sr(sT2)}, {sr(sT2)}, {HXOFF + 9216}
    v_add_u32 v246, {sr(sT2)}, v246
    """)
    for n in range(5):
        g.lds(f"ds_read_b64 {vr(204 + 2 * n, 2)}, v246 offset:{32 * n}", "b2r")
    for s in range(3):
        for n in range(5):
            g.lds(f"ds_read_b128 {vr(wof(s, n), 4)}, {vr(vRW)} offset:{s * 5120 + n * 1024}", "wor")
    g.wait(lg="b2r")
    for k in range(10):
        a = GA + 60 + 2 * k
        g(f"v_lshlrev_b32 v244, 16, {vr(204 + k)}\nv_and_b32 v245, 0xffff0000, {vr(204 + k)}\nv_pk_add_f32 {vr(a, 2)}, {vr(a, 2)}, v[244:245]")
    for n in range(5):
        g.lds(f"ds_read_b128 {vr(wof(3, n), 4)}, {vr(vRW)} offset:{3 * 5120 + n * 1024}", "wor")
    for sg in range(4):
        g(f"v_sub_f32 v244, 1.0, {vr(vGG + sg)}")
        for r in range(0, 20, 2):
            a = GA + 20 * sg + r
            g(f"v_pk_mul_f32 {vr(a, 2)}, {vr(a, 2)}, {vr(244, 2)} op_sel_hi:[1,0]")
    g.wait(lg="all")
    G.stamp(7)
    if not o.tags:
        G.poll(vFO, 246, sleep=o.osleep)
        G.stamp(8)

    def rwrite(sg):
        return [lambda n=n: g.lds(f"ds_write_b128 {vr(vRW)}, {vr(GA + 20 * sg + 4 * n, 4)} offset:{sg * 5120 + n * 1024}", "rw") for n in range(5)]

    def check_ops(sg):
        r = of(sg, 0)
        ops = [f"v_max3_u32 v247, {vr(r)}, {vr(r + 1)}, {vr(r + 2)}"]
        ops += [f"v_max3_u32 v247, v247, {vr(r + k)}, {vr(r + k + 1)}" for k in range(3, 19, 2)]
        ops += [f"v_max_u32 v247, v247, {vr(r + 19)}", "v_cmp_eq_u32 vcc, -1, v247"]
        return ops

    def spin(sg):
        L, E = G.lab("ospin"), G.lab("odone")
        g(f"s_mov_b32 {sr(sSPIN)}, {SPIN}")
        g.label(L)
        oload(sg)
        g(f"s_sub_u32 {sr(sSPIN)}, {sr(sSPIN)}, 1\ns_waitcnt vmcnt(0)\ns_cbranch_scc1 {E}")
        for x in check_ops(sg):
            g(x)
        g(f"s_cbranch_vccnz {L}")
        g.label(E)
        g.vm_done = len(g.vm)

    retries = []
    if o.tags:
        L, C, E = G.lab("o0spin"), G.lab("o0chk"), G.lab("o0done")
        g(f"s_mov_b32 {sr(sSPIN)}, {SPIN}\ns_branch {C}")
        g.label(L)
        st = g.state()
        for sg in first:
            oload(sg)
        g.restore(st)
        g.label(C)
        g(f"s_sub_u32 {sr(sSPIN)}, {sr(sSPIN)}, 1")
        g.wait(vm=("o", 0, 4))
        g(f"s_cbranch_scc1 {E}")
        for x in check_ops(0):
            g(x)
        g(f"s_cbranch_vccnz {L}")
        g.label(E)
        G.stamp(8)
        for sg in range(o.ospin, 3):
            oload(sg)
    else:
        for sg in range(3):
            oload(sg)
    for sg in range(4):
        pend = rwrite(sg - 1) if sg else []
        chk = check_ops(sg + 1) if o.tags and sg < 3 else []
        k = 0
        order = [(s, n) for s in range(5) for n in range(5)] if not o.tags else [(s, n) for n in range(5) for s in range(5)]
        for s, n in order:
            g.wait(vm=("o", sg, s))
            a = GA + 20 * sg + 4 * n
            g(f"v_mfma_f32_16x16x32_bf16 {vr(a, 4)}, {vr(wof(s, n), 4)}, {vr(of(sg, s), 4)}, {vr(a, 4)}")
            k += 1
            if k >= (4 if o.tags else 8) and pend:
                pend.pop(0)()
            elif k > 25 - o.chk_late and chk:
                g.wait(vm=("o", sg + 1, 4))
                for x in chk[:2]:
                    g(x)
                chk = chk[2:]
            if sg == 3 and k == (11 if o.tags else 15):
                g.wait(lg="all")
                g("s_barrier")
                for x in range(3):
                    for n2 in range(5):
                        g.lds(f"ds_read_b128 {vr(GA + 20 * x + 4 * n2, 4)}, {vr(vRR + x)} offset:{n2 * 1024}", ("rr", x))
        if chk:
            g.wait(vm=("o", sg + 1, 4))
            for x in chk:
                g(x)
        if sg == 0:
            oload(3)
        if o.tags and sg < 3:
            R, B = G.lab("oretry"), G.lab("oback")
            g(f"s_cbranch_vccnz {R}")
            g.label(B)
            retries.append((R, B, sg + 1))
    G.stamp(9)
    g.wait(lg=("rr", 1))
    for r in range(0, 20, 2):
        g(f"v_pk_add_f32 {vr(GA + r, 2)}, {vr(GA + r, 2)}, {vr(GA + 20 + r, 2)}")
    g.wait(lg=("rr", 2))
    for r in range(0, 20, 2):
        g(f"v_pk_add_f32 {vr(GA + r, 2)}, {vr(GA + r, 2)}, {vr(GA + 40 + r, 2)}")
    for n in range(5):
        a = GA + 4 * n
        for r in range(0, 4, 2):
            g(f"v_pk_add_f32 {vr(a + r, 2)}, {vr(a + r, 2)}, {vr(a + 60 + r, 2)}")
        g(f"v_cvt_pk_bf16_f32 {vr(a)}, {vr(a)}, {vr(a + 1)}\nv_cvt_pk_bf16_f32 {vr(a + 1)}, {vr(a + 2)}, {vr(a + 3)}")
        g(f"buffer_store_dwordx2 {vr(a, 2)}, {vr(vOut)}, {sr(SOUT, 4)}, 0 offen offset:{32 * n}")
    if o.stamps:
        g("s_waitcnt vmcnt(0)")
    G.stamp(10)
    G.dump_stamps()
    g("s_endpgm")
    for R, B, sg in retries:
        g.label(R)
        spin(sg)
        g(f"s_branch {B}")


def phase2(G):
    g = G.g
    st = g.state()
    G.role = 'attn'
    attention(G)
    g.restore(st)
    G.role = 'gemm'
    gemm(G)
```

```python
import sys, math, argparse
from asmlib import *

NAME = "gated_mix__mha_block__dense_activation_squared_relu__prompt_kernel"

FQ, FH, FO, GOFF, TSOFF = 0x0, 0x20000, 0x40000, 0x60000, 0x80000
QOFF, KVOFF, HOFF, OOFF, WPOFF, WS_SIZE = 0x100000, 0x400000, 0x900000, 0x1000000, 0x1280000, 0x1580000
OOB = 0x7F000000
QSCALE = math.log2(math.e) / math.sqrt(20.0)
LDS_BYTES = 163840
NREC, REC = 48, 3072
REDOFF = 16 * REC
SPIN = 1 << 21

sW, sRB, sCS, sJ, sH = 3, 4, 5, 6, 7
SX, SWQ, SW1, SWS, SW2, SWO, SOUT, SB1, SB2, SGW, SDBG, SCODE = (8 + 4 * i for i in range(12))
sM0, sT0, sT1, sT2, sRT, sCP, sTT, sCH = 56, 57, 58, 59, 60, 61, 62, 63
sSPIN, sSCALE, sHS, sT3, sT4, sT5 = 64, 65, 66, 67, 68, 69
sA = 70
sTS = 80


def f32hex(x):
    import struct
    return hex(struct.unpack("<I", struct.pack("<f", x))[0])


class Gen:
    def __init__(self, opt):
        self.o = opt
        self.g = Stream()
        self.nlab = 0
        self.role = ''

    def lab(self, base):
        self.nlab += 1
        return f"L{base}_{self.nlab}"

    def stamp(self, k):
        if self.o.diag:
            g = self.g
            pt, us = (int(x) for x in self.o.diag.split(":"))
            if k == 0:
                g(f"s_memrealtime s[80:81]\ns_waitcnt lgkmcnt(0)\ns_add_u32 s80, s80, {us * 100}")
            if k == pt and (k < 1 or self.role == self.o.diag_role):
                L = self.lab("diag")
                g.label(L)
                g(f"s_memrealtime s[100:101]\ns_waitcnt lgkmcnt(0)\ns_sub_u32 s100, s100, s80\ns_cmp_lt_i32 s100, 0\ns_cbranch_scc1 {L}")
                g.lg_done = len(g.lg)
            return
        if not self.o.stamps or k > 15:
            return
        g = self.g
        g(f"{'s_memtime' if self.o.stamps == 2 else 's_memrealtime'} {sr(100, 2)}\ns_waitcnt lgkmcnt(0)\ns_mov_b32 {sr(sTS + k)}, s100")
        g.lg_done = len(g.lg)

    def dump_stamps(self):
        if not self.o.stamps:
            return
        g = self.g
        g(f"s_lshl_b32 {sr(sT0)}, s2, 3\ns_add_u32 {sr(sT0)}, {sr(sT0)}, {sr(sW)}\ns_lshl_b32 {sr(sT0)}, {sr(sT0)}, 6")
        g(f"s_add_u32 {sr(sT0)}, {sr(sT0)}, {TSOFF}\nv_mov_b32 v1, 0\ns_mov_b64 exec, 1")
        for k in range(16):
            g(f"v_mov_b32 v2, {sr(sTS + k)}")
            g(f"buffer_store_dword v2, v1, {sr(SWS, 4)}, {sr(sT0)} offen offset:{4 * k}")
        g("s_mov_b64 exec, -1")

    def dma(self, srd, vaddr, soff, ldsoff, tag, m0base=sM0, sbase=None, flags=""):
        g = self.g
        g(f"s_add_u32 m0, {sr(m0base)}, {ldsoff}")
        if sbase is None:
            g(f"s_mov_b32 {sr(sT0)}, {soff}")
        else:
            g(f"s_add_u32 {sr(sT0)}, {sr(sbase)}, {soff}")
        g.vmem(f"buffer_load_dwordx4 {vr(vaddr)}, {sr(srd, 4)}, {sr(sT0)} offen {flags} lds", tag)

    def poll(self, vaddr, vtmp, srd=SWS, sleep=0):
        g = self.g
        L, E = self.lab("poll"), self.lab("polld")
        g(f"s_mov_b32 {sr(sSPIN)}, {SPIN}")
        g.label(L)
        g(f"buffer_load_dword {vr(vtmp)}, {vr(vaddr)}, {sr(srd, 4)}, 0 offen sc1")
        g(f"s_sub_u32 {sr(sSPIN)}, {sr(sSPIN)}, 1")
        g(f"s_cbranch_scc1 {E}")
        g("s_waitcnt vmcnt(0)")
        g(f"v_cmp_ne_u32 vcc, 1, {vr(vtmp)}")
        g(f"s_cbranch_vccz {E}")
        if sleep:
            g(f"s_sleep {sleep}")
        g(f"s_branch {L}")
        g.label(E)
        g("s_waitcnt vmcnt(0)")
        g.vm_done = len(g.vm)

    def set_flag(self, sidx_expr_lines, va, vb):
        g = self.g
        g(sidx_expr_lines)
        g(f"v_mov_b32 {vr(va)}, 0\nv_mov_b32 {vr(vb)}, 1\ns_mov_b64 exec, 1")
        g.vmem(f"buffer_store_dword {vr(vb)}, {vr(va)}, {sr(SWS, 4)}, {sr(sT1)} offen sc1", "flag")
        g("s_mov_b64 exec, -1")

    def prologue(self):
        g, o = self.g, self.o
        g("s_cmp_ge_u32 s2, 256\ns_cbranch_scc1 Lend")
        g(f"s_load_dwordx2 {sr(SX, 2)}, s[0:1], 0\ns_load_dwordx2 {sr(SWQ, 2)}, s[0:1], 8\ns_load_dwordx2 {sr(SB1, 2)}, s[0:1], 40")
        self.stamp(0)
        g(f"""
        v_lshrrev_b32 v2, 6, v0
        s_getpc_b64 {sr(SCODE, 2)}
        v_readfirstlane_b32 {sr(sW)}, v2
        s_mov_b32 {sr(SCODE + 2)}, CODE_BYTES
        s_mov_b32 {sr(SCODE + 3)}, 0x20000
        s_lshr_b32 {sr(sT1)}, s2, 3
        s_and_b32 {sr(sT2)}, {sr(sT1)}, 7
        v_and_b32 v0, 63, v0
        """)
        if o.code_prefetch:
            g(f"""
            s_lshl_b32 {sr(sT3)}, {sr(sT2)}, 3
            s_add_u32 {sr(sT3)}, {sr(sT3)}, {sr(sW)}
            s_lshl_b32 {sr(sT3)}, {sr(sT3)}, 10
            v_lshlrev_b32 v1, 7, v0
            s_mov_b64 exec, 0xff
            buffer_load_dword v127, v1, {sr(SCODE, 4)}, {sr(sT3)} offen
            s_mov_b64 exec, -1
            """)
        rot = {0: f"s_mov_b32 {sr(sT0)}, 0",
               3: f"""
        s_add_u32 {sr(sT0)}, {sr(sT2)}, {sr(sT3)}
        s_mul_i32 {sr(sT3)}, {sr(sT0)}, 86
        s_lshr_b32 {sr(sT3)}, {sr(sT3)}, 8
        s_mul_i32 {sr(sT3)}, {sr(sT3)}, 3
        s_sub_u32 {sr(sT0)}, {sr(sT0)}, {sr(sT3)}
        s_mul_i32 {sr(sT0)}, {sr(sT0)}, 7
        s_lshr_b32 {sr(sT0)}, {sr(sT0)}, 1""",
               4: f"""
        s_add_u32 {sr(sT0)}, {sr(sT2)}, {sr(sT3)}
        s_and_b32 {sr(sT0)}, {sr(sT0)}, 3
        s_mul_i32 {sr(sT0)}, {sr(sT0)}, 5
        s_lshr_b32 {sr(sT0)}, {sr(sT0)}, 1""",
               1: f"""
        s_lshr_b32 {sr(sT0)}, {sr(sT2)}, 2
        s_add_u32 {sr(sT0)}, {sr(sT0)}, {sr(sT2)}
        s_mul_i32 {sr(sT3)}, {sr(sT3)}, 5
        s_lshr_b32 {sr(sT3)}, {sr(sT3)}, 1
        s_add_u32 {sr(sT0)}, {sr(sT0)}, {sr(sT3)}
        s_cmp_ge_u32 {sr(sT0)}, 10
        s_cselect_b32 {sr(sT3)}, 10, 0
        s_sub_u32 {sr(sT0)}, {sr(sT0)}, {sr(sT3)}"""}[o.rot]
        g(f"""
        s_and_b32 {sr(sRB)}, s2, 4
        s_lshl_b32 {sr(sRB)}, {sr(sRB)}, 1
        s_add_u32 {sr(sRB)}, {sr(sRB)}, {sr(sT2)}
        s_lshr_b32 {sr(sT3)}, s2, 6
        s_lshl_b32 {sr(sCS)}, {sr(sT3)}, 2
        s_and_b32 {sr(sT4)}, s2, 3
        s_add_u32 {sr(sCS)}, {sr(sCS)}, {sr(sT4)}
        s_and_b32 {sr(sTT)}, {sr(sW)}, 3
        s_lshr_b32 {sr(sCH)}, {sr(sW)}, 2
        s_lshl_b32 {sr(sM0)}, {sr(sTT)}, 10
        {rot}
        s_lshl_b32 {sr(sA)}, {sr(sT0)}, 7
        s_mul_i32 {sr(sA + 1)}, {sr(sT0)}, {64 * 3840}
        s_mul_i32 {sr(sA + 2)}, {sr(sT0)}, {64 * 3456}
        v_lshrrev_b32 v2, 3, v0
        v_lshrrev_b32 v3, 4, v0
        s_lshl_b32 {sr(sT0)}, {sr(sRB)}, 7
        s_lshl_b32 {sr(sT1)}, {sr(sTT)}, 3
        s_add_u32 {sr(sT0)}, {sr(sT0)}, {sr(sT1)}
        v_add_u32 v2, {sr(sT0)}, v2
        v_mul_u32_u24 v4, 1280, v2
        s_lshl_b32 {sr(sT0)}, {sr(sTT)}, 2
        v_add_u32 v2, {sr(sT0)}, v3
        v_xor_b32 v7, v2, v0
        v_and_b32 v7, 7, v7
        v_lshl_add_u32 v4, v7, 4, v4
        s_and_b32 {sr(sT0)}, {sr(sW)}, 2
        s_lshl_b32 {sr(sT0)}, {sr(sT0)}, 2
        v_lshl_add_u32 v7, v3, 1, {sr(sT0)}
        v_xor_b32 v7, v7, v0
        v_and_b32 v7, 15, v7
        s_lshl_b32 {sr(sT0)}, {sr(sCS)}, 8
        v_lshl_add_u32 v7, v7, 4, {sr(sT0)}
        v_mul_u32_u24 v5, 3840, v2
        v_add_u32 v5, v5, v7
        s_mov_b32 {sr(SX + 2)}, {2048 * 1280}
        s_mov_b32 {sr(SX + 3)}, 0x20000
        s_mov_b32 {sr(SWQ + 2)}, {640 * 3840}
        s_mov_b32 {sr(SWQ + 3)}, 0x20000
        s_lshl_b32 {sr(sT1)}, {sr(sCH)}, 13
        s_add_u32 {sr(sT1)}, {sr(sT1)}, {sr(sM0)}
        s_mul_i32 {sr(sT2)}, {sr(sCH)}, {64 * 1280}
        s_add_u32 {sr(sT2)}, {sr(sT2)}, {sr(sA)}
        s_mul_i32 {sr(sT3)}, {sr(sCH)}, {32 * 3840}
        s_add_u32 {sr(sT3)}, {sr(sT3)}, {sr(sA + 1)}
        s_mov_b32 {sr(SB1 + 2)}, 3456
        s_mov_b32 {sr(SB1 + 3)}, 0x20000
        v_lshlrev_b32 v9, 2, v0
        s_mov_b32 {sr(sT5)}, {sr(sT0)}
        s_cmp_eq_u32 {sr(sCS)}, 15
        s_waitcnt lgkmcnt(0)
        s_cbranch_scc1 Lno0
        """)

        for q in range(2):
            self.dma(SX, 4, q * 32 * 1280, q * 4096, ("A", 0), m0base=sT1, sbase=sT2)
        for q in range(2):
            self.dma(SWQ, 5, q * 16 * 3840, 16384 + q * 4096, ("A", 0), m0base=sT1, sbase=sT3)
        g.label("Lno0")
        if o.fine == "S":
            self.stamp(9)
        self.adv(sA, 128); self.adv(sA + 1, 64 * 3840)
        g(f"s_cmp_eq_u32 {sr(sCS)}, 15\ns_cbranch_scc1 Lgate")

    def rest_setup(self):
        g = self.g
        for srd, slot in ((SW1, 4), (SWS, 11), (SGW, 8), (SDBG, 10), (SW2, 6), (SWO, 2), (SOUT, 9), (SB2, 7)):
            g(f"s_load_dwordx2 {sr(srd, 2)}, s[0:1], {8 * slot}")
        for srd, n in ((SW1, 640 * 3456), (SWS, WS_SIZE), (SGW, 1280),
                       (SDBG, 256), (SW2, 1728 * 1280), (SWO, 640 * 1280), (SOUT, 2048 * 1280), (SB2, 1280)):
            g(f"s_mov_b32 {sr(srd + 2)}, {n}\ns_mov_b32 {sr(srd + 3)}, 0x20000")
        g(f"""
        v_mul_u32_u24 v6, 3456, v2
        v_add_u32 v6, v6, v7
        s_cmp_eq_u32 {sr(sCS)}, 14
        s_cselect_b32 {sr(sT0)}, {OOB}, 0
        v_add_u32 v6, {sr(sT0)}, v6
        s_lshr_b32 {sr(sJ)}, s2, 5
        s_mov_b32 {sr(sCP)}, {sr(sJ)}
        s_lshr_b32 {sr(sT1)}, s2, 3
        s_and_b32 {sr(sT1)}, {sr(sT1)}, 3
        s_and_b32 {sr(sT0)}, s2, 7
        s_lshl_b32 {sr(sH)}, {sr(sT0)}, 2
        s_add_u32 {sr(sH)}, {sr(sH)}, {sr(sT1)}
        s_mov_b32 {sr(sRT)}, {sr(sH)}
        s_waitcnt lgkmcnt(0)
        """)

    vXG, vWG, vW1G = 4, 5, 6

    def adv(self, reg, step):
        self.g(f"s_add_u32 {sr(reg)}, {sr(reg)}, {step}\ns_cmp_eq_u32 {sr(reg)}, {10 * step}\ns_cselect_b32 {sr(reg)}, 0, {sr(reg)}")

    def dma4(self, srd, va, sreg, quarter, step, lds, tag):
        for q in range(4):
            self.dma(srd, va, q * quarter, lds + q * 4096, tag, sbase=sreg)
        self.adv(sreg, step)

    def dmaX(self, s):
        self.dma4(SX, self.vXG, sA, 32 * 1280, 128, (s % 5) * 32768, ("A", s))

    def dmaW(self, s):
        self.dma4(SWQ, self.vWG, sA + 1, 16 * 3840, 64 * 3840, (s % 5) * 32768 + 16384, ("A", s))

    def dmaB(self, t):
        self.dma4(SW1, self.vW1G, sA + 2, 16 * 3456, 64 * 3456, t * 16384, ("B", t))

    def rd(self, mn, dst, n, areg, off, tag, base):
        g = self.g
        if not (0 <= off - base[areg] <= 65535):
            nb = off & ~16383
            g(f"v_add_u32 {vr(areg)}, {(nb - base[areg]) & 0xFFFFFFFF}, {vr(areg)}")
            base[areg] = nb
        g.lds(f"{mn} {vr(dst, n)}, {vr(areg)} offset:{off - base[areg]}", tag)

    def x_read_addr(self, d0, d1, srow):
        self.g(f"""
        v_lshrrev_b32 v3, 4, v0
        v_and_b32 v2, 15, v0
        v_add_u32 {vr(d0)}, {sr(srow)}, v2
        v_lshlrev_b32 {vr(d0)}, 7, {vr(d0)}
        v_lshrrev_b32 v20, 1, v2
        v_xor_b32 v20, v20, v3
        v_xor_b32 v21, 4, v20
        v_lshl_add_u32 {vr(d1)}, v21, 4, {vr(d0)}
        v_lshl_add_u32 {vr(d0)}, v20, 4, {vr(d0)}
        """)

    def w_read_addr(self, dsts, sfirst, t):
        g = self.g
        g(f"""
        v_lshrrev_b32 {vr(t)}, 4, v0
        v_bfe_u32 {vr(t + 1)}, v0, 2, 2
        v_and_b32 {vr(t + 2)}, 3, v0
        v_lshl_add_u32 {vr(t + 3)}, {vr(t)}, 3, {vr(t + 1)}
        v_lshlrev_b32 {vr(t + 3)}, 8, {vr(t + 3)}
        v_lshl_add_u32 {vr(t + 3)}, {vr(t + 2)}, 3, {vr(t + 3)}
        v_and_b32 {vr(t)}, 1, {vr(t)}
        v_lshl_add_u32 {vr(t)}, {vr(t)}, 2, {vr(t + 1)}
        """)
        if sfirst is not None:
            g(f"v_xor_b32 {vr(t)}, {sr(sfirst)}, {vr(t)}")
        for n, d in enumerate(dsts):
            g(f"v_xor_b32 {vr(t + 1)}, {n}, {vr(t)}\nv_lshl_add_u32 {vr(d)}, {vr(t + 1)}, 5, {vr(t + 3)}")

    def clean_load(self):
        g = self.g
        g("v_and_b32 v2, 15, v0\nv_lshlrev_b32 v2, 2, v2")
        g.vmem(f"buffer_load_dword v3, v2, {sr(SDBG, 4)}, 0 offen sc1", "clean")

    aXR, aWR, aST, aACC, aBUF = (7, 8), (9, 10, 11, 12), (13, 14, 15, 16), 64, 128

    def a_setup(self):
        g = self.g
        sTH, sAC = sA + 3, sA + 4
        g(f"s_and_b32 {sr(sTH)}, {sr(sW)}, 1\ns_lshr_b32 {sr(sAC)}, {sr(sW)}, 1\ns_lshl_b32 {sr(sT0)}, {sr(sTH)}, 6")
        self.x_read_addr(*self.aXR, sT0)
        g(f"s_lshl_b32 {sr(sT0)}, {sr(sAC)}, 2")
        self.w_read_addr(self.aWR, sT0, 20)
        LV, LD = self.lab("stv"), self.lab("std")
        g(f"""
        s_mul_i32 {sr(sT0)}, {sr(sCS)}, 205
        s_lshr_b32 {sr(sT0)}, {sr(sT0)}, 10
        s_mul_i32 {sr(sT1)}, {sr(sT0)}, 5
        s_sub_u32 {sr(sT1)}, {sr(sCS)}, {sr(sT1)}
        s_lshl_b32 {sr(sT2)}, {sr(sRB)}, 1
        s_add_u32 {sr(sT2)}, {sr(sT2)}, {sr(sTH)}
        s_lshl_b32 {sr(sT2)}, {sr(sT2)}, 1
        s_cmp_eq_u32 {sr(sT0)}, 0
        s_mov_b32 {sr(sA + 5)}, 2560
        s_cselect_b32 {sr(sA + 5)}, 1280, {sr(sA + 5)}
        s_mov_b32 {sr(sT4)}, {KVOFF}
        s_cselect_b32 {sr(sT4)}, {QOFF}, {sr(sT4)}
        s_mul_i32 {sr(sT2)}, {sr(sT2)}, {sr(sA + 5)}
        s_add_u32 {sr(sT4)}, {sr(sT4)}, {sr(sT2)}
        s_lshl_b32 {sr(sT3)}, {sr(sA + 5)}, 6
        s_cmp_eq_u32 {sr(sT0)}, 2
        s_cbranch_scc1 {LV}
        s_lshl_b32 {sr(sT1)}, {sr(sT1)}, 5
        s_lshl_b32 {sr(sT2)}, {sr(sAC)}, 4
        s_add_u32 {sr(sT1)}, {sr(sT1)}, {sr(sT2)}
        v_add_u32 v22, {sr(sT1)}, v3
        v_lshlrev_b32 v17, 4, v2
        v_add_u32 v17, {sr(sT4)}, v17
        """)
        for n in range(4):
            g(f"""
            v_add_u32 v18, {4 * n}, v22
            v_mul_u32_u24 v19, 205, v18
            v_lshrrev_b32 v19, 10, v19
            v_mul_u32_u24 v20, 5, v19
            v_sub_u32 v20, v18, v20
            v_mul_lo_u32 v19, v19, {sr(sT3)}
            v_lshl_add_u32 v19, v20, 8, v19
            v_add_u32 {vr(self.aST[n])}, v19, v17
            """)
        g(f"s_branch {LD}")
        g.label(LV)
        g(f"""
        s_lshl_b32 {sr(sT1)}, {sr(sT1)}, 7
        s_lshl_b32 {sr(sT2)}, {sr(sAC)}, 6
        s_add_u32 {sr(sT1)}, {sr(sT1)}, {sr(sT2)}
        v_add_u32 v22, {sr(sT1)}, v2
        v_mul_u32_u24 v17, 320, v3
        s_add_u32 {sr(sT4)}, {sr(sT4)}, 1280
        v_add_u32 v17, {sr(sT4)}, v17
        """)
        for n in range(4):
            g(f"""
            v_add_u32 v18, {16 * n}, v22
            v_mul_u32_u24 v19, 3277, v18
            v_lshrrev_b32 v19, 16, v19
            v_mul_u32_u24 v20, 20, v19
            v_sub_u32 v20, v18, v20
            v_mul_lo_u32 v19, v19, {sr(sT3)}
            v_lshl_add_u32 v19, v20, 4, v19
            v_add_u32 {vr(self.aST[n])}, v19, v17
            """)
        g.label(LD)

    def a_pass(self, swap):
        g, o = self.g, self.o
        base = {r: 0 for r in self.aXR + self.aWR}
        xreg = lambda s, kk, t: self.aBUF + 64 * (s % 2) + (kk * 4 + t) * 4
        wreg = lambda s, n, kk: self.aBUF + 64 * (s % 2) + 32 + n * 8 + kk * 4

        def reads(s):
            q = (s % 5) * 32768
            X = [lambda kk=kk, t=t: self.rd("ds_read_b128", xreg(s, kk, t), 4, self.aXR[kk], q + t * 2048, ("x", s, t), base)
                 for t in range(4) for kk in range(2)]
            W = [lambda n=n, kk=kk, u=u: self.rd("ds_read_b64_tr_b16", wreg(s, n, kk) + 2 * u, 2, self.aWR[n], q + 16384 + kk * 8192 + u * 1024, ("w", s, n), base)
                 for n in range(4) for kk in range(2) for u in range(2)]
            return W[:4] + X + W[4:]

        g("s_barrier")
        self.stamp(1)
        for f in reads(0):
            f()
        if o.a_split == 1:
            from gen2 import attn_setup
            attn_setup(self, 1)
        for s in range(10):
            pos = 32 if s < o.early else o.barpos
            pend = []
            k = 0
            for n in range(4):
                for t in range(4):
                    for kk in range(2):
                        if k == pos and s < 9:
                            g.wait(lg="all", vm="all")
                            g("s_barrier")
                            pend = reads(s + 1)
                        if k == 0 and o.fine == "A" and s in (0, 1, 2, 4, 6, 8, 9):
                            self.stamp(9 + (0, 1, 2, 4, 6, 8, 9).index(s))
                        g.wait(lg=[("w", s, n), ("x", s, t)])
                        a = self.aACC + (n * 4 + t) * 4
                        w, x = vr(wreg(s, n, kk), 4), vr(xreg(s, kk, t), 4)
                        A, B = (x, w) if swap else (w, x)
                        g(f"v_mfma_f32_16x16x32_bf16 {vr(a, 4)}, {A}, {B}, {'0' if s == 0 and kk == 0 else vr(a, 4)}")
                        k += 1
                        if pend:
                            pend.pop(0)()
            if pos == 32 and s < 9:
                if s == 0 and o.a_split == 2:
                    from gen2 import attn_setup
                    attn_setup(self, 1)
                g.wait(lg="all", vm="all")
                g("s_barrier")
                pend = reads(s + 1)
            for f in pend:
                f()

    def a_phase1(self):
        g, o = self.g, self.o
        g.label("La1")
        self.rest_setup()
        g("v_mov_b32 v125, v4\nv_mov_b32 v126, v5")
        self.a_setup()
        for t in range(o.b2_stage):
            self.adv(sA + 2, 64 * 3456)
        g(f"""
        s_lshl_b32 {sr(sT1)}, {sr(sCS)}, 1
        s_add_u32 {sr(sT1)}, {sr(sT1)}, {sr(sA + 4)}
        s_lshl_b32 {sr(sT1)}, {sr(sT1)}, 5
        s_lshl_b32 {sr(sT2)}, {sr(sRB)}, 1
        s_add_u32 {sr(sT1)}, {sr(sT1)}, {sr(sT2)}
        s_add_u32 {sr(sT1)}, {sr(sT1)}, {sr(sA + 3)}
        s_lshl_b32 {sr(sHS)}, {sr(sT1)}, 7""")
        from gen2 import attn_setup
        attn_setup(self, 0 if o.a_split else None)
        if o.fine == "S":
            self.stamp(10)
        if o.a_st1:
            self.vXG, self.vWG = 125, 126
            self.dmaX(1); self.dmaW(1)
            self.vXG, self.vWG = 4, 5
        if o.fine == "S":
            self.stamp(11)
        g.wait(vm=("A", 0))
        if o.fine == "S":
            self.stamp(12)
        if o.aprio:
            g(f"s_setprio {o.aprio}")
        g(f"s_cmp_ge_u32 {sr(sCS)}, 10\ns_cbranch_scc1 LpassA_v")
        st = g.state()
        self.a_pass(False)
        g("s_branch LepiA")
        g.restore(st)
        g.label("LpassA_v")
        self.a_pass(True)
        g.label("LepiA")
        self.stamp(2)
        if o.b10_early:
            g("s_barrier")
        self.clean_load()
        L = self.lab("noq")
        g(f"s_nop 2\ns_cmp_ge_u32 {sr(sCS)}, 5\ns_cbranch_scc1 {L}")
        g(f"s_mov_b32 {sr(sT0)}, {f32hex(QSCALE)}")
        g(f"v_mov_b32 v8, {sr(sT0)}")
        for r in range(0, 64, 2):
            g(f"v_pk_mul_f32 {vr(self.aACC + r, 2)}, {vr(self.aACC + r, 2)}, v[8:9] op_sel_hi:[1,0]")
        g.label(L)
        for n in range(4):
            for T in range(2):
                a = self.aACC + 16 * n + 8 * T
                for q in range(4):
                    g(f"v_cvt_pk_bf16_f32 {vr(a + q)}, {vr(a + 2 * q)}, {vr(a + 2 * q + 1)}")
                g.vmem(f"buffer_store_dwordx4 {vr(a, 4)}, {vr(self.aST[n])}, {sr(SWS, 4)}, {sr(sA + 5) if T else 0} offen sc1", "stA")
        if not o.b10_early:
            g("s_barrier")
        if o.b1_stage < o.b2_stage:
            g("s_barrier")
        for t in range(o.b2_stage, o.b3_stage):
            self.dmaB(t)
        g.wait(vm="stA")
        self.check_clean()
        self.set_flag(f"s_mov_b32 {sr(sT1)}, {sr(sHS)}", 2, 3)
        self.stamp(3)
        if o.b3_stage < 10:
            for t in range(o.b3_stage, 10):
                self.dmaB(t)
        g.wait(vm=("B", o.b3_stage - 1))
        g("s_barrier\ns_branch Lattn")

    gXR, gWR, gACC, gX = (7, 8), (1, 2, 4, 5, 7, 8, 9, 10), 32, 96

    def gx(self, s, kk, t):
        return self.gX + ((2 * s + kk) * 2 + t) * 4

    def gacc(self, n, t):
        return self.gACC + ((n >> 1) * 2 + t) * 8 + (n & 1) * 4

    def g_phase1(self):
        g, o = self.g, self.o
        fn = {"x": self.dmaX, "w": self.dmaW, "b": self.dmaB}
        sched = [[it for it in grp.split(",") if it] for grp in o.order.split("/")]
        assert len(sched) == 12 and o.b2_stage >= 6
        for k, grp in enumerate(sched):
            for it in grp:
                st_ = int(it[1]) if it[0] != "b" else 10 + int(it[1]) // 2
                assert st_ <= max(4, k + 3), (k, it)
        assert sorted(sum(sched, [])) == sorted([f"x{i}" for i in range(10)] + [f"w{i}" for i in range(10)] + [f"b{i}" for i in range(o.b2_stage)])
        def issue(k):
            for it in sched[k]:
                if it in ("x0", "w0"):
                    pass
                elif o.a_st1 and it in ("x1", "w1"):
                    self.adv(*((sA, 128) if it == "x1" else (sA + 1, 64 * 3840)))
                else:
                    fn[it[0]](int(it[1]))
        if o.gprio:
            g(f"s_setprio {o.gprio}")
        from gen2 import gemm_setup

        def bias():
            g.wait(vm="b1")
            for n in range(8):
                for hf in range(2):
                    g.lds(f"ds_bpermute_b32 {vr(12 + 2 * n + hf)}, v9, v10 offset:{32 * n + 4 * hf}", ("b1p", n))
            for n in range(8):
                g.wait(lg=("b1p", n))
                for hf in range(2):
                    g(f"v_lshlrev_b32 {vr(self.gacc(n, 0) + 2 * hf)}, 16, {vr(12 + 2 * n + hf)}")
                    g(f"v_and_b32 {vr(self.gacc(n, 0) + 2 * hf + 1)}, 0xffff0000, {vr(12 + 2 * n + hf)}")
        chunks = {}
        for k, f in zip((int(x) for x in o.gchunks.split(",")), (bias, lambda: gemm_setup(self, 0), lambda: gemm_setup(self, 1))):
            chunks.setdefault(k, []).append(f)
        g.vmem(f"buffer_load_dword v10, v9, {sr(SB1, 4)}, {sr(sT5)} offen", "b1")
        issue(0)
        if o.fine == "S":
            self.stamp(13)
        self.rest_setup()
        g(f"s_lshl_b32 {sr(sT0)}, {sr(sTT)}, 5")
        self.x_read_addr(*self.gXR, sT0)
        g("v_lshlrev_b32 v9, 3, v3")
        for f in chunks.get(0, []):
            f()
        if o.fine == "S":
            self.stamp(14)
        base = {r: 0 for r in self.gXR + self.gWR}
        for s in range(10):
            g.wait(vm=("A", s) if not (o.a_st1 and s == 1) else None, lg="all")
            if o.fine == "S" and s == 0:
                self.stamp(15)
            g("s_barrier")
            for t in range(2):
                for kk in range(2):
                    self.rd("ds_read_b128", self.gx(s, kk, t), 4, self.gXR[kk], (s % 5) * 32768 + t * 2048, ("x", s), base)
            issue(s + 1)
            for f in chunks.get(s + 1, []):
                f()
        self.w_read_addr(self.gWR, None, 12)
        for r in self.gWR:
            base[r] = 0
        g.wait(vm=("B", o.b1_stage - 1), lg="all")
        g("s_barrier")
        issue(11)
        self.stamp(2)
        g(f"s_setprio {o.bprio}")
        g(f"s_cmp_eq_u32 {sr(sCS)}, 14\ns_cbranch_scc1 Lgatez")
        frs = [(s, n, kk) for s in range(10) for n in range(8) for kk in range(2)]
        free, where, nxt, half = [12, 16, 20, 24, 28], {}, 0, None

        def issue_read():
            nonlocal nxt, half
            if half is None:
                if nxt >= len(frs) or not free or len(where) >= o.wdepth:
                    return False
                s, n, kk = frs[nxt]
                if n == 0 and kk == 0 and s == o.b1_stage and o.b1_stage < o.b2_stage:
                    g.wait(vm=("B", o.b2_stage - 1))
                    g("s_barrier")
                if n == 0 and kk == 0 and s in (o.b2_stage, o.b3_stage):
                    g("s_barrier")

                where[frs[nxt]] = free.pop(0)
                half = 0
            s, n, kk = frs[nxt]
            self.rd("ds_read_b64_tr_b16", where[frs[nxt]] + 2 * half, 2, self.gWR[n], s * 16384 + kk * 8192 + half * 1024, ("w", s, n, kk), base)
            if half == 1:
                half = None; nxt += 1
            else:
                half = 1
            return True

        while issue_read():
            pass
        for s in range(10):
            if o.fine == "B" and s in (1, 3, 5, 7, 9):
                self.stamp(11 + (1, 3, 5, 7, 9).index(s))
            for n in range(8):
                for m in range(4):
                    t, kk = 1 - (m >> 1), m & 1
                    while (s, n, kk) not in where or (nxt < len(frs) and frs[nxt] == (s, n, kk)):
                        assert issue_read()
                    if m == 0 and (s, n, 1) in where and not (nxt < len(frs) and frs[nxt] == (s, n, 1)):
                        g.wait(lg=("w", s, n, 1))
                    else:
                        g.wait(lg=("w", s, n, kk))
                    a = self.gacc(n, t)
                    g(f"v_mfma_f32_16x16x32_bf16 {vr(a, 4)}, {vr(where[(s, n, kk)], 4)}, {vr(self.gx(s, kk, t), 4)}, {vr(self.gacc(n, 0) if s == 0 and kk == 0 else a, 4)}")
                    if t == 0:
                        free.append(where.pop((s, n, kk)))
                    issue_read()
                    if len(where) < o.wdepth - 1:
                        issue_read()
            free.extend(self.gx(s, kk, t) for kk in range(2) for t in range(2))
        self.stamp(3)
        g("s_nop 7")
        for b in range(8):
            a = self.gACC + 8 * b
            for r in range(8):
                g(f"v_max_f32 {vr(a + r)}, 0, {vr(a + r)}")
            for r in range(0, 8, 2):
                g(f"v_pk_mul_f32 {vr(a + r, 2)}, {vr(a + r, 2)}, {vr(a + r, 2)}")
            for q in range(4):
                g(f"v_cvt_pk_bf16_f32 {vr(a + q)}, {vr(a + 2 * q)}, {vr(a + 2 * q + 1)}")
        g("s_setprio 0")
        g("s_branch Lgemm")
        g.label("Lgatez")
        g("s_setprio 0\ns_waitcnt vmcnt(0)")
        if o.b1_stage < o.b2_stage:
            g("s_barrier")
        g(f"v_lshlrev_b32 v4, 4, v0\ns_lshl_b32 {sr(sT1)}, {sr(sM0)}, 2\ns_add_u32 {sr(sT1)}, {sr(sT1)}, {5 * 16384}")
        for src, dst in ((0, 0), (256, 256), (0, 1280), (256, 1536)):
            self.dma(SGW, 4, src, dst, "gw", m0base=sT1)
        if o.b3_stage < 10:
            g("s_barrier")
        g(f"s_barrier\ns_add_u32 {sr(sT1)}, {sr(sT1)}, {sr(sA)}")
        g(f"v_lshrrev_b32 v5, 4, v0\nv_lshlrev_b32 v5, 4, v5\nv_add_u32 v5, {sr(sT1)}, v5")
        g("s_waitcnt vmcnt(0)")
        for half in range(2):
            for k in range(10):
                g(f"ds_read_b128 {vr(32 + 4 * k, 4)}, v5 offset:{64 * (10 * half + k)}")
            g("s_waitcnt lgkmcnt(0)")
            for k in range(10):
                kk = 10 * half + k
                for t in range(2):
                    g(f"v_mfma_f32_16x16x32_bf16 {vr(80 + 4 * t, 4)}, {vr(32 + 4 * k, 4)}, {vr(self.gx(kk >> 1, kk & 1, t), 4)}, {'0' if kk == 0 else vr(80 + 4 * t, 4)}")
        g(f"""
        s_nop 7
        v_cmp_gt_u32 vcc, 16, v0
        v_lshlrev_b32 v4, 2, v0
        s_lshl_b32 {sr(sT0)}, {sr(sRB)}, 9
        v_cndmask_b32 v80, v84, v80, vcc
        v_mul_f32 v80, {f32hex(-math.log2(math.e))}, v80
        v_exp_f32 v80, v80
        s_lshl_b32 {sr(sT1)}, {sr(sTT)}, 7
        v_add_f32 v80, 1.0, v80
        v_rcp_f32 v80, v80
        s_add_u32 {sr(sT0)}, {sr(sT0)}, {sr(sT1)}
        s_add_u32 {sr(sT0)}, {sr(sT0)}, {GOFF}
        s_mov_b32 exec_hi, 0
        buffer_store_dword v80, v4, {sr(SWS, 4)}, {sr(sT0)} offen sc1
        s_mov_b32 exec_hi, -1
        s_branch Lgemm
        """)

    def phase1(self):
        g = self.g
        g(f"s_cmp_lt_u32 {sr(sW)}, 4\ns_cbranch_scc1 La1")
        st = g.state()
        self.role = "gemm"
        self.g_phase1()
        g.restore(st)
        self.role = "attn"
        self.a_phase1()

    def check_clean(self):
        g = self.g
        L = self.lab("clean")
        g(f"v_cmp_ne_u32 vcc, 1, v3\ns_cbranch_vccz {L}")
        st = g.state()
        self.poll(2, 3, SDBG)
        g.restore(st)
        g.label(L)

    def const_regs(self, a, d):
        self.g(f"""
        v_and_b32 {vr(d + 2)}, 31, v0
        v_lshrrev_b32 {vr(d + 3)}, 5, v0
        s_lshl_b32 {sr(sT0)}, {sr(sTT)}, 1
        v_add_u32 {vr(d + 3)}, {sr(sT0)}, {vr(d + 3)}
        v_mul_u32_u24 {vr(d + 3)}, {REC}, {vr(d + 3)}
        v_lshl_add_u32 {vr(a)}, {vr(d + 2)}, 4, {vr(d + 3)}
        v_and_b32 {vr(d + 3)}, 23, {vr(d + 2)}
        v_cmp_eq_u32 vcc, 16, {vr(d + 3)}
        v_mov_b32 {vr(d + 3)}, 0x3f803f80
        v_mov_b32 {vr(d)}, 0x3f80
        v_cndmask_b32 {vr(d + 1)}, 0, {vr(d + 3)}, vcc
        v_cmp_eq_u32 vcc, 20, {vr(d + 2)}
        v_mov_b32 {vr(d + 2)}, {vr(d + 1)}
        v_mov_b32 {vr(d + 3)}, {vr(d + 1)}
        v_cndmask_b32 {vr(d)}, {vr(d + 1)}, {vr(d)}, vcc
        """)

    def const_write(self, a, d, groups):
        g = self.g
        cur = 0
        for grp in groups:
            if (grp - cur) * 8 * REC + 2560 > 65535:
                g(f"v_add_u32 {vr(a)}, {(grp - cur) * 8 * REC}, {vr(a)}")
                cur = grp
            g.lds(f"ds_write_b128 {vr(a)}, {vr(d, 4)} offset:{2560 + (grp - cur) * 8 * REC}", "cw")

    def gate(self):
        g = self.g
        g.label("Lgate")
        self.rest_setup()
        g(f"""
        s_mul_i32 {sr(sT0)}, {sr(sRB)}, {192 * 128}
        s_mul_i32 {sr(sT1)}, {sr(sW)}, {24 * 128}
        s_add_u32 {sr(sT0)}, {sr(sT0)}, {sr(sT1)}
        v_lshlrev_b32 v2, 7, v0
        v_mov_b32 v3, 0
        s_mov_b64 exec, 0xffffff
        buffer_store_dword v3, v2, {sr(SWS, 4)}, {sr(sT0)} offen sc1
        s_mov_b64 exec, -1
        s_waitcnt vmcnt(0)
        s_barrier
        s_cmp_ge_u32 {sr(sW)}, 4
        s_cbranch_scc1 Lgate_g
        s_lshl_b32 {sr(sT1)}, {sr(sRB)}, 2
        s_cmp_lg_u32 {sr(sW)}, 0
        s_cselect_b32 {sr(sT1)}, {OOB}, {sr(sT1)}
        v_mov_b32 v2, 1
        s_mov_b64 exec, 1
        buffer_store_dword v2, v3, {sr(SDBG, 4)}, {sr(sT1)} offen sc1
        s_mov_b64 exec, -1
        """)
        from gen2 import attn_setup
        attn_setup(self)
        g("v_and_b32 v2, 15, v0\nv_lshlrev_b32 v2, 2, v2")
        self.poll(2, 3, SDBG, sleep=32)
        self.poll(18, 3, sleep=8)
        g("s_branch Lattn")
        g.label("Lgate_g")
        from gen2 import gemm_setup
        gemm_setup(self)
        if self.o.b3_stage < 10:
            g("s_barrier")
        g("s_branch Lgemm")

    def h_stores(self, vl16):
        g = self.g
        for b in range(8):
            s2, t = b >> 1, b & 1
            g(f"s_add_u32 {sr(sT0)}, {sr(sHS if s2 < 2 else sSCALE)}, {(t * 54 + s2) * 1024}")
            g.vmem(f"buffer_store_dwordx4 {vr(self.gACC + 8 * b, 4)}, {vr(vl16)}, {sr(SWS, 4)}, {sr(sT0)} offen sc1", "stH")

    def build(self):
        g = self.g
        self.prologue()
        self.phase1()
        self.gate()
        g.vm, g.lg, g.vm_done, g.lg_done = [], [], 0, 0
        from gen2 import phase2
        phase2(self)
        g.label("Lend")
        g("s_endpgm")
        g.label("Lcode_end")
        bad = hazard_check(g.lines)
        for b in bad:
            print("HAZARD", b, file=sys.stderr)
        head = open("gated_mix__mha_block__dense_activation_squared_relu__prompt.s.ref").read().split("; Override launch")[0]
        txt = head + f"; @launch grid=(256,1,1) block=(512,1,1) lds={LDS_BYTES}\n"
        txt += f""".amdgcn_target "amdgcn-amd-amdhsa--gfx950"
.text
.globl {NAME}
.p2align 8
.type {NAME},@function
{NAME}:
"""
        body = g.text().replace("CODE_BYTES", str(self.o.code_bytes))
        txt += body
        txt += f""".section .rodata,"a"
.p2align 6
.amdhsa_kernel {NAME}
  .amdhsa_next_free_vgpr 256
  .amdhsa_next_free_sgpr 102
  .amdhsa_accum_offset 256
  .amdhsa_group_segment_fixed_size 0
  .amdhsa_kernarg_size 96
  .amdhsa_user_sgpr_count 2
  .amdhsa_user_sgpr_kernarg_segment_ptr 1
  .amdhsa_system_sgpr_workgroup_id_x 1
.end_amdhsa_kernel
"""
        return txt, bad


def options(argv=None):
    p = argparse.ArgumentParser()
    p.add_argument("-o", default="gated_mix__mha_block__dense_activation_squared_relu__prompt.s")
    p.add_argument("--stamps", type=int, default=0)
    p.add_argument("--code_prefetch", type=int, default=1)
    p.add_argument("--order", default="x0,w0,x1,w1/x2,w2/x3,w3/x4,w4/x5,w5/x6,w6/x7,w7/x8,w8/x9,w9/b0,b1/b2,b3/b4,b5")
    p.add_argument("--rot", type=int, default=1)
    p.add_argument("--aprio", type=int, default=1)
    p.add_argument("--gprio", type=int, default=2)
    p.add_argument("--bprio", type=int, default=0)
    p.add_argument("--wdepth", type=int, default=7)
    p.add_argument("--chk_late", type=int, default=6)
    p.add_argument("--ospin", type=int, default=3)
    p.add_argument("--b3_stage", type=int, default=10)
    p.add_argument("--b3_late", type=int, default=1)
    p.add_argument("--tags", type=int, default=1)
    p.add_argument("--a_st1", type=int, default=0)
    p.add_argument("--a_split", type=int, default=0)
    p.add_argument("--early", type=int, default=1)
    p.add_argument("--barpos", type=int, default=0)
    p.add_argument("--gchunks", default="1,2,3")
    p.add_argument("--b0_early", type=int, default=1)
    p.add_argument("--b10_early", type=int, default=1)
    p.add_argument("--b0_stage", type=int, default=10)
    p.add_argument("--b1_stage", type=int, default=2)
    p.add_argument("--b2_stage", type=int, default=6)
    p.add_argument("--steps", default="5,5,4")
    p.add_argument("--kv34_early", type=int, default=0)
    p.add_argument("--hfirst", type=int, default=0)
    p.add_argument("--force_fallback", type=int, default=0)
    p.add_argument("--split", default="4,4,4,4")
    p.add_argument("--orot", type=int, default=1)
    p.add_argument("--qsleep", type=int, default=1)
    p.add_argument("--osleep", type=int, default=1)
    p.add_argument("--diag", default="")
    p.add_argument("--diag_role", default="gemm")
    p.add_argument("--tlb", type=int, default=0)
    p.add_argument("--hack", default="")
    p.add_argument("--fine", default="att")
    p.add_argument("--prio", type=int, default=1)
    o = p.parse_args(argv)
    o.code_bytes = 0
    return o


def code_size(txt):
    import subprocess, tempfile, os, re
    d = tempfile.mkdtemp()
    open(d + "/k.s", "w").write(txt)
    r = subprocess.run(["clang", "-x", "assembler", "-target", "amdgcn-amd-amdhsa", "-mcpu=gfx950", "-c", d + "/k.s", "-o", d + "/k.o"],
                       capture_output=True, text=True)
    if r.returncode:
        print(r.stderr[:3000]); raise SystemExit(1)
    r = subprocess.run(["llvm-readelf", "-S", d + "/k.o"], capture_output=True, text=True)
    m = re.search(r"\.text\s+PROGBITS\s+\S+\s+\S+\s+(\S+)", r.stdout)
    return int(m.group(1), 16)


if __name__ == "__main__":
    o = options()
    o.code_bytes = 4096
    txt, _ = Gen(o).build()
    sz = code_size(txt)
    o.code_bytes = (sz - 512) & ~3
    txt, bad = Gen(o).build()
    open(o.o, "w").write(txt)
    print(f"wrote {o.o}: code {sz} bytes, {len(txt)} chars, hazards {len(bad)}")
```

```python
from asmlib import *
from gen import *

SB = (64, 80, 96, 112)
OA = (32, 48)
QM = (128, 132)
QR = (136, 138)
KM = (140, 144)
KR = (148, 152)
VF = (160, 168)
vIDX, vFL, vQm, vQr, vGa, vL16, vCA, vCD, vKm, vKr, vV0, vV1, vOm, vOr, vG = 17, 18, 19, 20, 21, 22, 23, 24, 28, 29, 30, 31, 4, 5, 10
HX = 40
HXOFF = NREC * REC
sQ, sGb, saKV, saPair, saRec, sO0, sO1, sFO = 76, 77, 78, 79, 96, 97, 52, 53


BARS = (8, 24, 48)


def rec(t):
    return (t % NREC) * REC


def s_mfmas(n, dst=None):
    qt, t = n & 1, n >> 1
    d = SB[n % 4] if dst is None else dst
    kr = KR[(t >> 1) & 1] + 2 * (t & 1)
    return [f"v_mfma_f32_32x32x8_bf16 {vr(d, 16)}, {vr(kr, 2)}, {vr(QR[qt], 2)}, 0",
            f"v_mfma_f32_32x32x16_bf16 {vr(d, 16)}, {vr(KM[t & 1], 4)}, {vr(QM[qt], 4)}, {vr(d, 16)}"]


def pv_mfmas(n):
    qt, t = n & 1, n >> 1
    p, v = SB[n % 4], VF[t & 1]
    return [f"v_smfmac_f32_32x32x32_bf16 {vr(OA[qt], 16)}, {vr(v + 4 * u, 4)}, {vr(p + 8 * u, 8)}, {vr(vIDX)}" for u in range(2)]


def koff_code(g, dst, t0, t1):
    g(f"""
    v_bfe_u32 {vr(t0)}, v0, 3, 2
    v_and_b32 {vr(t1)}, 3, v0
    v_lshl_add_u32 {vr(t0)}, {vr(t0)}, 2, {vr(t1)}
    v_bfe_u32 {vr(t1)}, v0, 2, 1
    v_lshlrev_b32 {vr(t1)}, 3, {vr(t1)}
    v_lshl_add_u32 {vr(dst)}, {vr(t0)}, 4, {vr(t1)}
    """)


def row_max(g, src, dst, tmp):
    g(f"v_max3_f32 {vr(dst)}, {vr(src)}, {vr(src + 1)}, {vr(src + 2)}")
    for r in range(3, 15, 2):
        g(f"v_max3_f32 {vr(dst)}, {vr(dst)}, {vr(src + r)}, {vr(src + r + 1)}")
    g(f"v_max_f32 {vr(dst)}, {vr(dst)}, {vr(src + 15)}")


def both_halves(g, a, b):
    g(f"v_mov_b32 {vr(b)}, {vr(a)}\ns_nop 1\nv_permlane32_swap_b32 {vr(a)}, {vr(b)}")


def kv_scalar(G, sKV, sPair, sRec, first):
    G.g(f"""
    s_lshl_b32 {sr(sPair)}, {sr(sJ)}, 2
    s_add_u32 {sr(sPair)}, {sr(sPair)}, {sr(sTT)}
    s_add_u32 {sr(sPair)}, {sr(sPair)}, {first}
    s_and_b32 {sr(sPair)}, {sr(sPair)}, 31
    s_mul_i32 {sr(sKV)}, {sr(sH)}, {64 * 2560}
    s_add_u32 {sr(sKV)}, {sr(sKV)}, {KVOFF}
    s_mul_i32 {sr(sRec)}, {sr(sTT)}, {2 * REC}
    """)


def kv_columns(G, vtmp, vdst):
    G.g(f"""
    s_mul_i32 {sr(sT0)}, {sr(sH)}, 20
    s_add_u32 {sr(sT1)}, {sr(sT0)}, 19
    s_lshr_b32 {sr(sT0)}, {sr(sT0)}, 6
    s_lshr_b32 {sr(sT1)}, {sr(sT1)}, 6
    s_sub_u32 {sr(sT1)}, {sr(sT1)}, {sr(sT0)}
    v_and_b32 {vr(vdst)}, 1, v0
    v_mul_u32_u24 {vr(vdst)}, {sr(sT1)}, {vr(vdst)}
    v_add_u32 {vr(vdst + 1)}, {sr(sT0)}, {vr(vdst)}
    v_bfe_u32 {vr(vtmp)}, v0, 1, 1
    v_mul_u32_u24 {vr(vtmp)}, 10, {vr(vtmp)}
    v_add3_u32 {vr(vdst)}, {vr(vdst + 1)}, {vr(vtmp)}, 10
    """)


def kv_load(G, vl, sKV, sPair, sRec, groups, tag):
    g = G.g
    for grp in groups:
        g(f"s_mul_i32 {sr(sT1)}, {sr(sPair)}, 5120\ns_add_u32 {sr(sT1)}, {sr(sT1)}, {sr(sKV)}")
        for tau in range(2):
            for q in range(2):
                G.dma(SWS, vl, tau * 2560 + q * 1024, rec(8 * grp + tau) + q * 1024, tag, m0base=sRec, sbase=sT1, flags="sc1")
        g("s_mov_b32 exec_hi, 0")
        for tau in range(2):
            G.dma(SWS, vl, tau * 2560 + 2048, rec(8 * grp + tau) + 2048, tag, m0base=sRec, sbase=sT1, flags="sc1")
        g(f"s_mov_b32 exec_hi, -1\ns_add_u32 {sr(sPair)}, {sr(sPair)}, 4\ns_and_b32 {sr(sPair)}, {sr(sPair)}, 31")


def attn_setup(G, part=None):
    g = G.g
    if part != 1:
        attn_setup0(G)
    if part != 0:
        attn_setup1(G)


def attn_setup0(G):
    g = G.g
    kv_scalar(G, saKV, saPair, saRec, 0)
    kv_columns(G, 3, 64)
    g(f"""
    v_cmp_gt_u32 vcc, 4, v0
    v_lshlrev_b32 {vr(vL16)}, 4, v0
    v_lshrrev_b32 v66, 5, v0
    v_cndmask_b32 v2, v65, v64, vcc
    v_lshlrev_b32 v2, 5, v2
    v_add_u32 v2, {sr(saPair)}, v2
    v_lshlrev_b32 {vr(vFL)}, 7, v2
    v_and_b32 v67, 15, v0
    v_bfe_u32 v68, v0, 4, 1
    v_mul_u32_u24 v2, 1280, v68
    v_lshl_add_u32 {vr(vQr)}, v67, 4, v2
    v_lshl_add_u32 {vr(vQm)}, v66, 8, {vr(vQr)}
    v_lshlrev_b32 v2, 7, v68
    v_lshl_add_u32 {vr(vGa)}, v67, 2, v2
    s_lshl_b32 {sr(sT0)}, {sr(sH)}, 6
    s_lshl_b32 {sr(sT1)}, {sr(sJ)}, 3
    s_lshl_b32 {sr(sT2)}, {sr(sW)}, 1
    s_add_u32 {sr(sT1)}, {sr(sT1)}, {sr(sT2)}
    s_add_u32 {sr(sT0)}, {sr(sT0)}, {sr(sT1)}
    s_mul_i32 {sr(sQ)}, {sr(sT0)}, 1280
    s_add_u32 {sr(sQ)}, {sr(sQ)}, {QOFF}
    s_lshl_b32 {sr(sGb)}, {sr(sT1)}, 7
    s_add_u32 {sr(sGb)}, {sr(sGb)}, {GOFF}
    v_and_b32 v69, 31, v0
    v_mul_u32_u24 v2, 40960, v68
    v_lshl_add_u32 {vr(vOr)}, v67, 4, v2
    v_lshl_add_u32 {vr(vOm)}, v66, 8, {vr(vOr)}
    s_lshr_b32 {sr(sT0)}, {sr(sH)}, 1
    s_and_b32 {sr(sT0)}, {sr(sT0)}, 3
    s_and_b32 {sr(sT1)}, {sr(sH)}, 1
    s_lshl_b32 {sr(sT3)}, {sr(sT0)}, 10
    s_lshl_b32 {sr(sT4)}, {sr(sT1)}, 9
    s_add_u32 {sr(sT3)}, {sr(sT3)}, {sr(sT4)}
    v_add_u32 {vr(vOm)}, {sr(sT3)}, {vr(vOm)}
    s_lshl_b32 {sr(sT3)}, {sr(sT0)}, 8
    s_lshl_b32 {sr(sT4)}, {sr(sT1)}, 3
    s_add_u32 {sr(sT3)}, {sr(sT3)}, {sr(sT4)}
    s_add_u32 {sr(sT3)}, {sr(sT3)}, 4096
    v_add_u32 {vr(vOr)}, {sr(sT3)}, {vr(vOr)}
    s_lshl_b32 {sr(sT2)}, {sr(sJ)}, 2
    s_add_u32 {sr(sT2)}, {sr(sT2)}, {sr(sW)}
    s_mul_i32 {sr(sT3)}, {sr(sT2)}, {4 * 20480}
    s_lshr_b32 {sr(sT4)}, {sr(sH)}, 3
    s_mul_i32 {sr(sT4)}, {sr(sT4)}, 5120
    s_add_u32 {sr(sT3)}, {sr(sT3)}, {sr(sT4)}
    s_add_u32 {sr(sO0)}, {sr(sT3)}, {OOFF}
    s_add_u32 {sr(sO1)}, {sr(sO0)}, 20480
    s_lshl_b32 {sr(sT1)}, {sr(sT2)}, 5
    s_add_u32 {sr(sT1)}, {sr(sT1)}, {sr(sH)}
    s_lshl_b32 {sr(sT1)}, {sr(sT1)}, 7
    s_add_u32 {sr(sFO)}, {sr(sT1)}, {FO}
    """)
    G.const_regs(vCA, vCD)
    koff_code(g, 2, 3, 70)
    g(f"""
    v_lshl_add_u32 {vr(vKm)}, v66, 8, v2
    v_cmp_gt_u32 vcc, 32, v0
    v_add_u32 v2, 1024, v2
    v_mov_b32 v3, {2560 + 256 + 64}
    v_cndmask_b32 {vr(vKr)}, v3, v2, vcc
    v_mov_b32 {vr(vIDX)}, 0xdddddddd
    """)
    for u, dst in enumerate((vV0, vV1)):
        g(f"""
        v_add_u32 v2, {2 * u}, v66
        v_mul_u32_u24 v3, 320, v2
        v_lshl_add_u32 v3, v69, 4, v3
        v_add_u32 v3, 1280, v3
        v_lshlrev_b32 v2, 2, v2
        v_add_u32 v2, 12, v2
        v_and_b32 v2, 15, v2
        v_lshlrev_b32 v2, 4, v2
        v_add_u32 v2, 2560, v2
        v_cmp_gt_u32 vcc, 28, v69
        v_mov_b32 v70, {2560 + (9 if u == 0 else 1) * 16}
        v_mov_b32 v71, {2560 + 256 + (8 if u == 0 else 0) * 16}
        v_cndmask_b32 v2, v2, v70, vcc
        v_cmp_eq_u32 vcc, 20, v69
        s_nop 1
        v_cndmask_b32 v2, v2, v71, vcc
        v_cmp_gt_u32 vcc, 20, v69
        s_nop 1
        v_cndmask_b32 {vr(dst)}, v2, v3, vcc
        """)
    for r in range(32):
        if not HX <= OA[0] + r < HX + 8:
            g(f"v_mov_b32 {vr(OA[0] + r)}, 0")


def attn_setup1(G):
    g, o = G.g, G.o
    g(f"""
    s_lshl_b32 {sr(sT0)}, {sr(sRT)}, 1
    v_lshrrev_b32 v2, 1, v0
    v_min_u32 v2, 14, v2
    v_and_b32 v3, 1, v0
    v_lshl_add_u32 v2, v2, 6, v3
    v_add_u32 v2, {sr(sT0)}, v2
    s_lshl_b32 {sr(sT0)}, {sr(sJ)}, 3
    s_add_u32 {sr(sT0)}, {sr(sT0)}, 896
    v_cmp_gt_u32 vcc, 32, v0
    v_and_b32 v3, 7, v0
    v_add_u32 v3, {sr(sT0)}, v3
    v_cndmask_b32 v2, v3, v2, vcc
    v_subrev_u32 v3, 40, v0
    v_lshlrev_b32 v3, 2, v3
    v_add_u32 v3, {sr(sTT)}, v3
    s_mul_i32 {sr(sT0)}, {sr(sTT)}, 5
    v_min_u32 v1, 58, v0
    v_cmp_gt_u32 vcc, 54, v0
    v_add_u32 v1, {sr(sT0)}, v1
    s_lshr_b32 {sr(sT0)}, {sr(sCP)}, 2
    v_cndmask_b32 v3, v1, v3, vcc
    s_sub_u32 {sr(sT0)}, 255, {sr(sT0)}
    s_lshl_b32 {sr(sT0)}, {sr(sT0)}, 2
    s_and_b32 {sr(sT1)}, {sr(sCP)}, 3
    s_add_u32 {sr(sT0)}, {sr(sT0)}, {sr(sT1)}
    v_lshlrev_b32 v3, 3, v3
    v_cmp_gt_u32 vcc, 40, v0
    v_sub_u32 v3, {sr(sT0)}, v3
    s_nop 0
    v_cndmask_b32 v2, v3, v2, vcc
    v_lshlrev_b32 v2, 7, v2
    v_add_u32 {vr(HX + 4)}, {FH}, v2
    v_lshrrev_b32 v2, 2, v0
    v_mul_u32_u24 v2, 160, v2
    v_and_b32 v3, 3, v0
    v_lshl_add_u32 v2, v3, 3, v2
    s_add_u32 {sr(sT0)}, {sr(saRec)}, {40 * REC}
    v_add_u32 {vr(HX + 5)}, {sr(sT0)}, v2
    s_add_u32 {sr(sT1)}, {sr(sTT)}, {sr(sCP) if o.orot else 0}
    s_and_b32 {sr(sT1)}, {sr(sT1)}, 3
    s_lshl_b32 {sr(sT1)}, {sr(sT1)}, 4
    s_lshl_b32 {sr(sT0)}, {sr(sRT)}, 6
    s_add_u32 {sr(sT0)}, {sr(sT0)}, {sr(sT1)}
    v_and_b32 v2, 15, v0
    v_add_u32 v2, {sr(sT0)}, v2
    v_mul_u32_u24 v2, 1280, v2
    v_lshrrev_b32 v3, 4, v0
    v_lshl_add_u32 v2, v3, 3, v2
    s_mul_i32 {sr(sT0)}, {sr(sCP)}, 160
    v_add_u32 {vr(HX + 7)}, {sr(sT0)}, v2
    s_mul_i32 {sr(sT0)}, {sr(sTT)}, 20480
    s_add_u32 {sr(sT0)}, {sr(sT0)}, {REDOFF}
    v_add_u32 {vr(HX + 6)}, {sr(sT0)}, {vr(vL16)}
    s_lshl_b32 {sr(sT0)}, {sr(sRT)}, 5
    s_lshl_b32 {sr(sT1)}, {sr(sTT)}, 3
    s_add_u32 {sr(sT0)}, {sr(sT0)}, {sr(sT1)}
    s_add_u32 {sr(sT0)}, {sr(sT0)}, {FO // 128}
    v_and_b32 v2, 7, v0
    v_add_u32 v2, {sr(sT0)}, v2
    v_lshlrev_b32 {vr(HX)}, 7, v2
    """)
    for sg in range(3):
        g(f"""
        s_add_u32 {sr(sT0)}, {sr(sTT)}, {3 - sg}
        s_and_b32 {sr(sT0)}, {sr(sT0)}, 3
        s_mul_i32 {sr(sT0)}, {sr(sT0)}, 20480
        s_add_u32 {sr(sT0)}, {sr(sT0)}, {REDOFF + sg * 5120}
        v_add_u32 {vr(HX + 1 + sg)}, {sr(sT0)}, {vr(vL16)}
        """)
    g(f"""
    s_lshl_b32 {sr(sT0)}, {sr(sTT)}, 11
    s_add_u32 {sr(sT0)}, {sr(sT0)}, {HXOFF}
    v_add_u32 v1, {sr(sT0)}, {vr(vL16)}
    """)


def attention(G):
    g, o = G.g, G.o
    split = [int(x) for x in o.split.split(",")]
    g.label("Lattn")
    G.const_write(vCA, vCD, [0, 1, 2])
    g(f"v_add_u32 v6, {sr(saRec)}, {vr(vKm)}\nv_add_u32 v7, {sr(saRec)}, {vr(vKr)}\nv_add_u32 {vr(vCA)}, {24 * REC}, {vr(vCA)}")
    G.poll(vFL, 3, sleep=o.qsleep)
    G.stamp(4)
    for u in range(2):
        g.vmem(f"buffer_load_dwordx4 {vr(QM[u], 4)}, {vr(vQm)}, {sr(SWS, 4)}, {sr(sQ)} offen offset:{u * 512} sc1", "q")
    g.vmem(f"buffer_load_dwordx4 {vr(QR[0], 4)}, {vr(vQr)}, {sr(SWS, 4)}, {sr(sQ)} offen offset:1024 sc1", "q")
    kv_load(G, vL16, saKV, saPair, saRec, [0], "kv0")
    g.wait(vm="q")
    for r in range(2):
        g(f"v_swap_b32 {vr(QM[0] + 2 + r)}, {vr(QM[1] + r)}")
    g("s_mov_b32 exec_lo, 0")
    for r in range(4):
        g(f"v_mov_b32 {vr(QR[0] + r)}, 0")
    g("s_mov_b32 exec_lo, -1")
    g.wait(vm="all", lg="all")
    g.lds(f"ds_read2st64_b64 {vr(KR[0], 4)}, v7 offset0:0 offset1:6", "k0")
    g.lds(f"ds_read2st64_b64 {vr(KM[0], 4)}, v6 offset0:0 offset1:1", "k0")
    g.wait(lg="all")
    a0, a1 = s_mfmas(0), s_mfmas(1)
    g(a0[0]); g(a1[0]); g(a0[1]); g(a1[1])
    if o.b0_early:
        g("s_barrier")
        G.stamp(5)

    base = {vKm: 0, vKr: 0, vV0: 0, vV1: 0}

    def rebase(reg, off, span, lim):
        if not (0 <= off - base[reg] and off + span - base[reg] <= lim):
            g(f"v_add_u32 {vr(reg)}, {(off - base[reg]) & 0xFFFFFFFF}, {vr(reg)}")
            base[reg] = off
        return off - base[reg]

    def rdKm(t):
        b = rebase(vKm, rec(t), 512, 255 * 512) // 512
        g.lds(f"ds_read2st64_b64 {vr(KM[t & 1], 4)}, {vr(vKm)} offset0:{b} offset1:{b + 1}", ("km", t))

    def rdKr(t):
        b = rebase(vKr, rec(t), REC, 255 * 512) // 512
        g.lds(f"ds_read2st64_b64 {vr(KR[(t >> 1) & 1], 4)}, {vr(vKr)} offset0:{b} offset1:{b + 6}", ("kr", t))

    def rdV(t, u):
        r = (vV0, vV1)[u]
        g.lds(f"ds_read_b128 {vr(VF[t & 1] + 4 * u, 4)}, {vr(r)} offset:{rebase(r, rec(t), 0, 65535)}", ("v", t))

    def after_b0():
        rdKr(0); rdKm(0); rdKm(1)
        G.const_write(vCA, vCD, [0, 1, 2])
        for k in range(2):
            g.lds(f"ds_write_b128 v1, {vr(HX + 4 * k, 4)} offset:{1024 * k}", "hx")
        g.lds(f"ds_write_b64 v1, {vr(vOm, 2)} offset:8192", "hx")

    if o.b0_early:
        after_b0()
        g("s_nop 1")
    else:
        g("s_nop 10")
    for qt in range(2):
        row_max(g, SB[qt], 6 + 2 * qt, None)
    for qt in range(2):
        both_halves(g, 6 + 2 * qt, 7 + 2 * qt)
    for qt in range(2):
        g(f"v_max_f32 {vr(6 + 2 * qt)}, {vr(6 + 2 * qt)}, {vr(7 + 2 * qt)}")
    g("s_mov_b32 exec_lo, 0")
    for qt in range(2):
        g(f"v_cvt_pk_bf16_f32 {vr(QR[qt])}, -{vr(6 + 2 * qt)}, 0")
    g("s_mov_b32 exec_lo, -1")
    if not o.b0_early:
        g("s_barrier")
        G.stamp(5)
        after_b0()
    g(f"s_setprio {o.prio}")
    g.wait(lg=("km", 0))
    g(a0[0]); g(a0[1])
    g.wait(lg="hx")
    for r in range(8):
        g(f"v_mov_b32 {vr(HX + r)}, 0")
    g("s_nop 2")
    for n in range(128):
        qt, t = n & 1, n >> 1
        cur = SB[n % 4]
        m = (s_mfmas(n + 1) if n < 127 else [None, None]) + (pv_mfmas(n - 1) if n > 0 else [None, None])
        ex = [[], [], [], []]
        if qt == 0:
            ex[1].append(lambda: rdV(t, 0))
            ex[2].append(lambda: rdV(t, 1))
            if t + 1 < 64:
                ex[3].append(lambda: g.wait(lg=[("km", t + 1), ("kr", (t + 1) & ~1)]))
        else:
            ex[1].append(lambda: g.wait(lg=("v", t)))
            if t + 2 < 64:
                if t + 2 in BARS:
                    def bar():
                        g("s_barrier")
                        if t + 2 == 48:
                            for q2 in range(2):
                                g.vmem(f"buffer_load_dword {vr(vG + q2)}, {vr(vGa)}, {sr(SWS, 4)}, {sr(sGb)} offen offset:{q2 * 64} sc1", "g")
                    ex[1].append(bar)
                if (t + 2) % 8 == 0 and o.fine == "att":
                    ex[1].append(lambda: G.stamp(8 + (t + 2) // 8))
                ex[1].append(lambda: rdKm(t + 2))
                if t % 2 == 0:
                    ex[2].append(lambda: rdKr(t + 2))
        e = 0
        for i in range(4):
            if m[i]:
                g(m[i])
            for f in ex[i]:
                f()
            for _ in range(split[i]):
                g(f"v_exp_f32 {vr(cur + e)}, {vr(cur + e)}"); e += 1
    m = pv_mfmas(127)
    g(m[0]); g("s_nop 0"); g(m[1])
    g("s_nop 0")
    g.wait(vm="g")
    G.stamp(6)
    g("v_mov_b32 v8, 0\nv_mov_b32 v9, 0\ns_nop 0")
    for qt in range(2):
        g(f"v_mov_b32 {vr(12 + 2 * qt)}, {vr(OA[qt] + 8)}\nv_mov_b32 {vr(13 + 2 * qt)}, {vr(OA[qt] + 8)}")
        for r in range(0, 12, 2):
            g(f"v_pk_fma_f32 v[8:9], {vr(OA[qt] + r, 2)}, 0, v[8:9] op_sel_hi:[1,0,1]")
        g(f"v_permlane32_swap_b32 {vr(12 + 2 * qt)}, {vr(13 + 2 * qt)}")
    g(f"""
    v_add_f32 v8, v8, v9
    v_min_f32 v2, v13, v15
    v_max_f32 v3, v13, v15
    v_add_f32 v2, v2, v8
    v_cmp_nle_f32 vcc, {f32hex(2.0 ** -30)}, v2
    s_mov_b64 {sr(sA + 2, 2)}, vcc
    v_cmp_nge_f32 vcc, {f32hex(2.0 ** 60)}, v3
    s_or_b64 vcc, vcc, {sr(sA + 2, 2)}
    """)
    g("s_branch Lfallback" if o.force_fallback else "s_cbranch_vccnz Lfallback")
    g.label("Lnorm")
    for qt in range(2):
        g(f"v_rcp_f32 {vr(12 + 2 * qt)}, {vr(13 + 2 * qt)}")
    g("s_nop 0")
    for qt in range(2):
        g(f"v_mul_f32 {vr(12 + 2 * qt)}, {vr(12 + 2 * qt)}, {vr(vG + qt)}")
    for qt in range(2):
        a = OA[qt]
        for r in range(0, 12, 2):
            g(f"v_pk_mul_f32 {vr(a + r, 2)}, {vr(a + r, 2)}, {vr(12 + 2 * qt, 2)} op_sel_hi:[1,0]")
        for q in range(6):
            g(f"v_cvt_pk_bf16_f32 {vr(a + q)}, {vr(a + 2 * q)}, {vr(a + 2 * q + 1)}")
        g(f"buffer_store_dwordx4 {vr(a, 4)}, {vr(vOm)}, {sr(SWS, 4)}, {sr((sO0, sO1)[qt])} offen sc1")
    g("s_mov_b32 exec_hi, 0")
    for qt in range(2):
        g(f"buffer_store_dwordx2 {vr(OA[qt] + 4, 2)}, {vr(vOr)}, {sr(SWS, 4)}, {sr((sO0, sO1)[qt])} offen sc1")
    g("s_mov_b32 exec_hi, -1\ns_barrier")
    if not o.tags:
        g("s_waitcnt vmcnt(0)")
        G.set_flag(f"s_mov_b32 {sr(sT1)}, {sr(sFO)}", 2, 3)
    G.stamp(7)
    G.dump_stamps()
    g("s_endpgm")
    fallback(G)


def fallback(G):
    g = G.g
    sK, sN = sA, sA + 1
    vMx = (20, 22)
    g.label("Lfallback")
    koff_code(g, 24, 2, 3)
    g(f"""
    v_lshrrev_b32 v6, 5, v0
    v_and_b32 v13, 31, v0
    v_lshl_add_u32 v25, v6, 8, v24
    v_mul_u32_u24 v26, 320, v6
    v_lshl_add_u32 v26, v13, 4, v26
    v_cmp_gt_u32 vcc, 20, v13
    s_mov_b64 {sr(sA + 4, 2)}, vcc
    v_cmp_eq_u32 vcc, 20, v13
    v_mov_b32 v2, 0x3f803f80
    v_mov_b32 v20, 0xff800000
    v_mov_b32 v22, 0xff800000
    """)
    for r in range(8):
        g(f"v_cndmask_b32 {vr(VF[0] + r)}, 0, v2, vcc")
    g("s_mov_b32 exec_lo, 0")
    for r in range(4):
        g(f"v_mov_b32 {vr(QR[0] + r)}, 0")
    g("s_mov_b32 exec_lo, -1")
    for r in range(32):
        g(f"v_mov_b32 {vr(OA[0] + r)}, 0")
    for ps in range(2):
        L = G.lab("fb")
        g(f"s_mul_i32 {sr(sK)}, {sr(sH)}, {64 * 2560}\ns_add_u32 {sr(sK)}, {sr(sK)}, {KVOFF}\ns_mov_b32 {sr(sN)}, 64")
        g.label(L)
        for u in range(2):
            g(f"buffer_load_dwordx2 {vr(KM[0] + 2 * u, 2)}, v25, {sr(SWS, 4)}, {sr(sK)} offen offset:{512 * u} sc1")
        g(f"buffer_load_dwordx2 {vr(KR[0], 2)}, v24, {sr(SWS, 4)}, {sr(sK)} offen offset:1024 sc1")
        if ps:
            g(f"s_mov_b64 exec, {sr(sA + 4, 2)}")
            for u in range(2):
                g(f"buffer_load_dwordx4 {vr(VF[0] + 4 * u, 4)}, v26, {sr(SWS, 4)}, {sr(sK)} offen offset:{1280 + 640 * u} sc1")
            g("s_mov_b64 exec, -1")
        g("s_waitcnt vmcnt(0)")
        a0, a1 = s_mfmas(0), s_mfmas(1)
        g(a0[0]); g(a1[0]); g(a0[1]); g(a1[1])
        g("s_nop 11")
        for qt in range(2):
            if ps == 0:
                row_max(g, SB[qt], 2, None)
                g(f"v_max_f32 {vr(vMx[qt])}, {vr(vMx[qt])}, v2")
            else:
                for r in range(16):
                    g(f"v_sub_f32 {vr(SB[qt] + r)}, {vr(SB[qt] + r)}, {vr(vMx[qt])}")
                for r in range(16):
                    g(f"v_exp_f32 {vr(SB[qt] + r)}, {vr(SB[qt] + r)}")
                g("s_nop 1")
                for x in pv_mfmas(qt):
                    g(x)
        g(f"s_add_u32 {sr(sK)}, {sr(sK)}, 2560\ns_sub_u32 {sr(sN)}, {sr(sN)}, 1\ns_cmp_lg_u32 {sr(sN)}, 0\ns_cbranch_scc1 {L}")
        if ps == 0:
            for qt in range(2):
                both_halves(g, vMx[qt], vMx[qt] + 1)
                g(f"v_max_f32 {vr(vMx[qt])}, {vr(vMx[qt])}, {vr(vMx[qt] + 1)}")
    g("s_nop 11")
    for qt in range(2):
        g(f"v_mov_b32 {vr(12 + 2 * qt)}, {vr(OA[qt] + 8)}")
        both_halves(g, 12 + 2 * qt, 13 + 2 * qt)
    g("s_branch Lnorm")


GA, BI = 64, 4
RING = [r for r in range(24, 64, 4)] + [r for r in range(144, 248, 4)]
vL, vLb, vGG = 248, 249, 252
sWp, sgKV, sgPair, sgRec, sHb = sTT, 73, 74, 75, 76
sPa, sPb, sPc, sPd, sPdst, sPcol, sOwn, sFH = 96, 97, 98, 99, 48, 49, 50, 51
SPK = SCODE
vgFL, vgPK = 11, 3


def gemm_setup(G, part=None):
    if part != 1:
        gemm_setup0(G)
    if part != 0:
        gemm_setup1(G)


def gemm_setup0(G):
    g, o = G.g, G.o
    kv_scalar(G, sgKV, sgPair, sgRec, 4)
    kv_columns(G, 28, 30)
    g(f"""
    v_lshrrev_b32 v28, 2, v0
    v_min_u32 v28, 6, v28
    v_lshlrev_b32 v28, 2, v28
    v_add_u32 v28, {sr(sgPair)}, v28
    v_and_b32 v28, 31, v28
    v_lshl_add_u32 v28, v30, 5, v28
    v_lshlrev_b32 {vr(vgFL)}, 7, v28
    v_mul_u32_u24 v28, 26, v0
    v_lshrrev_b32 v28, 8, v28
    v_mul_u32_u24 v28, {1280 - 160}, v28
    v_lshl_add_u32 {vr(vgPK)}, v0, 4, v28
    s_add_u32 {sr(sOwn)}, {sr(sWp)}, {sr(sCP) if o.orot else 0}
    s_and_b32 {sr(sOwn)}, {sr(sOwn)}, 3
    """)
    for sg in range(4):
        g(f"""
        s_add_u32 {sr(sT0)}, {sr(sOwn)}, {1 + sg}
        s_and_b32 {sr(sT0)}, {sr(sT0)}, 3
        s_lshl_b32 {sr(sT1)}, {sr(sRT)}, 2
        s_add_u32 {sr(sHb + sg)}, {sr(sT0)}, {sr(sT1)}
        """)


def gemm_setup1(G):
    g = G.g
    LW, LJ = G.lab("pw2"), G.lab("pj")
    g(f"""
    s_lshl_b32 {sr(sT0)}, {sr(sCS)}, 4
    s_add_u32 {sr(sT0)}, {sr(sT0)}, {sr(sRB)}
    s_lshl_b32 {sr(sFH)}, {sr(sT0)}, 2
    s_add_u32 {sr(sFH)}, {sr(sFH)}, {sr(sWp)}
    s_lshl_b32 {sr(sFH)}, {sr(sFH)}, 7
    s_add_u32 {sr(sFH)}, {sr(sFH)}, {FH}
    s_sub_u32 {sr(sT0)}, 255, {sr(sT0)}
    s_lshr_b32 {sr(sT1)}, {sr(sT0)}, 1
    s_and_b32 {sr(sT0)}, {sr(sT0)}, 1
    s_lshl_b32 {sr(sT0)}, {sr(sT0)}, 2
    s_add_u32 {sr(sT0)}, {sr(sT0)}, {sr(sWp)}
    s_mul_i32 {sr(sPdst)}, {sr(sT1)}, 40960
    s_mul_i32 {sr(sT2)}, {sr(sT0)}, 5120
    s_add_u32 {sr(sPdst)}, {sr(sPdst)}, {sr(sT2)}
    s_add_u32 {sr(sPdst)}, {sr(sPdst)}, {WPOFF}
    s_mul_i32 {sr(sPcol)}, {sr(sT0)}, 160
    s_mov_b32 {sr(SPK + 3)}, 0x20000
    s_cmp_lt_u32 {sr(sT1)}, 54
    s_cbranch_scc1 {LW}
    s_mov_b64 {sr(SPK, 2)}, {sr(SWO, 2)}
    s_mov_b32 {sr(SPK + 2)}, {640 * 1280}
    s_cmp_ge_u32 {sr(sT1)}, 74
    s_cselect_b32 {sr(sPdst)}, {OOB}, {sr(sPdst)}
    s_sub_u32 {sr(sT1)}, {sr(sT1)}, 54
    s_mul_i32 {sr(sT2)}, {sr(sT1)}, 205
    s_lshr_b32 {sr(sT2)}, {sr(sT2)}, 10
    s_mul_i32 {sr(sT3)}, {sr(sT2)}, 5
    s_sub_u32 {sr(sT3)}, {sr(sT1)}, {sr(sT3)}
    s_mul_i32 {sr(sT2)}, {sr(sT2)}, 160
    s_mul_i32 {sr(sT4)}, {sr(sT3)}, 40
    s_cmp_eq_u32 {sr(sT3)}, 4
    s_cselect_b32 {sr(sT4)}, 16, {sr(sT4)}
    s_cselect_b32 {sr(sPa)}, 20, 8
    s_cselect_b32 {sr(sPb)}, 80, 20
    s_cselect_b32 {sr(sPc)}, 40, 4
    s_add_u32 {sr(sPd)}, {sr(sT2)}, {sr(sT4)}
    s_branch {LJ}
    """)
    g.label(LW)
    g(f"""
    s_mov_b64 {sr(SPK, 2)}, {sr(SW2, 2)}
    s_mov_b32 {sr(SPK + 2)}, {1728 * 1280}
    s_mov_b32 {sr(sPa)}, 16
    s_mov_b32 {sr(sPb)}, 8
    s_mov_b32 {sr(sPc)}, 4
    s_lshl_b32 {sr(sPd)}, {sr(sT1)}, 5
    """)
    g.label(LJ)
    for r in (sPa, sPb, sPc, sPd):
        g(f"s_mul_i32 {sr(r)}, {sr(r)}, 1280")
    g(f"""
    s_add_u32 {sr(sPd)}, {sr(sPd)}, {sr(sPcol)}
    s_lshl_b32 {sr(sT0)}, {sr(sRB)}, 3
    s_lshl_b32 {sr(sT1)}, {sr(sTT)}, 1
    s_add_u32 {sr(sT0)}, {sr(sT0)}, {sr(sT1)}
    s_mul_i32 {sr(sT0)}, {sr(sT0)}, 54
    s_lshl_b32 {sr(sT1)}, {sr(sCS)}, 2
    s_add_u32 {sr(sT0)}, {sr(sT0)}, {sr(sT1)}
    s_lshl_b32 {sr(sT0)}, {sr(sT0)}, 10
    s_add_u32 {sr(sT0)}, {sr(sT0)}, {HOFF}
    s_cmp_ge_u32 {sr(sCS)}, 14
    s_cselect_b32 {sr(sHS)}, {OOB}, {sr(sT0)}
    s_cmp_ge_u32 {sr(sCS)}, 13
    s_cselect_b32 {sr(sSCALE)}, {OOB}, {sr(sT0)}
    """)


def gemm(G):
    g, o = G.g, G.o
    steps = [int(x) for x in o.steps.split(",")]
    assert sum(steps) == 14 and len(steps) == 3 and steps[2] <= 4
    sWb, sWl, sWo, sOb = sA, sA + 1, sA + 2, SB1
    kv = lambda groups, tag: kv_load(G, vL, sgKV, sgPair, sgRec, groups, tag)
    g.label("Lgemm")
    vFO, vRR, vFH, vTR, vRW, vOut, vB2, vZ = 0, 1, 4, 5, 250, 251, 8, 10
    g(f"""
    v_lshlrev_b32 {vr(vL)}, 4, v0
    v_add_u32 {vr(vLb)}, 4096, {vr(vL)}
    s_lshl_b32 {sr(sT0)}, {sr(sTT)}, 11
    s_add_u32 {sr(sT0)}, {sr(sT0)}, {HXOFF}
    v_add_u32 v12, {sr(sT0)}, {vr(vL)}
    v_and_b32 v13, 15, v0
    v_lshlrev_b32 v13, 2, v13
    v_mov_b32 v14, 0
    v_mov_b32 v15, 1
    v_mov_b32 v16, -1
    v_mov_b32 v17, -1
    v_mov_b32 v18, -1
    v_mov_b32 v19, -1
    s_barrier
    """)
    G.poll(vgFL, 2, sleep=2)
    G.stamp(4)
    kv([1, 2], "kv1")
    g("s_mov_b32 exec_hi, 0xff")
    for q in range(8):
        g(f"s_mov_b32 {sr(sT1)}, {sr(sPd)}")
        for bit, r in ((4, sPa), (2, sPb), (1, sPc)):
            if q & bit:
                g(f"s_add_u32 {sr(sT1)}, {sr(sT1)}, {sr(r)}")
        G.dma(SPK, vgPK, 0, (40 + (q >> 2)) * REC + (q & 3) * 640, "pk", m0base=sgRec, sbase=sT1)
    g("s_mov_b32 exec_hi, -1")
    g.wait(vm="kv1")
    if o.kv34_early:
        kv([3, 4], "kv2")
    g("s_barrier")
    g.lds("ds_read_b128 v[4:7], v12 offset:1024", "hx")
    g.lds("ds_read_b128 v[0:3], v12", "hx")
    if not o.kv34_early:
        kv([3, 4], "kv2")
    g.wait(vm="pk", lg="hx")
    for n in range(5):
        for u in range(2):
            g.lds(f"ds_read_b64_tr_b16 {vr(96 + 4 * n + 2 * u, 2)}, {vr(vTR)} offset:{u * REC + n * 32}", "pr")
    g.lds(f"ds_read_b64 {vr(vRW, 2)}, v12 offset:1032", "hx")
    g.lds(f"ds_read_b64 v[6:7], v12 offset:8192", "hx")
    g.wait(lg="all")
    kv([5], "kv2")
    G.h_stores(vL)
    for n in range(5):
        g.vmem(f"buffer_store_dwordx4 {vr(96 + 4 * n, 4)}, {vr(vL if n < 4 else vLb)}, {sr(SWS, 4)}, {sr(sPdst)} offen offset:{(n % 4) * 1024} sc1", "ps")
    for sg in range(4):
        g(f"s_lshl_b32 {sr(sT0)}, {sr(sHb + sg)}, 6\ns_add_u32 {sr(sPa + sg)}, {sr(sT0)}, {GOFF}")
        g(f"""
        s_mul_i32 {sr(sT0)}, {sr(sHb + sg)}, 20480
        s_mul_i32 {sr(sT1)}, {sr(sWp)}, 5120
        s_add_u32 {sr(sT0)}, {sr(sT0)}, {sr(sT1)}
        s_add_u32 {sr(sOb + sg)}, {sr(sT0)}, {OOFF}
        s_mul_i32 {sr(sHb + sg)}, {sr(sHb + sg)}, 54
        s_add_u32 {sr(sHb + sg)}, {sr(sHb + sg)}, {sr(sWp)}
        s_lshl_b32 {sr(sHb + sg)}, {sr(sHb + sg)}, 10
        s_add_u32 {sr(sHb + sg)}, {sr(sHb + sg)}, {HOFF}
        """)
    g(f"""
    s_mul_i32 {sr(sWb)}, {sr(sWp)}, 40960
    s_mul_i32 {sr(sT0)}, {sr(sCP)}, 5120
    s_add_u32 {sr(sWb)}, {sr(sWb)}, {sr(sT0)}
    s_add_u32 {sr(sWb)}, {sr(sWb)}, {WPOFF}
    s_mul_i32 {sr(sWo)}, {sr(sWp)}, {4 * 40960}
    s_add_u32 {sr(sWo)}, {sr(sWo)}, {sr(sWb)}
    s_add_u32 {sr(sWo)}, {sr(sWo)}, {54 * 40960}
    s_mul_i32 {sr(sWl)}, {sr(sWp)}, 20480
    """)
    g.wait(vm="all")
    g("s_mov_b64 exec, 1")
    g.vmem(f"buffer_store_dword v15, v14, {sr(SWS, 4)}, {sr(sFH)} offen sc1", "flag")
    g("s_mov_b64 exec, -1")
    G.stamp(11 if o.fine != "B" else 99)
    if o.tags:
        g(f"""
        s_lshl_b32 {sr(sT2)}, {sr(sJ)}, 2
        s_add_u32 {sr(sT2)}, {sr(sT2)}, {sr(sTT)}
        s_mul_i32 {sr(sT3)}, {sr(sT2)}, {4 * 20480}
        s_lshr_b32 {sr(sT4)}, {sr(sH)}, 3
        s_mul_i32 {sr(sT4)}, {sr(sT4)}, 5120
        s_add_u32 {sr(sT3)}, {sr(sT3)}, {sr(sT4)}
        s_add_u32 {sr(sT3)}, {sr(sT3)}, {OOFF}
        s_add_u32 {sr(sT4)}, {sr(sT3)}, 20480
        s_lshl_b32 {sr(sT2)}, {sr(sT2)}, 5
        s_add_u32 {sr(sT2)}, {sr(sT2)}, {sr(sH)}
        s_lshl_b32 {sr(sT2)}, {sr(sT2)}, 7
        s_add_u32 {sr(sFH)}, {sr(sT2)}, {FO}
        """)
        for r in (sT3, sT4):
            g.vmem(f"buffer_store_dwordx4 v[16:19], v6, {sr(SWS, 4)}, {sr(r)} offen sc1", "mark")
        g("s_mov_b32 exec_hi, 0")
        for r in (sT3, sT4):
            g.vmem(f"buffer_store_dwordx2 v[16:17], v7, {sr(SWS, 4)}, {sr(r)} offen sc1", "mark")
        g("s_mov_b32 exec_hi, -1")
    g("s_barrier")
    kv([6, 7], "kv3")

    def frag(i, k):
        return RING[(i % 4) * 9 + k]

    def loads(i):
        L = []
        for n in range(5):
            L.append(lambda n=n: g.vmem(f"buffer_load_dwordx4 {vr(frag(i, n), 4)}, {vr(vL if n < 4 else vLb)}, {sr(SWS, 4)}, {sr(sWb)} offen offset:{(n % 4) * 1024} sc1", ("f", i)))
        for sg in range(4):
            def h(sg=sg):
                g.vmem(f"buffer_load_dwordx4 {vr(frag(i, 5 + sg), 4)}, {vr(vL)}, {sr(SWS, 4)}, {sr(sHb + sg)} offen sc1", ("f", i))
                g(f"s_add_u32 {sr(sHb + sg)}, {sr(sHb + sg)}, 4096")
                if sg == 3:
                    g(f"s_add_u32 {sr(sWb)}, {sr(sWb)}, {4 * 40960}")
            L.append(h)
        return L

    issued = [0]
    extra = []

    def step(i):
        pend = []
        if i + 3 < 14 and issued[0] == i + 3:
            pend = loads(i + 3); issued[0] += 1
        g.wait(vm=("f", i))
        L = None
        if i == 13:
            L = G.lab("skip")
            g(f"s_cmp_ge_u32 {sr(sWp)}, 2\ns_cbranch_scc1 {L}")
        k = 0
        for n in range(5):
            for sg in range(4):
                a = GA + 20 * sg + 4 * n
                c = "0" if i == 0 else vr(a, 4)
                if "nomfma" in o.hack and 0 < i < 14 - steps[2]:
                    g("s_nop 9")
                else:
                    g(f"v_mfma_f32_16x16x32_bf16 {vr(a, 4)}, {vr(frag(i, n), 4)}, {vr(frag(i, 5 + sg), 4)}, {c}")
                k += 1
                if k % 2 == 1 and pend:
                    n0 = len(g.lines)
                    pend.pop(0)()
                    if "noload" in o.hack:
                        del g.lines[n0:]
                elif k % 4 == 2 and extra and i < 13:
                    extra.pop(0)()
        if L:
            g.label(L)

    G.poll(vFH, 12, sleep=4)
    G.stamp(5)
    if o.tags:
        g("s_mov_b64 exec, 1")
        g.vmem(f"buffer_store_dword v15, v14, {sr(SWS, 4)}, {sr(sFH)} offen sc1", "flag")
        g("s_mov_b64 exec, -1")
    for i in range(3):
        for f in loads(i):
            f()
        issued[0] += 1
    for sg in range(4):
        g.vmem(f"buffer_load_dword {vr(vGG + sg)}, v13, {sr(SWS, 4)}, {sr(sPa + sg)} offen sc1", "g")
    done = 0
    for _ in range(steps[0]):
        step(done); done += 1
    g.wait(vm="kv3")
    g("s_barrier")
    for s in range(4):
        for n in range(5):
            extra.append(lambda s=s, n=n: G.dma(SWS, vL, s * 40960 + n * 1024, REDOFF + s * 5120 + n * 1024, "wo", m0base=sWl, sbase=sWo, flags="sc1"))

    def wo4(n):
        g(f"s_add_u32 {sr(sT0)}, {sr(sWo)}, {4 * 40960 + n * 1024}")
        g.vmem(f"buffer_load_dwordx4 {vr(BI + 4 * n, 4)}, {vr(vL)}, {sr(SWS, 4)}, {sr(sT0)} offen sc1", "wo")
    assert steps[0] >= 1
    extra.extend(lambda n=n: wo4(n) for n in range(5))
    for _ in range(steps[1]):
        step(done); done += 1
    while issued[0] < 14:
        for f in loads(issued[0]):
            f()
        issued[0] += 1
    while extra:
        extra.pop(0)()
    g(f"s_mul_i32 {sr(sT1)}, {sr(sCP)}, 160\ns_lshl_b32 {sr(sT2)}, {sr(sTT)}, 11\ns_mov_b64 exec, 0x3ff")
    G.dma(SB2, vL, 0, HXOFF + 9216, "b2", m0base=sT2, sbase=sT1)
    g("s_mov_b64 exec, -1")
    if o.tags:
        G.poll(vFO, vLb, sleep=4)
        g(f"v_add_u32 {vr(vLb)}, 4096, {vr(vL)}")
    G.stamp(12 if o.fine != "B" else 99)
    g("s_barrier")
    for _ in range(steps[2]):
        step(done); done += 1
    G.stamp(6)
    wof = lambda s, n: (144 + 20 * s if s < 4 else BI) + 4 * n
    of = lambda sg, s: (24, 44, 224)[sg % 3] + 4 * s

    def oload(sg):
        for s in range(5):
            g.vmem(f"buffer_load_dwordx4 {vr(of(sg, s), 4)}, {vr(vL if s < 4 else vLb)}, {sr(SWS, 4)}, {sr(sOb + sg)} offen offset:{(s % 4) * 1024} sc1", ("o", sg, s))

    g.wait(vm="all")
    first = list(range(o.ospin))
    if o.tags:
        for sg in first:
            oload(sg)
    g(f"""
    v_lshrrev_b32 v246, 8, {vr(vL)}
    v_lshlrev_b32 v246, 3, v246
    s_add_u32 {sr(sT2)}, {sr(sT2)}, {HXOFF + 9216}
    v_add_u32 v246, {sr(sT2)}, v246
    """)
    for n in range(5):
        g.lds(f"ds_read_b64 {vr(204 + 2 * n, 2)}, v246 offset:{32 * n}", "b2r")
    for s in range(3):
        for n in range(5):
            g.lds(f"ds_read_b128 {vr(wof(s, n), 4)}, {vr(vRW)} offset:{s * 5120 + n * 1024}", "wor")
    g.wait(lg="b2r")
    for k in range(10):
        a = GA + 60 + 2 * k
        g(f"v_lshlrev_b32 v244, 16, {vr(204 + k)}\nv_and_b32 v245, 0xffff0000, {vr(204 + k)}\nv_pk_add_f32 {vr(a, 2)}, {vr(a, 2)}, v[244:245]")
    for n in range(5):
        g.lds(f"ds_read_b128 {vr(wof(3, n), 4)}, {vr(vRW)} offset:{3 * 5120 + n * 1024}", "wor")
    for sg in range(4):
        g(f"v_sub_f32 v244, 1.0, {vr(vGG + sg)}")
        for r in range(0, 20, 2):
            a = GA + 20 * sg + r
            g(f"v_pk_mul_f32 {vr(a, 2)}, {vr(a, 2)}, {vr(244, 2)} op_sel_hi:[1,0]")
    g.wait(lg="all")
    G.stamp(7)
    if not o.tags:
        G.poll(vFO, 246, sleep=o.osleep)
        G.stamp(8)

    def rwrite(sg):
        return [lambda n=n: g.lds(f"ds_write_b128 {vr(vRW)}, {vr(GA + 20 * sg + 4 * n, 4)} offset:{sg * 5120 + n * 1024}", "rw") for n in range(5)]

    def check_ops(sg):
        r = of(sg, 0)
        ops = [f"v_max3_u32 v247, {vr(r)}, {vr(r + 1)}, {vr(r + 2)}"]
        ops += [f"v_max3_u32 v247, v247, {vr(r + k)}, {vr(r + k + 1)}" for k in range(3, 19, 2)]
        ops += [f"v_max_u32 v247, v247, {vr(r + 19)}", "v_cmp_eq_u32 vcc, -1, v247"]
        return ops

    def spin(sg):
        L, E = G.lab("ospin"), G.lab("odone")
        g(f"s_mov_b32 {sr(sSPIN)}, {SPIN}")
        g.label(L)
        oload(sg)
        g(f"s_sub_u32 {sr(sSPIN)}, {sr(sSPIN)}, 1\ns_waitcnt vmcnt(0)\ns_cbranch_scc1 {E}")
        for x in check_ops(sg):
            g(x)
        g(f"s_cbranch_vccnz {L}")
        g.label(E)
        g.vm_done = len(g.vm)

    retries = []
    if o.tags:
        L, C, E = G.lab("o0spin"), G.lab("o0chk"), G.lab("o0done")
        g(f"s_mov_b32 {sr(sSPIN)}, {SPIN}\ns_branch {C}")
        g.label(L)
        st = g.state()
        for sg in first:
            oload(sg)
        g.restore(st)
        g.label(C)
        g(f"s_sub_u32 {sr(sSPIN)}, {sr(sSPIN)}, 1")
        g.wait(vm=("o", 0, 4))
        g(f"s_cbranch_scc1 {E}")
        for x in check_ops(0):
            g(x)
        g(f"s_cbranch_vccnz {L}")
        g.label(E)
        G.stamp(8)
        for sg in range(o.ospin, 3):
            oload(sg)
    else:
        for sg in range(3):
            oload(sg)
    for sg in range(4):
        pend = rwrite(sg - 1) if sg else []
        chk = check_ops(sg + 1) if o.tags and sg < 3 else []
        k = 0
        order = [(s, n) for s in range(5) for n in range(5)] if not o.tags else [(s, n) for n in range(5) for s in range(5)]
        for s, n in order:
            g.wait(vm=("o", sg, s))
            a = GA + 20 * sg + 4 * n
            g(f"v_mfma_f32_16x16x32_bf16 {vr(a, 4)}, {vr(wof(s, n), 4)}, {vr(of(sg, s), 4)}, {vr(a, 4)}")
            k += 1
            if k >= (4 if o.tags else 8) and pend:
                pend.pop(0)()
            elif k > 25 - o.chk_late and chk:
                g.wait(vm=("o", sg + 1, 4))
                for x in chk[:2]:
                    g(x)
                chk = chk[2:]
            if sg == 3 and k == (11 if o.tags else 15):
                g.wait(lg="all")
                g("s_barrier")
                for x in range(3):
                    for n2 in range(5):
                        g.lds(f"ds_read_b128 {vr(GA + 20 * x + 4 * n2, 4)}, {vr(vRR + x)} offset:{n2 * 1024}", ("rr", x))
        if chk:
            g.wait(vm=("o", sg + 1, 4))
            for x in chk:
                g(x)
        if sg == 0:
            oload(3)
        if o.tags and sg < 3:
            R, B = G.lab("oretry"), G.lab("oback")
            g(f"s_cbranch_vccnz {R}")
            g.label(B)
            retries.append((R, B, sg + 1))
    G.stamp(9)
    g.wait(lg=("rr", 1))
    for r in range(0, 20, 2):
        g(f"v_pk_add_f32 {vr(GA + r, 2)}, {vr(GA + r, 2)}, {vr(GA + 20 + r, 2)}")
    g.wait(lg=("rr", 2))
    for r in range(0, 20, 2):
        g(f"v_pk_add_f32 {vr(GA + r, 2)}, {vr(GA + r, 2)}, {vr(GA + 40 + r, 2)}")
    for n in range(5):
        a = GA + 4 * n
        for r in range(0, 4, 2):
            g(f"v_pk_add_f32 {vr(a + r, 2)}, {vr(a + r, 2)}, {vr(a + 60 + r, 2)}")
        g(f"v_cvt_pk_bf16_f32 {vr(a)}, {vr(a)}, {vr(a + 1)}\nv_cvt_pk_bf16_f32 {vr(a + 1)}, {vr(a + 2)}, {vr(a + 3)}")
        g(f"buffer_store_dwordx2 {vr(a, 2)}, {vr(vOut)}, {sr(SOUT, 4)}, 0 offen offset:{32 * n}")
    if o.stamps:
        g("s_waitcnt vmcnt(0)")
    G.stamp(10)
    G.dump_stamps()
    g("s_endpgm")
    for R, B, sg in retries:
        g.label(R)
        spin(sg)
        g(f"s_branch {B}")


def phase2(G):
    g = G.g
    st = g.state()
    G.role = 'attn'
    attention(G)
    g.restore(st)
    G.role = 'gemm'
    gemm(G)
```

```python
import sys, math, argparse
from asmlib import *

NAME = "gated_mix__mha_block__dense_activation_squared_relu__prompt_kernel"

FQ, FH, FO, GOFF, TSOFF = 0x0, 0x20000, 0x40000, 0x60000, 0x80000
QOFF, KVOFF, HOFF, OOFF, WPOFF, WS_SIZE = 0x100000, 0x400000, 0x900000, 0x1000000, 0x1280000, 0x1580000
OOB = 0x7F000000
QSCALE = math.log2(math.e) / math.sqrt(20.0)
LDS_BYTES = 163840
NREC, REC = 48, 3072
REDOFF = 16 * REC
SPIN = 1 << 21

sW, sRB, sCS, sJ, sH = 3, 4, 5, 6, 7
SX, SWQ, SW1, SWS, SW2, SWO, SOUT, SB1, SB2, SGW, SDBG, SCODE = (8 + 4 * i for i in range(12))
sM0, sT0, sT1, sT2, sRT, sCP, sTT, sCH = 56, 57, 58, 59, 60, 61, 62, 63
sSPIN, sSCALE, sHS, sT3, sT4, sT5 = 64, 65, 66, 67, 68, 69
sA = 70
sTS = 80


def f32hex(x):
    import struct
    return hex(struct.unpack("<I", struct.pack("<f", x))[0])


class Gen:
    def __init__(self, opt):
        self.o = opt
        self.g = Stream()
        self.nlab = 0
        self.role = ''

    def lab(self, base):
        self.nlab += 1
        return f"L{base}_{self.nlab}"

    def stamp(self, k):
        if self.o.diag:
            g = self.g
            pt, us = (int(x) for x in self.o.diag.split(":"))
            if k == 0:
                g(f"s_memrealtime s[80:81]\ns_waitcnt lgkmcnt(0)\ns_add_u32 s80, s80, {us * 100}")
            if k == pt and (k < 1 or self.role == self.o.diag_role):
                L = self.lab("diag")
                g.label(L)
                g(f"s_memrealtime s[100:101]\ns_waitcnt lgkmcnt(0)\ns_sub_u32 s100, s100, s80\ns_cmp_lt_i32 s100, 0\ns_cbranch_scc1 {L}")
                g.lg_done = len(g.lg)
            return
        if not self.o.stamps or k > 15:
            return
        g = self.g
        g(f"{'s_memtime' if self.o.stamps == 2 else 's_memrealtime'} {sr(100, 2)}\ns_waitcnt lgkmcnt(0)\ns_mov_b32 {sr(sTS + k)}, s100")
        g.lg_done = len(g.lg)

    def dump_stamps(self):
        if not self.o.stamps:
            return
        g = self.g
        g(f"s_lshl_b32 {sr(sT0)}, s2, 3\ns_add_u32 {sr(sT0)}, {sr(sT0)}, {sr(sW)}\ns_lshl_b32 {sr(sT0)}, {sr(sT0)}, 6")
        g(f"s_add_u32 {sr(sT0)}, {sr(sT0)}, {TSOFF}\nv_mov_b32 v1, 0\ns_mov_b64 exec, 1")
        for k in range(16):
            g(f"v_mov_b32 v2, {sr(sTS + k)}")
            g(f"buffer_store_dword v2, v1, {sr(SWS, 4)}, {sr(sT0)} offen offset:{4 * k}")
        g("s_mov_b64 exec, -1")

    def dma(self, srd, vaddr, soff, ldsoff, tag, m0base=sM0, sbase=None, flags=""):
        g = self.g
        g(f"s_add_u32 m0, {sr(m0base)}, {ldsoff}")
        if sbase is None:
            g(f"s_mov_b32 {sr(sT0)}, {soff}")
        else:
            g(f"s_add_u32 {sr(sT0)}, {sr(sbase)}, {soff}")
        g.vmem(f"buffer_load_dwordx4 {vr(vaddr)}, {sr(srd, 4)}, {sr(sT0)} offen {flags} lds", tag)

    def poll(self, vaddr, vtmp, srd=SWS, sleep=0):
        g = self.g
        L, E = self.lab("poll"), self.lab("polld")
        g(f"s_mov_b32 {sr(sSPIN)}, {SPIN}")
        g.label(L)
        g(f"buffer_load_dword {vr(vtmp)}, {vr(vaddr)}, {sr(srd, 4)}, 0 offen sc1")
        g(f"s_sub_u32 {sr(sSPIN)}, {sr(sSPIN)}, 1")
        g(f"s_cbranch_scc1 {E}")
        g("s_waitcnt vmcnt(0)")
        g(f"v_cmp_ne_u32 vcc, 1, {vr(vtmp)}")
        g(f"s_cbranch_vccz {E}")
        if sleep:
            g(f"s_sleep {sleep}")
        g(f"s_branch {L}")
        g.label(E)
        g("s_waitcnt vmcnt(0)")
        g.vm_done = len(g.vm)

    def set_flag(self, sidx_expr_lines, va, vb):
        g = self.g
        g(sidx_expr_lines)
        g(f"v_mov_b32 {vr(va)}, 0\nv_mov_b32 {vr(vb)}, 1\ns_mov_b64 exec, 1")
        g.vmem(f"buffer_store_dword {vr(vb)}, {vr(va)}, {sr(SWS, 4)}, {sr(sT1)} offen sc1", "flag")
        g("s_mov_b64 exec, -1")

    def prologue(self):
        g, o = self.g, self.o
        g("s_cmp_ge_u32 s2, 256\ns_cbranch_scc1 Lend")
        g(f"s_load_dwordx2 {sr(SX, 2)}, s[0:1], 0\ns_load_dwordx2 {sr(SWQ, 2)}, s[0:1], 8\ns_load_dwordx2 {sr(SB1, 2)}, s[0:1], 40")
        self.stamp(0)
        g(f"""
        v_lshrrev_b32 v2, 6, v0
        s_getpc_b64 {sr(SCODE, 2)}
        v_readfirstlane_b32 {sr(sW)}, v2
        s_mov_b32 {sr(SCODE + 2)}, CODE_BYTES
        s_mov_b32 {sr(SCODE + 3)}, 0x20000
        s_lshr_b32 {sr(sT1)}, s2, 3
        s_and_b32 {sr(sT2)}, {sr(sT1)}, 7
        v_and_b32 v0, 63, v0
        """)
        if o.code_prefetch:
            g(f"""
            s_lshl_b32 {sr(sT3)}, {sr(sT2)}, 3
            s_add_u32 {sr(sT3)}, {sr(sT3)}, {sr(sW)}
            s_lshl_b32 {sr(sT3)}, {sr(sT3)}, 10
            v_lshlrev_b32 v1, 7, v0
            s_mov_b64 exec, 0xff
            buffer_load_dword v127, v1, {sr(SCODE, 4)}, {sr(sT3)} offen
            s_mov_b64 exec, -1
            """)
        rot = {0: f"s_mov_b32 {sr(sT0)}, 0",
               3: f"""
        s_add_u32 {sr(sT0)}, {sr(sT2)}, {sr(sT3)}
        s_mul_i32 {sr(sT3)}, {sr(sT0)}, 86
        s_lshr_b32 {sr(sT3)}, {sr(sT3)}, 8
        s_mul_i32 {sr(sT3)}, {sr(sT3)}, 3
        s_sub_u32 {sr(sT0)}, {sr(sT0)}, {sr(sT3)}
        s_mul_i32 {sr(sT0)}, {sr(sT0)}, 7
        s_lshr_b32 {sr(sT0)}, {sr(sT0)}, 1""",
               4: f"""
        s_add_u32 {sr(sT0)}, {sr(sT2)}, {sr(sT3)}
        s_and_b32 {sr(sT0)}, {sr(sT0)}, 3
        s_mul_i32 {sr(sT0)}, {sr(sT0)}, 5
        s_lshr_b32 {sr(sT0)}, {sr(sT0)}, 1""",
               1: f"""
        s_lshr_b32 {sr(sT0)}, {sr(sT2)}, 2
        s_add_u32 {sr(sT0)}, {sr(sT0)}, {sr(sT2)}
        s_mul_i32 {sr(sT3)}, {sr(sT3)}, 5
        s_lshr_b32 {sr(sT3)}, {sr(sT3)}, 1
        s_add_u32 {sr(sT0)}, {sr(sT0)}, {sr(sT3)}
        s_cmp_ge_u32 {sr(sT0)}, 10
        s_cselect_b32 {sr(sT3)}, 10, 0
        s_sub_u32 {sr(sT0)}, {sr(sT0)}, {sr(sT3)}"""}[o.rot]
        g(f"""
        s_and_b32 {sr(sRB)}, s2, 4
        s_lshl_b32 {sr(sRB)}, {sr(sRB)}, 1
        s_add_u32 {sr(sRB)}, {sr(sRB)}, {sr(sT2)}
        s_lshr_b32 {sr(sT3)}, s2, 6
        s_lshl_b32 {sr(sCS)}, {sr(sT3)}, 2
        s_and_b32 {sr(sT4)}, s2, 3
        s_add_u32 {sr(sCS)}, {sr(sCS)}, {sr(sT4)}
        s_and_b32 {sr(sTT)}, {sr(sW)}, 3
        s_lshr_b32 {sr(sCH)}, {sr(sW)}, 2
        s_lshl_b32 {sr(sM0)}, {sr(sTT)}, 10
        {rot}
        s_lshl_b32 {sr(sA)}, {sr(sT0)}, 7
        s_mul_i32 {sr(sA + 1)}, {sr(sT0)}, {64 * 3840}
        s_mul_i32 {sr(sA + 2)}, {sr(sT0)}, {64 * 3456}
        v_lshrrev_b32 v2, 3, v0
        v_lshrrev_b32 v3, 4, v0
        s_lshl_b32 {sr(sT0)}, {sr(sRB)}, 7
        s_lshl_b32 {sr(sT1)}, {sr(sTT)}, 3
        s_add_u32 {sr(sT0)}, {sr(sT0)}, {sr(sT1)}
        v_add_u32 v2, {sr(sT0)}, v2
        v_mul_u32_u24 v4, 1280, v2
        s_lshl_b32 {sr(sT0)}, {sr(sTT)}, 2
        v_add_u32 v2, {sr(sT0)}, v3
        v_xor_b32 v7, v2, v0
        v_and_b32 v7, 7, v7
        v_lshl_add_u32 v4, v7, 4, v4
        s_and_b32 {sr(sT0)}, {sr(sW)}, 2
        s_lshl_b32 {sr(sT0)}, {sr(sT0)}, 2
        v_lshl_add_u32 v7, v3, 1, {sr(sT0)}
        v_xor_b32 v7, v7, v0
        v_and_b32 v7, 15, v7
        s_lshl_b32 {sr(sT0)}, {sr(sCS)}, 8
        v_lshl_add_u32 v7, v7, 4, {sr(sT0)}
        v_mul_u32_u24 v5, 3840, v2
        v_add_u32 v5, v5, v7
        s_mov_b32 {sr(SX + 2)}, {2048 * 1280}
        s_mov_b32 {sr(SX + 3)}, 0x20000
        s_mov_b32 {sr(SWQ + 2)}, {640 * 3840}
        s_mov_b32 {sr(SWQ + 3)}, 0x20000
        s_lshl_b32 {sr(sT1)}, {sr(sCH)}, 13
        s_add_u32 {sr(sT1)}, {sr(sT1)}, {sr(sM0)}
        s_mul_i32 {sr(sT2)}, {sr(sCH)}, {64 * 1280}
        s_add_u32 {sr(sT2)}, {sr(sT2)}, {sr(sA)}
        s_mul_i32 {sr(sT3)}, {sr(sCH)}, {32 * 3840}
        s_add_u32 {sr(sT3)}, {sr(sT3)}, {sr(sA + 1)}
        s_mov_b32 {sr(SB1 + 2)}, 3456
        s_mov_b32 {sr(SB1 + 3)}, 0x20000
        v_lshlrev_b32 v9, 2, v0
        s_mov_b32 {sr(sT5)}, {sr(sT0)}
        s_cmp_eq_u32 {sr(sCS)}, 15
        s_waitcnt lgkmcnt(0)
        s_cbranch_scc1 Lno0
        """)

        for q in range(2):
            self.dma(SX, 4, q * 32 * 1280, q * 4096, ("A", 0), m0base=sT1, sbase=sT2)
        for q in range(2):
            self.dma(SWQ, 5, q * 16 * 3840, 16384 + q * 4096, ("A", 0), m0base=sT1, sbase=sT3)
        g.label("Lno0")
        if o.fine == "S":
            self.stamp(9)
        self.adv(sA, 128); self.adv(sA + 1, 64 * 3840)
        g(f"s_cmp_eq_u32 {sr(sCS)}, 15\ns_cbranch_scc1 Lgate")

    def rest_setup(self):
        g = self.g
        for srd, slot in ((SW1, 4), (SWS, 11), (SGW, 8), (SDBG, 10), (SW2, 6), (SWO, 2), (SOUT, 9), (SB2, 7)):
            g(f"s_load_dwordx2 {sr(srd, 2)}, s[0:1], {8 * slot}")
        for srd, n in ((SW1, 640 * 3456), (SWS, WS_SIZE), (SGW, 1280),
                       (SDBG, 256), (SW2, 1728 * 1280), (SWO, 640 * 1280), (SOUT, 2048 * 1280), (SB2, 1280)):
            g(f"s_mov_b32 {sr(srd + 2)}, {n}\ns_mov_b32 {sr(srd + 3)}, 0x20000")
        g(f"""
        v_mul_u32_u24 v6, 3456, v2
        v_add_u32 v6, v6, v7
        s_cmp_eq_u32 {sr(sCS)}, 14
        s_cselect_b32 {sr(sT0)}, {OOB}, 0
        v_add_u32 v6, {sr(sT0)}, v6
        s_lshr_b32 {sr(sJ)}, s2, 5
        s_mov_b32 {sr(sCP)}, {sr(sJ)}
        s_lshr_b32 {sr(sT1)}, s2, 3
        s_and_b32 {sr(sT1)}, {sr(sT1)}, 3
        s_and_b32 {sr(sT0)}, s2, 7
        s_lshl_b32 {sr(sH)}, {sr(sT0)}, 2
        s_add_u32 {sr(sH)}, {sr(sH)}, {sr(sT1)}
        s_mov_b32 {sr(sRT)}, {sr(sH)}
        s_waitcnt lgkmcnt(0)
        """)

    vXG, vWG, vW1G = 4, 5, 6

    def adv(self, reg, step):
        self.g(f"s_add_u32 {sr(reg)}, {sr(reg)}, {step}\ns_cmp_eq_u32 {sr(reg)}, {10 * step}\ns_cselect_b32 {sr(reg)}, 0, {sr(reg)}")

    def dma4(self, srd, va, sreg, quarter, step, lds, tag, defer=False):
        def one(q):
            self.dma(srd, va, q * quarter, lds + q * 4096, tag, sbase=sreg)
            if q == 3:
                self.adv(sreg, step)
        L = [lambda q=q: one(q) for q in range(4)]
        if defer:
            return L
        for f in L:
            f()

    def dmaX(self, s):
        self.dma4(SX, self.vXG, sA, 32 * 1280, 128, (s % 5) * 32768, ("A", s))

    def dmaW(self, s):
        self.dma4(SWQ, self.vWG, sA + 1, 16 * 3840, 64 * 3840, (s % 5) * 32768 + 16384, ("A", s))

    def dmaB(self, t, defer=False):
        return self.dma4(SW1, self.vW1G, sA + 2, 16 * 3456, 64 * 3456, t * 16384, ("B", t), defer)

    def rd(self, mn, dst, n, areg, off, tag, base):
        g = self.g
        if not (0 <= off - base[areg] <= 65535):
            nb = min(off & ~16383, LDS_BYTES - 65536)
            g(f"v_add_u32 {vr(areg)}, {(nb - base[areg]) & 0xFFFFFFFF}, {vr(areg)}")
            base[areg] = nb
        g.lds(f"{mn} {vr(dst, n)}, {vr(areg)} offset:{off - base[areg]}", tag)

    def x_read_addr(self, d0, d1, srow):
        self.g(f"""
        v_lshrrev_b32 v3, 4, v0
        v_and_b32 v2, 15, v0
        v_add_u32 {vr(d0)}, {sr(srow)}, v2
        v_lshlrev_b32 {vr(d0)}, 7, {vr(d0)}
        v_lshrrev_b32 v20, 1, v2
        v_xor_b32 v20, v20, v3
        v_xor_b32 v21, 4, v20
        v_lshl_add_u32 {vr(d1)}, v21, 4, {vr(d0)}
        v_lshl_add_u32 {vr(d0)}, v20, 4, {vr(d0)}
        """)

    def w_read_addr(self, dsts, sfirst, t):
        g = self.g
        g(f"""
        v_lshrrev_b32 {vr(t)}, 4, v0
        v_bfe_u32 {vr(t + 1)}, v0, 2, 2
        v_and_b32 {vr(t + 2)}, 3, v0
        v_lshl_add_u32 {vr(t + 3)}, {vr(t)}, 3, {vr(t + 1)}
        v_lshlrev_b32 {vr(t + 3)}, 8, {vr(t + 3)}
        v_lshl_add_u32 {vr(t + 3)}, {vr(t + 2)}, 3, {vr(t + 3)}
        v_and_b32 {vr(t)}, 1, {vr(t)}
        v_lshl_add_u32 {vr(t)}, {vr(t)}, 2, {vr(t + 1)}
        """)
        if sfirst is not None:
            g(f"v_xor_b32 {vr(t)}, {sr(sfirst)}, {vr(t)}")
        for n, d in enumerate(dsts):
            g(f"v_xor_b32 {vr(t + 1)}, {n}, {vr(t)}\nv_lshl_add_u32 {vr(d)}, {vr(t + 1)}, 5, {vr(t + 3)}")

    def clean_load(self):
        g = self.g
        g("v_and_b32 v2, 15, v0\nv_lshlrev_b32 v2, 2, v2")
        g.vmem(f"buffer_load_dword v3, v2, {sr(SDBG, 4)}, 0 offen sc1", "clean")

    aXR, aWR, aST, aACC, aBUF = (7, 8), (9, 10, 11, 12), (13, 14, 15, 16), 64, 128

    def a_setup(self):
        g = self.g
        sTH, sAC = sA + 3, sA + 4
        g(f"s_and_b32 {sr(sTH)}, {sr(sW)}, 1\ns_lshr_b32 {sr(sAC)}, {sr(sW)}, 1\ns_lshl_b32 {sr(sT0)}, {sr(sTH)}, 6")
        self.x_read_addr(*self.aXR, sT0)
        g(f"s_lshl_b32 {sr(sT0)}, {sr(sAC)}, 2")
        self.w_read_addr(self.aWR, sT0, 20)
        LV, LD = self.lab("stv"), self.lab("std")
        g(f"""
        s_mul_i32 {sr(sT0)}, {sr(sCS)}, 205
        s_lshr_b32 {sr(sT0)}, {sr(sT0)}, 10
        s_mul_i32 {sr(sT1)}, {sr(sT0)}, 5
        s_sub_u32 {sr(sT1)}, {sr(sCS)}, {sr(sT1)}
        s_lshl_b32 {sr(sT2)}, {sr(sRB)}, 1
        s_add_u32 {sr(sT2)}, {sr(sT2)}, {sr(sTH)}
        s_lshl_b32 {sr(sT2)}, {sr(sT2)}, 1
        s_cmp_eq_u32 {sr(sT0)}, 0
        s_mov_b32 {sr(sA + 5)}, 2560
        s_cselect_b32 {sr(sA + 5)}, 1280, {sr(sA + 5)}
        s_mov_b32 {sr(sT4)}, {KVOFF}
        s_cselect_b32 {sr(sT4)}, {QOFF}, {sr(sT4)}
        s_mul_i32 {sr(sT2)}, {sr(sT2)}, {sr(sA + 5)}
        s_add_u32 {sr(sT4)}, {sr(sT4)}, {sr(sT2)}
        s_lshl_b32 {sr(sT3)}, {sr(sA + 5)}, 6
        s_cmp_eq_u32 {sr(sT0)}, 2
        s_cbranch_scc1 {LV}
        s_lshl_b32 {sr(sT1)}, {sr(sT1)}, 5
        s_lshl_b32 {sr(sT2)}, {sr(sAC)}, 4
        s_add_u32 {sr(sT1)}, {sr(sT1)}, {sr(sT2)}
        v_add_u32 v22, {sr(sT1)}, v3
        v_lshlrev_b32 v17, 4, v2
        v_add_u32 v17, {sr(sT4)}, v17
        """)
        for n in range(4):
            g(f"""
            v_add_u32 v18, {4 * n}, v22
            v_mul_u32_u24 v19, 205, v18
            v_lshrrev_b32 v19, 10, v19
            v_mul_u32_u24 v20, 5, v19
            v_sub_u32 v20, v18, v20
            v_mul_lo_u32 v19, v19, {sr(sT3)}
            v_lshl_add_u32 v19, v20, 8, v19
            v_add_u32 {vr(self.aST[n])}, v19, v17
            """)
        g(f"s_branch {LD}")
        g.label(LV)
        g(f"""
        s_lshl_b32 {sr(sT1)}, {sr(sT1)}, 7
        s_lshl_b32 {sr(sT2)}, {sr(sAC)}, 6
        s_add_u32 {sr(sT1)}, {sr(sT1)}, {sr(sT2)}
        v_add_u32 v22, {sr(sT1)}, v2
        v_mul_u32_u24 v17, 320, v3
        s_add_u32 {sr(sT4)}, {sr(sT4)}, 1280
        v_add_u32 v17, {sr(sT4)}, v17
        """)
        for n in range(4):
            g(f"""
            v_add_u32 v18, {16 * n}, v22
            v_mul_u32_u24 v19, 3277, v18
            v_lshrrev_b32 v19, 16, v19
            v_mul_u32_u24 v20, 20, v19
            v_sub_u32 v20, v18, v20
            v_mul_lo_u32 v19, v19, {sr(sT3)}
            v_lshl_add_u32 v19, v20, 4, v19
            v_add_u32 {vr(self.aST[n])}, v19, v17
            """)
        g.label(LD)

    def flush_epi(self, epi):
        g = self.g
        gained = 0
        for ready, ops in epi:
            short = ready - len(g.lines) - gained
            if short > 0:
                g(f"s_nop {short - 1}")
                gained += short - 1
            for x in ops:
                g(x)

    def a_epi_ops(self, n, t, scale):
        a = self.aACC + (n * 4 + t) * 4
        d = self.aACC + 16 * n + 8 * (t >> 1) + 2 * (t & 1)
        ops = [f"v_mul_f32 {vr(a + r)}, {sr(sSCALE)}, {vr(a + r)}" for r in range(4)] if scale else []
        return ops + [f"v_cvt_pk_bf16_f32 {vr(d + q)}, {vr(a + 2 * q)}, {vr(a + 2 * q + 1)}" for q in range(2)]

    def a_pass(self, swap):
        g, o = self.g, self.o
        base = {r: 0 for r in self.aXR + self.aWR}
        xreg = lambda s, kk, t: self.aBUF + 64 * (s % 2) + (kk * 4 + t) * 4
        wreg = lambda s, n, kk: self.aBUF + 64 * (s % 2) + 32 + n * 8 + kk * 4

        def reads(s):
            q = (s % 5) * 32768
            X = [lambda kk=kk, t=t: self.rd("ds_read_b128", xreg(s, kk, t), 4, self.aXR[kk], q + t * 2048, ("x", s, t), base)
                 for t in range(4) for kk in range(2)]
            W = [lambda n=n, kk=kk, u=u: self.rd("ds_read_b64_tr_b16", wreg(s, n, kk) + 2 * u, 2, self.aWR[n], q + 16384 + kk * 8192 + u * 1024, ("w", s, n), base)
                 for n in range(4) for kk in range(2) for u in range(2)]
            return W[:4] + X + W[4:]

        g("s_barrier")
        self.stamp(1)
        for f in reads(0):
            f()
        if o.a_split == 1:
            from gen2 import attn_setup
            attn_setup(self, 1)
        for s in range(10):
            pos = 32 if s < o.early else o.barpos
            pend = []
            epi = []
            k = 0
            for n in range(4):
                for t in range(4):
                    for kk in range(2):
                        if k == pos and s < 9:
                            g.wait(lg="all", vm="all")
                            g("s_barrier")
                            pend = reads(s + 1)
                        if k == 0 and o.fine == "A" and s in (0, 1, 2, 4, 6, 8, 9):
                            self.stamp(9 + (0, 1, 2, 4, 6, 8, 9).index(s))
                        g.wait(lg=[("w", s, n), ("x", s, t)])
                        a = self.aACC + (n * 4 + t) * 4
                        w, x = vr(wreg(s, n, kk), 4), vr(xreg(s, kk, t), 4)
                        A, B = (x, w) if swap else (w, x)
                        g(f"v_mfma_f32_16x16x32_bf16 {vr(a, 4)}, {A}, {B}, {'0' if s == 0 and kk == 0 else vr(a, 4)}")
                        mline = len(g.lines)
                        k += 1
                        if pend:
                            pend.pop(0)()
                        if s == 9:
                            if kk == 1:
                                epi.append([mline + 8, self.a_epi_ops(n, t, not swap)])
                            budget = o.epi_rate
                            while budget and epi and epi[0][0] <= len(g.lines):
                                g(epi[0][1].pop(0)); budget -= 1
                                if not epi[0][1]:
                                    epi.pop(0)
            if s == 9:
                g("s_barrier")
                self.stamp(2)
                self.clean_load()
                for t in range(o.b2_stage - o.a_pre, o.b2_stage):
                    self.dmaB(t)
                self.flush_epi(epi)
            if pos == 32 and s < 9:
                if s == 0 and o.a_split == 2:
                    from gen2 import attn_setup
                    attn_setup(self, 1)
                g.wait(lg="all", vm="all")
                g("s_barrier")
                pend = reads(s + 1)
            for f in pend:
                f()

    def a_phase1(self):
        g, o = self.g, self.o
        g.label("La1")
        self.rest_setup()
        g("v_mov_b32 v125, v4\nv_mov_b32 v126, v5")
        self.a_setup()
        for t in range(o.b2_stage - o.a_pre):
            self.adv(sA + 2, 64 * 3456)
        g(f"s_cmp_lt_u32 {sr(sCS)}, 5\ns_cselect_b32 {sr(sSCALE)}, {f32hex(QSCALE)}, 1.0")
        g(f"""
        s_lshl_b32 {sr(sT1)}, {sr(sCS)}, 1
        s_add_u32 {sr(sT1)}, {sr(sT1)}, {sr(sA + 4)}
        s_lshl_b32 {sr(sT1)}, {sr(sT1)}, 5
        s_lshl_b32 {sr(sT2)}, {sr(sRB)}, 1
        s_add_u32 {sr(sT1)}, {sr(sT1)}, {sr(sT2)}
        s_add_u32 {sr(sT1)}, {sr(sT1)}, {sr(sA + 3)}
        s_lshl_b32 {sr(sHS)}, {sr(sT1)}, 7""")
        from gen2 import attn_setup
        attn_setup(self, 0 if o.a_split else None)
        if o.fine == "S":
            self.stamp(10)
        if o.a_st1:
            self.vXG, self.vWG = 125, 126
            self.dmaX(1); self.dmaW(1)
            self.vXG, self.vWG = 4, 5
        if o.fine == "S":
            self.stamp(11)
        g.wait(vm=("A", 0))
        if o.fine == "S":
            self.stamp(12)
        if o.aprio:
            g(f"s_setprio {o.aprio}")
        g(f"s_cmp_ge_u32 {sr(sCS)}, 10\ns_cbranch_scc1 LpassA_v")
        st = g.state()
        self.a_pass(False)
        g("s_branch LepiA")
        g.restore(st)
        g.label("LpassA_v")
        self.a_pass(True)
        g.label("LepiA")
        late = sum([self.dmaB(t, True) for t in range(o.b2_stage, 10)], [])
        for n in range(4):
            for T in range(2):
                a = self.aACC + 16 * n + 8 * T
                g.vmem(f"buffer_store_dwordx4 {vr(a, 4)}, {vr(self.aST[n])}, {sr(SWS, 4)}, {sr(sA + 5) if T else 0} offen sc1", "stA")
                for f in late[:o.ilv]:
                    f()
                late = late[o.ilv:]
                if o.b1_stage < o.b2_stage and 2 * n + T + 1 == o.b1_pos:
                    if o.a_pre:
                        g.wait(vm=("B", o.b2_stage - 1))
                    g("s_barrier")
        for f in late:
            f()
        if o.b3_stage < 10:
            g.wait(vm=("B", o.b3_stage - 1))
            g("s_barrier")
        g.wait(vm="stA")
        self.check_clean()
        self.set_flag(f"s_mov_b32 {sr(sT1)}, {sr(sHS)}", 2, 3)
        self.stamp(3)
        g.wait(vm=("B", 9))
        g("s_barrier\ns_branch Lattn")

    gXR, gWR, gACC, gX = (7, 8), (1, 2, 4, 5, 7, 8, 9, 10), 32, 96

    def gx(self, s, kk, t):
        return self.gX + ((2 * s + kk) * 2 + t) * 4

    def gacc(self, n, t):
        return self.gACC + ((n >> 1) * 2 + t) * 8 + (n & 1) * 4

    def g_phase1(self):
        g, o = self.g, self.o
        fn = {"x": self.dmaX, "w": self.dmaW, "b": self.dmaB}
        sched = [[it for it in grp.split(",") if it] for grp in o.order.split("/")]
        assert len(sched) == 12 and (o.b3_stage if o.b3_stage < 10 else o.b2_stage) >= 6
        for k, grp in enumerate(sched):
            for it in grp:
                st_ = int(it[1]) if it[0] != "b" else 10 + int(it[1]) // 2
                assert st_ <= max(4, k + 3), (k, it)
        assert sorted(sum(sched, [])) == sorted([f"x{i}" for i in range(10)] + [f"w{i}" for i in range(10)] + [f"b{i}" for i in range(o.b2_stage - o.a_pre)])
        def issue(k):
            for it in sched[k]:
                if it in ("x0", "w0"):
                    pass
                elif o.a_st1 and it in ("x1", "w1"):
                    self.adv(*((sA, 128) if it == "x1" else (sA + 1, 64 * 3840)))
                else:
                    fn[it[0]](int(it[1]))
        if o.gprio:
            g(f"s_setprio {o.gprio}")
        from gen2 import gemm_setup

        def bias():
            g.wait(vm="b1")
            for n in range(8):
                for hf in range(2):
                    g.lds(f"ds_bpermute_b32 {vr(12 + 2 * n + hf)}, v9, v10 offset:{32 * n + 4 * hf}", ("b1p", n))
            for n in range(8):
                g.wait(lg=("b1p", n))
                for hf in range(2):
                    g(f"v_lshlrev_b32 {vr(self.gacc(n, 0) + 2 * hf)}, 16, {vr(12 + 2 * n + hf)}")
                    g(f"v_and_b32 {vr(self.gacc(n, 0) + 2 * hf + 1)}, 0xffff0000, {vr(12 + 2 * n + hf)}")
        chunks = {}
        for k, f in zip((int(x) for x in o.gchunks.split(",")), (bias, lambda: gemm_setup(self, 0), lambda: gemm_setup(self, 1))):
            chunks.setdefault(k, []).append(f)
        g.vmem(f"buffer_load_dword v10, v9, {sr(SB1, 4)}, {sr(sT5)} offen", "b1")
        issue(0)
        if o.fine == "S":
            self.stamp(13)
        self.rest_setup()
        g(f"s_lshl_b32 {sr(sT0)}, {sr(sTT)}, 5")
        self.x_read_addr(*self.gXR, sT0)
        g("v_lshlrev_b32 v9, 3, v3")
        for f in chunks.get(0, []):
            f()
        if o.fine == "S":
            self.stamp(14)
        base = {r: 0 for r in self.gXR + self.gWR}
        for s in range(10):
            g.wait(vm=("A", s) if not (o.a_st1 and s == 1) else None, lg="all")
            if o.fine == "S" and s == 0:
                self.stamp(15)
            g("s_barrier")
            for t in range(2):
                for kk in range(2):
                    self.rd("ds_read_b128", self.gx(s, kk, t), 4, self.gXR[kk], (s % 5) * 32768 + t * 2048, ("x", s), base)
            issue(s + 1)
            for f in chunks.get(s + 1, []):
                f()
        self.w_read_addr(self.gWR, None, 12)
        for r in self.gWR:
            base[r] = 0
        g.wait(vm=("B", o.b1_stage - 1), lg="all")
        g("s_barrier")
        issue(11)
        self.stamp(2)
        g(f"s_setprio {o.bprio}")
        g(f"s_cmp_eq_u32 {sr(sCS)}, 14\ns_cbranch_scc1 Lgatez")
        NM = o.nmaj
        groups = [(s, n) for s in range(NM) for n in range(8)] + [(s, n) for n in range(8) for s in range(NM, 10)]
        assert NM >= max(o.b2_stage, o.b3_stage if o.b3_stage < 10 else 0)
        frs = [(s, n, kk) for s, n in groups for kk in range(2)]
        free, where, nxt, half = [12, 16, 20, 24, 28], {}, 0, None

        def issue_read():
            nonlocal nxt, half
            if half is None:
                if nxt >= len(frs) or not free or len(where) >= o.wdepth:
                    return False
                s, n, kk = frs[nxt]
                if n == 0 and kk == 0 and s == o.b1_stage and o.b1_stage < o.b2_stage:
                    g.wait(vm=("B", o.b2_stage - o.a_pre - 1))
                    g("s_barrier")
                if n == 0 and kk == 0 and s in (o.b2_stage, o.b3_stage):
                    g("s_barrier")

                where[frs[nxt]] = free.pop(0)
                half = 0
            s, n, kk = frs[nxt]
            self.rd("ds_read_b64_tr_b16", where[frs[nxt]] + 2 * half, 2, self.gWR[n], s * 16384 + kk * 8192 + half * 1024, ("w", s, n, kk), base)
            if half == 1:
                half = None; nxt += 1
            else:
                half = 1
            return True

        while issue_read():
            pass
        epi, k = [], 0
        for s, n in groups:
            if o.fine == "B" and k % 64 == 32:
                self.stamp(11 + k // 64)
            for m in range(4):
                t, kk = 1 - (m >> 1), m & 1
                while (s, n, kk) not in where or (nxt < len(frs) and frs[nxt] == (s, n, kk)):
                    assert issue_read()
                if m == 0 and (s, n, 1) in where and not (nxt < len(frs) and frs[nxt] == (s, n, 1)):
                    g.wait(lg=("w", s, n, 1))
                else:
                    g.wait(lg=("w", s, n, kk))
                a = self.gacc(n, t)
                g(f"v_mfma_f32_16x16x32_bf16 {vr(a, 4)}, {vr(where[(s, n, kk)], 4)}, {vr(self.gx(s, kk, t), 4)}, {vr(self.gacc(n, 0) if s == 0 and kk == 0 else a, 4)}")
                mline = len(g.lines)
                k += 1
                if t == 0:
                    free.append(where.pop((s, n, kk)))
                did = issue_read()
                if len(where) < o.wdepth - 1:
                    issue_read()
                if s == 9 and kk == 1:
                    d = a - 2 * (n & 1)
                    epi.append([mline + 8, [f"v_max_f32 {vr(a + r)}, 0, {vr(a + r)}" for r in range(4)] +
                                [f"v_mul_f32 {vr(a + r)}, {vr(a + r)}, {vr(a + r)}" for r in range(4)] +
                                [f"v_cvt_pk_bf16_f32 {vr(d + q)}, {vr(a + 2 * q)}, {vr(a + 2 * q + 1)}" for q in range(2)]])
                budget = (2 if not did or m == 1 else 1) if o.gepi else 0
                while budget and epi and epi[0][0] <= len(g.lines):
                    g(epi[0][1].pop(0)); budget -= 1
                    if not epi[0][1]:
                        epi.pop(0)
            if n == 7 and s < NM:
                free.extend(self.gx(s, kk, t) for kk in range(2) for t in range(2))
        self.stamp(3)
        self.flush_epi(epi)
        g("s_setprio 0")
        g("s_branch Lgemm")
        g.label("Lgatez")
        g("s_setprio 0\ns_waitcnt vmcnt(0)")
        for _ in range(1 + (o.b1_stage < o.b2_stage) + (o.b3_stage < 10)):
            g("s_barrier")
        g(f"v_lshlrev_b32 v4, 4, v0\ns_lshl_b32 {sr(sT1)}, {sr(sM0)}, 2\ns_add_u32 {sr(sT1)}, {sr(sT1)}, {5 * 16384}")
        for src, dst in ((0, 0), (256, 256), (0, 1280), (256, 1536)):
            self.dma(SGW, 4, src, dst, "gw", m0base=sT1)
        g(f"s_add_u32 {sr(sT1)}, {sr(sT1)}, {sr(sA)}")
        g(f"v_lshrrev_b32 v5, 4, v0\nv_lshlrev_b32 v5, 4, v5\nv_add_u32 v5, {sr(sT1)}, v5")
        g("s_waitcnt vmcnt(0)")
        for half in range(2):
            for k in range(10):
                g(f"ds_read_b128 {vr(32 + 4 * k, 4)}, v5 offset:{64 * (10 * half + k)}")
            g("s_waitcnt lgkmcnt(0)")
            for k in range(10):
                kk = 10 * half + k
                for t in range(2):
                    g(f"v_mfma_f32_16x16x32_bf16 {vr(80 + 4 * t, 4)}, {vr(32 + 4 * k, 4)}, {vr(self.gx(kk >> 1, kk & 1, t), 4)}, {'0' if kk == 0 else vr(80 + 4 * t, 4)}")
        g(f"""
        s_nop 7
        v_cmp_gt_u32 vcc, 16, v0
        v_lshlrev_b32 v4, 2, v0
        s_lshl_b32 {sr(sT0)}, {sr(sRB)}, 9
        v_cndmask_b32 v80, v84, v80, vcc
        v_mul_f32 v80, {f32hex(-math.log2(math.e))}, v80
        v_exp_f32 v80, v80
        s_lshl_b32 {sr(sT1)}, {sr(sTT)}, 7
        v_add_f32 v80, 1.0, v80
        v_rcp_f32 v80, v80
        s_add_u32 {sr(sT0)}, {sr(sT0)}, {sr(sT1)}
        s_add_u32 {sr(sT0)}, {sr(sT0)}, {GOFF}
        s_mov_b32 exec_hi, 0
        buffer_store_dword v80, v4, {sr(SWS, 4)}, {sr(sT0)} offen sc1
        s_mov_b32 exec_hi, -1
        s_branch Lgemm
        """)

    def phase1(self):
        g = self.g
        g(f"s_cmp_lt_u32 {sr(sW)}, 4\ns_cbranch_scc1 La1")
        st = g.state()
        self.role = "gemm"
        self.g_phase1()
        g.restore(st)
        self.role = "attn"
        self.a_phase1()

    def check_clean(self):
        g = self.g
        L = self.lab("clean")
        g(f"v_cmp_ne_u32 vcc, 1, v3\ns_cbranch_vccz {L}")
        st = g.state()
        self.poll(2, 3, SDBG)
        g.restore(st)
        g.label(L)

    def const_regs(self, a, d):
        self.g(f"""
        v_and_b32 {vr(d + 2)}, 31, v0
        v_lshrrev_b32 {vr(d + 3)}, 5, v0
        s_lshl_b32 {sr(sT0)}, {sr(sTT)}, 1
        v_add_u32 {vr(d + 3)}, {sr(sT0)}, {vr(d + 3)}
        v_mul_u32_u24 {vr(d + 3)}, {REC}, {vr(d + 3)}
        v_lshl_add_u32 {vr(a)}, {vr(d + 2)}, 4, {vr(d + 3)}
        v_and_b32 {vr(d + 3)}, 23, {vr(d + 2)}
        v_cmp_eq_u32 vcc, 16, {vr(d + 3)}
        v_mov_b32 {vr(d + 3)}, 0x3f803f80
        v_mov_b32 {vr(d)}, 0x3f80
        v_cndmask_b32 {vr(d + 1)}, 0, {vr(d + 3)}, vcc
        v_cmp_eq_u32 vcc, 20, {vr(d + 2)}
        v_mov_b32 {vr(d + 2)}, {vr(d + 1)}
        v_mov_b32 {vr(d + 3)}, {vr(d + 1)}
        v_cndmask_b32 {vr(d)}, {vr(d + 1)}, {vr(d)}, vcc
        """)

    def const_write(self, a, d, groups):
        g = self.g
        cur = 0
        for grp in groups:
            if (grp - cur) * 8 * REC + 2560 > 65535:
                g(f"v_add_u32 {vr(a)}, {(grp - cur) * 8 * REC}, {vr(a)}")
                cur = grp
            g.lds(f"ds_write_b128 {vr(a)}, {vr(d, 4)} offset:{2560 + (grp - cur) * 8 * REC}", "cw")

    def gate(self):
        g = self.g
        g.label("Lgate")
        self.rest_setup()
        g(f"""
        s_mul_i32 {sr(sT0)}, {sr(sRB)}, {192 * 128}
        s_mul_i32 {sr(sT1)}, {sr(sW)}, {24 * 128}
        s_add_u32 {sr(sT0)}, {sr(sT0)}, {sr(sT1)}
        v_lshlrev_b32 v2, 7, v0
        v_mov_b32 v3, 0
        s_mov_b64 exec, 0xffffff
        buffer_store_dword v3, v2, {sr(SWS, 4)}, {sr(sT0)} offen sc1
        s_mov_b64 exec, -1
        s_waitcnt vmcnt(0)
        s_barrier
        s_cmp_ge_u32 {sr(sW)}, 4
        s_cbranch_scc1 Lgate_g
        s_lshl_b32 {sr(sT1)}, {sr(sRB)}, 2
        s_cmp_lg_u32 {sr(sW)}, 0
        s_cselect_b32 {sr(sT1)}, {OOB}, {sr(sT1)}
        v_mov_b32 v2, 1
        s_mov_b64 exec, 1
        buffer_store_dword v2, v3, {sr(SDBG, 4)}, {sr(sT1)} offen sc1
        s_mov_b64 exec, -1
        """)
        from gen2 import attn_setup
        attn_setup(self)
        g("v_and_b32 v2, 15, v0\nv_lshlrev_b32 v2, 2, v2")
        self.poll(2, 3, SDBG, sleep=32)
        self.poll(18, 3, sleep=8)
        g("s_branch Lattn")
        g.label("Lgate_g")
        from gen2 import gemm_setup
        gemm_setup(self)
        g("s_branch Lgemm")

    def h_stores(self, vl16):
        g = self.g
        for b in range(8):
            s2, t = b >> 1, b & 1
            g(f"s_add_u32 {sr(sT0)}, {sr(sHS if s2 < 2 else sSCALE)}, {(t * 54 + s2) * 1024}")
            g.vmem(f"buffer_store_dwordx4 {vr(self.gACC + 8 * b, 4)}, {vr(vl16)}, {sr(SWS, 4)}, {sr(sT0)} offen sc1", "stH")

    def build(self):
        g = self.g
        self.prologue()
        self.phase1()
        self.gate()
        g.vm, g.lg, g.vm_done, g.lg_done = [], [], 0, 0
        from gen2 import phase2
        phase2(self)
        g.label("Lend")
        g("s_endpgm")
        g.label("Lcode_end")
        bad = hazard_check(g.lines)
        for b in bad[:3]:
            print("HAZARD", b, file=sys.stderr)
        head = open("gated_mix__mha_block__dense_activation_squared_relu__prompt.s.ref").read().split("; Override launch")[0]
        txt = head + f"; @launch grid=(256,1,1) block=(512,1,1) lds={LDS_BYTES}\n"
        txt += f""".amdgcn_target "amdgcn-amd-amdhsa--gfx950"
.text
.globl {NAME}
.p2align 8
.type {NAME},@function
{NAME}:
"""
        body = g.text().replace("CODE_BYTES", str(self.o.code_bytes))
        txt += body
        txt += f""".section .rodata,"a"
.p2align 6
.amdhsa_kernel {NAME}
  .amdhsa_next_free_vgpr 256
  .amdhsa_next_free_sgpr 102
  .amdhsa_accum_offset 256
  .amdhsa_group_segment_fixed_size 0
  .amdhsa_kernarg_size 96
  .amdhsa_user_sgpr_count 2
  .amdhsa_user_sgpr_kernarg_segment_ptr 1
  .amdhsa_system_sgpr_workgroup_id_x 1
.end_amdhsa_kernel
"""
        return txt, bad


def options(argv=None):
    p = argparse.ArgumentParser()
    p.add_argument("-o", default="gated_mix__mha_block__dense_activation_squared_relu__prompt.s")
    p.add_argument("--stamps", type=int, default=0)
    p.add_argument("--code_prefetch", type=int, default=1)
    p.add_argument("--order", default="x0,w0,x1,w1/x2,w2/x3,w3/x4,w4/x5,w5/x6,w6/x7,w7/x8,w8/x9,w9/b0,b1/b2,b3/")
    p.add_argument("--rot", type=int, default=1)
    p.add_argument("--aprio", type=int, default=1)
    p.add_argument("--gprio", type=int, default=2)
    p.add_argument("--bprio", type=int, default=2)
    p.add_argument("--wdepth", type=int, default=7)
    p.add_argument("--chk_late", type=int, default=6)
    p.add_argument("--ospin", type=int, default=1)
    p.add_argument("--b3_stage", type=int, default=10)
    p.add_argument("--a_pre", type=int, default=2)
    p.add_argument("--epi_rate", type=int, default=3)
    p.add_argument("--nmaj", type=int, default=7)
    p.add_argument("--gepi", type=int, default=1)
    p.add_argument("--ilv", type=int, default=0)
    p.add_argument("--b1_pos", type=int, default=8)
    p.add_argument("--tags", type=int, default=1)
    p.add_argument("--a_st1", type=int, default=0)
    p.add_argument("--a_split", type=int, default=0)
    p.add_argument("--early", type=int, default=1)
    p.add_argument("--barpos", type=int, default=0)
    p.add_argument("--gchunks", default="1,2,3")
    p.add_argument("--b0_early", type=int, default=1)
    p.add_argument("--b10_early", type=int, default=1)
    p.add_argument("--b0_stage", type=int, default=10)
    p.add_argument("--b1_stage", type=int, default=2)
    p.add_argument("--b2_stage", type=int, default=6)
    p.add_argument("--steps", default="5,5,4")
    p.add_argument("--kv34_early", type=int, default=0)
    p.add_argument("--hfirst", type=int, default=0)
    p.add_argument("--force_fallback", type=int, default=0)
    p.add_argument("--split", default="4,4,4,4")
    p.add_argument("--orot", type=int, default=1)
    p.add_argument("--qsleep", type=int, default=1)
    p.add_argument("--osleep", type=int, default=1)
    p.add_argument("--diag", default="")
    p.add_argument("--diag_role", default="gemm")
    p.add_argument("--tlb", type=int, default=0)
    p.add_argument("--hack", default="")
    p.add_argument("--fine", default="att")
    p.add_argument("--prio", type=int, default=1)
    o = p.parse_args(argv)
    o.code_bytes = 0
    return o


def code_size(txt):
    import subprocess, tempfile, os, re
    d = tempfile.mkdtemp()
    open(d + "/k.s", "w").write(txt)
    r = subprocess.run(["clang", "-x", "assembler", "-target", "amdgcn-amd-amdhsa", "-mcpu=gfx950", "-c", d + "/k.s", "-o", d + "/k.o"],
                       capture_output=True, text=True)
    if r.returncode:
        print(r.stderr[:3000]); raise SystemExit(1)
    r = subprocess.run(["llvm-readelf", "-S", d + "/k.o"], capture_output=True, text=True)
    m = re.search(r"\.text\s+PROGBITS\s+\S+\s+\S+\s+(\S+)", r.stdout)
    return int(m.group(1), 16)


if __name__ == "__main__":
    o = options()
    o.code_bytes = 4096
    txt, _ = Gen(o).build()
    sz = code_size(txt)
    o.code_bytes = (sz - 512) & ~3
    txt, bad = Gen(o).build()
    if bad:
        raise SystemExit("hazards: nothing written")
    open(o.o, "w").write(txt)
    print(f"wrote {o.o}: code {sz} bytes, {len(txt)} chars, hazards {len(bad)}")
```

```python
from asmlib import *
from gen import *

SB = (64, 80, 96, 112)
OA = (32, 48)
QM = (128, 132)
QR = (136, 138)
KM = (140, 144)
KR = (148, 152)
VF = (160, 168)
vIDX, vFL, vQm, vQr, vGa, vL16, vCA, vCD, vKm, vKr, vV0, vV1, vOm, vOr, vG = 17, 18, 19, 20, 21, 22, 23, 24, 28, 29, 30, 31, 4, 5, 10
HX = 40
HXOFF = NREC * REC
sQ, sGb, saKV, saPair, saRec, sO0, sO1, sFO = 76, 77, 78, 79, 96, 97, 52, 53


BARS = (8, 24, 48)


def rec(t):
    return (t % NREC) * REC


M32_FIRST = False


def s_mfmas(n, dst=None):
    qt, t = n & 1, n >> 1
    d = SB[n % 4] if dst is None else dst
    kr = KR[(t >> 1) & 1] + 2 * (t & 1)
    if M32_FIRST:
        return [f"v_mfma_f32_32x32x16_bf16 {vr(d, 16)}, {vr(KM[t & 1], 4)}, {vr(QM[qt], 4)}, 0",
                f"v_mfma_f32_32x32x8_bf16 {vr(d, 16)}, {vr(kr, 2)}, {vr(QR[qt], 2)}, {vr(d, 16)}"]
    return [f"v_mfma_f32_32x32x8_bf16 {vr(d, 16)}, {vr(kr, 2)}, {vr(QR[qt], 2)}, 0",
            f"v_mfma_f32_32x32x16_bf16 {vr(d, 16)}, {vr(KM[t & 1], 4)}, {vr(QM[qt], 4)}, {vr(d, 16)}"]


def pv_mfmas(n):
    qt, t = n & 1, n >> 1
    p, v = SB[n % 4], VF[t & 1]
    return [f"v_smfmac_f32_32x32x32_bf16 {vr(OA[qt], 16)}, {vr(v + 4 * u, 4)}, {vr(p + 8 * u, 8)}, {vr(vIDX)}" for u in range(2)]


def koff_code(g, dst, t0, t1):
    g(f"""
    v_bfe_u32 {vr(t0)}, v0, 3, 2
    v_and_b32 {vr(t1)}, 3, v0
    v_lshl_add_u32 {vr(t0)}, {vr(t0)}, 2, {vr(t1)}
    v_bfe_u32 {vr(t1)}, v0, 2, 1
    v_lshlrev_b32 {vr(t1)}, 3, {vr(t1)}
    v_lshl_add_u32 {vr(dst)}, {vr(t0)}, 4, {vr(t1)}
    """)


def row_max(g, src, dst, tmp):
    g(f"v_max3_f32 {vr(dst)}, {vr(src)}, {vr(src + 1)}, {vr(src + 2)}")
    for r in range(3, 15, 2):
        g(f"v_max3_f32 {vr(dst)}, {vr(dst)}, {vr(src + r)}, {vr(src + r + 1)}")
    g(f"v_max_f32 {vr(dst)}, {vr(dst)}, {vr(src + 15)}")


def both_halves(g, a, b):
    g(f"v_mov_b32 {vr(b)}, {vr(a)}\ns_nop 1\nv_permlane32_swap_b32 {vr(a)}, {vr(b)}")


def kv_scalar(G, sKV, sPair, sRec, first):
    G.g(f"""
    s_lshl_b32 {sr(sPair)}, {sr(sJ)}, 2
    s_add_u32 {sr(sPair)}, {sr(sPair)}, {sr(sTT)}
    s_add_u32 {sr(sPair)}, {sr(sPair)}, {first}
    s_and_b32 {sr(sPair)}, {sr(sPair)}, 31
    s_mul_i32 {sr(sKV)}, {sr(sH)}, {64 * 2560}
    s_add_u32 {sr(sKV)}, {sr(sKV)}, {KVOFF}
    s_mul_i32 {sr(sRec)}, {sr(sTT)}, {2 * REC}
    """)


def kv_columns(G, vtmp, vdst):
    G.g(f"""
    s_mul_i32 {sr(sT0)}, {sr(sH)}, 20
    s_add_u32 {sr(sT1)}, {sr(sT0)}, 19
    s_lshr_b32 {sr(sT0)}, {sr(sT0)}, 6
    s_lshr_b32 {sr(sT1)}, {sr(sT1)}, 6
    s_sub_u32 {sr(sT1)}, {sr(sT1)}, {sr(sT0)}
    v_and_b32 {vr(vdst)}, 1, v0
    v_mul_u32_u24 {vr(vdst)}, {sr(sT1)}, {vr(vdst)}
    v_add_u32 {vr(vdst + 1)}, {sr(sT0)}, {vr(vdst)}
    v_bfe_u32 {vr(vtmp)}, v0, 1, 1
    v_mul_u32_u24 {vr(vtmp)}, 10, {vr(vtmp)}
    v_add3_u32 {vr(vdst)}, {vr(vdst + 1)}, {vr(vtmp)}, 10
    """)


def kv_load(G, vl, sKV, sPair, sRec, groups, tag):
    g = G.g
    for grp in groups:
        g(f"s_mul_i32 {sr(sT1)}, {sr(sPair)}, 5120\ns_add_u32 {sr(sT1)}, {sr(sT1)}, {sr(sKV)}")
        for tau in range(2):
            for q in range(2):
                G.dma(SWS, vl, tau * 2560 + q * 1024, rec(8 * grp + tau) + q * 1024, tag, m0base=sRec, sbase=sT1, flags="sc1")
        g("s_mov_b32 exec_hi, 0")
        for tau in range(2):
            G.dma(SWS, vl, tau * 2560 + 2048, rec(8 * grp + tau) + 2048, tag, m0base=sRec, sbase=sT1, flags="sc1")
        g(f"s_mov_b32 exec_hi, -1\ns_add_u32 {sr(sPair)}, {sr(sPair)}, 4\ns_and_b32 {sr(sPair)}, {sr(sPair)}, 31")


def attn_setup(G, part=None):
    g = G.g
    if part != 1:
        attn_setup0(G)
    if part != 0:
        attn_setup1(G)


def attn_setup0(G):
    g = G.g
    kv_scalar(G, saKV, saPair, saRec, 0)
    kv_columns(G, 3, 64)
    g(f"""
    v_cmp_gt_u32 vcc, 4, v0
    v_lshlrev_b32 {vr(vL16)}, 4, v0
    v_lshrrev_b32 v66, 5, v0
    v_cndmask_b32 v2, v65, v64, vcc
    v_lshlrev_b32 v2, 5, v2
    v_add_u32 v2, {sr(saPair)}, v2
    v_lshlrev_b32 {vr(vFL)}, 7, v2
    v_and_b32 v67, 15, v0
    v_bfe_u32 v68, v0, 4, 1
    v_mul_u32_u24 v2, 1280, v68
    v_lshl_add_u32 {vr(vQr)}, v67, 4, v2
    v_lshl_add_u32 {vr(vQm)}, v66, 8, {vr(vQr)}
    v_lshlrev_b32 v2, 7, v68
    v_lshl_add_u32 {vr(vGa)}, v67, 2, v2
    s_lshl_b32 {sr(sT0)}, {sr(sH)}, 6
    s_lshl_b32 {sr(sT1)}, {sr(sJ)}, 3
    s_lshl_b32 {sr(sT2)}, {sr(sW)}, 1
    s_add_u32 {sr(sT1)}, {sr(sT1)}, {sr(sT2)}
    s_add_u32 {sr(sT0)}, {sr(sT0)}, {sr(sT1)}
    s_mul_i32 {sr(sQ)}, {sr(sT0)}, 1280
    s_add_u32 {sr(sQ)}, {sr(sQ)}, {QOFF}
    s_lshl_b32 {sr(sGb)}, {sr(sT1)}, 7
    s_add_u32 {sr(sGb)}, {sr(sGb)}, {GOFF}
    v_and_b32 v69, 31, v0
    v_mul_u32_u24 v2, 40960, v68
    v_lshl_add_u32 {vr(vOr)}, v67, 4, v2
    v_lshl_add_u32 {vr(vOm)}, v66, 8, {vr(vOr)}
    s_lshr_b32 {sr(sT0)}, {sr(sH)}, 1
    s_and_b32 {sr(sT0)}, {sr(sT0)}, 3
    s_and_b32 {sr(sT1)}, {sr(sH)}, 1
    s_lshl_b32 {sr(sT3)}, {sr(sT0)}, 10
    s_lshl_b32 {sr(sT4)}, {sr(sT1)}, 9
    s_add_u32 {sr(sT3)}, {sr(sT3)}, {sr(sT4)}
    v_add_u32 {vr(vOm)}, {sr(sT3)}, {vr(vOm)}
    s_lshl_b32 {sr(sT3)}, {sr(sT0)}, 8
    s_lshl_b32 {sr(sT4)}, {sr(sT1)}, 3
    s_add_u32 {sr(sT3)}, {sr(sT3)}, {sr(sT4)}
    s_add_u32 {sr(sT3)}, {sr(sT3)}, 4096
    v_add_u32 {vr(vOr)}, {sr(sT3)}, {vr(vOr)}
    s_lshl_b32 {sr(sT2)}, {sr(sJ)}, 2
    s_add_u32 {sr(sT2)}, {sr(sT2)}, {sr(sW)}
    s_mul_i32 {sr(sT3)}, {sr(sT2)}, {4 * 20480}
    s_lshr_b32 {sr(sT4)}, {sr(sH)}, 3
    s_mul_i32 {sr(sT4)}, {sr(sT4)}, 5120
    s_add_u32 {sr(sT3)}, {sr(sT3)}, {sr(sT4)}
    s_add_u32 {sr(sO0)}, {sr(sT3)}, {OOFF}
    s_add_u32 {sr(sO1)}, {sr(sO0)}, 20480
    s_lshl_b32 {sr(sT1)}, {sr(sT2)}, 5
    s_add_u32 {sr(sT1)}, {sr(sT1)}, {sr(sH)}
    s_lshl_b32 {sr(sT1)}, {sr(sT1)}, 7
    s_add_u32 {sr(sFO)}, {sr(sT1)}, {FO}
    """)
    G.const_regs(vCA, vCD)
    koff_code(g, 2, 3, 70)
    g(f"""
    v_lshl_add_u32 {vr(vKm)}, v66, 8, v2
    v_cmp_gt_u32 vcc, 32, v0
    v_add_u32 v2, 1024, v2
    v_mov_b32 v3, {2560 + 256 + 64}
    v_cndmask_b32 {vr(vKr)}, v3, v2, vcc
    v_mov_b32 {vr(vIDX)}, 0xdddddddd
    """)
    for u, dst in enumerate((vV0, vV1)):
        g(f"""
        v_add_u32 v2, {2 * u}, v66
        v_mul_u32_u24 v3, 320, v2
        v_lshl_add_u32 v3, v69, 4, v3
        v_add_u32 v3, 1280, v3
        v_lshlrev_b32 v2, 2, v2
        v_add_u32 v2, 12, v2
        v_and_b32 v2, 15, v2
        v_lshlrev_b32 v2, 4, v2
        v_add_u32 v2, 2560, v2
        v_cmp_gt_u32 vcc, 28, v69
        v_mov_b32 v70, {2560 + (9 if u == 0 else 1) * 16}
        v_mov_b32 v71, {2560 + 256 + (8 if u == 0 else 0) * 16}
        v_cndmask_b32 v2, v2, v70, vcc
        v_cmp_eq_u32 vcc, 20, v69
        s_nop 1
        v_cndmask_b32 v2, v2, v71, vcc
        v_cmp_gt_u32 vcc, 20, v69
        s_nop 1
        v_cndmask_b32 {vr(dst)}, v2, v3, vcc
        """)
    for r in range(32):
        if not HX <= OA[0] + r < HX + 8:
            g(f"v_mov_b32 {vr(OA[0] + r)}, 0")


def attn_setup1(G):
    g, o = G.g, G.o
    g(f"""
    s_lshl_b32 {sr(sT0)}, {sr(sRT)}, 1
    v_lshrrev_b32 v2, 1, v0
    v_min_u32 v2, 14, v2
    v_and_b32 v3, 1, v0
    v_lshl_add_u32 v2, v2, 6, v3
    v_add_u32 v2, {sr(sT0)}, v2
    s_lshl_b32 {sr(sT0)}, {sr(sJ)}, 3
    s_add_u32 {sr(sT0)}, {sr(sT0)}, 896
    v_cmp_gt_u32 vcc, 32, v0
    v_and_b32 v3, 7, v0
    v_add_u32 v3, {sr(sT0)}, v3
    v_cndmask_b32 v2, v3, v2, vcc
    v_subrev_u32 v3, 40, v0
    v_lshlrev_b32 v3, 2, v3
    v_add_u32 v3, {sr(sTT)}, v3
    s_mul_i32 {sr(sT0)}, {sr(sTT)}, 5
    v_min_u32 v1, 58, v0
    v_cmp_gt_u32 vcc, 54, v0
    v_add_u32 v1, {sr(sT0)}, v1
    s_lshr_b32 {sr(sT0)}, {sr(sCP)}, 2
    v_cndmask_b32 v3, v1, v3, vcc
    s_sub_u32 {sr(sT0)}, 255, {sr(sT0)}
    s_lshl_b32 {sr(sT0)}, {sr(sT0)}, 2
    s_and_b32 {sr(sT1)}, {sr(sCP)}, 3
    s_add_u32 {sr(sT0)}, {sr(sT0)}, {sr(sT1)}
    v_lshlrev_b32 v3, 3, v3
    v_cmp_gt_u32 vcc, 40, v0
    v_sub_u32 v3, {sr(sT0)}, v3
    s_nop 0
    v_cndmask_b32 v2, v3, v2, vcc
    v_lshlrev_b32 v2, 7, v2
    v_add_u32 {vr(HX + 4)}, {FH}, v2
    v_lshrrev_b32 v2, 2, v0
    v_mul_u32_u24 v2, 160, v2
    v_and_b32 v3, 3, v0
    v_lshl_add_u32 v2, v3, 3, v2
    s_add_u32 {sr(sT0)}, {sr(saRec)}, {40 * REC}
    v_add_u32 {vr(HX + 5)}, {sr(sT0)}, v2
    s_add_u32 {sr(sT1)}, {sr(sTT)}, {sr(sCP) if o.orot else 0}
    s_and_b32 {sr(sT1)}, {sr(sT1)}, 3
    s_lshl_b32 {sr(sT1)}, {sr(sT1)}, 4
    s_lshl_b32 {sr(sT0)}, {sr(sRT)}, 6
    s_add_u32 {sr(sT0)}, {sr(sT0)}, {sr(sT1)}
    v_and_b32 v2, 15, v0
    v_add_u32 v2, {sr(sT0)}, v2
    v_mul_u32_u24 v2, 1280, v2
    v_lshrrev_b32 v3, 4, v0
    v_lshl_add_u32 v2, v3, 3, v2
    s_mul_i32 {sr(sT0)}, {sr(sCP)}, 160
    v_add_u32 {vr(HX + 7)}, {sr(sT0)}, v2
    s_mul_i32 {sr(sT0)}, {sr(sTT)}, 20480
    s_add_u32 {sr(sT0)}, {sr(sT0)}, {REDOFF}
    v_add_u32 {vr(HX + 6)}, {sr(sT0)}, {vr(vL16)}
    s_lshl_b32 {sr(sT0)}, {sr(sRT)}, 5
    s_lshl_b32 {sr(sT1)}, {sr(sTT)}, 3
    s_add_u32 {sr(sT0)}, {sr(sT0)}, {sr(sT1)}
    s_add_u32 {sr(sT0)}, {sr(sT0)}, {FO // 128}
    v_and_b32 v2, 7, v0
    v_add_u32 v2, {sr(sT0)}, v2
    v_lshlrev_b32 {vr(HX)}, 7, v2
    """)
    for sg in range(3):
        g(f"""
        s_add_u32 {sr(sT0)}, {sr(sTT)}, {3 - sg}
        s_and_b32 {sr(sT0)}, {sr(sT0)}, 3
        s_mul_i32 {sr(sT0)}, {sr(sT0)}, 20480
        s_add_u32 {sr(sT0)}, {sr(sT0)}, {REDOFF + sg * 5120}
        v_add_u32 {vr(HX + 1 + sg)}, {sr(sT0)}, {vr(vL16)}
        """)
    g(f"""
    s_lshl_b32 {sr(sT0)}, {sr(sTT)}, 11
    s_add_u32 {sr(sT0)}, {sr(sT0)}, {HXOFF}
    v_add_u32 v1, {sr(sT0)}, {vr(vL16)}
    """)


def attention(G):
    g, o = G.g, G.o
    split = [int(x) for x in o.split.split(",")]
    global M32_FIRST
    M32_FIRST = bool(o.m32first)
    g(";BLOCK attn")
    g.label("Lattn0")
    g("s_waitcnt vmcnt(1)\ns_barrier")
    g.label("Lattn")
    G.const_write(vCA, vCD, [0, 1, 2])
    g(f"v_add_u32 v6, {sr(saRec)}, {vr(vKm)}\nv_add_u32 v7, {sr(saRec)}, {vr(vKr)}\nv_add_u32 {vr(vCA)}, {24 * REC}, {vr(vCA)}")
    G.poll(vFL, 3, sleep=o.qsleep)
    G.stamp(4)
    for u in range(2):
        g.vmem(f"buffer_load_dwordx4 {vr(QM[u], 4)}, {vr(vQm)}, {sr(SWS, 4)}, {sr(sQ)} offen offset:{u * 512} sc1", "q")
    g.vmem(f"buffer_load_dwordx4 {vr(QR[0], 4)}, {vr(vQr)}, {sr(SWS, 4)}, {sr(sQ)} offen offset:1024 sc1", "q")
    kv_load(G, vL16, saKV, saPair, saRec, [0], "kv0")
    g.wait(vm="q")
    for r in range(2):
        g(f"v_swap_b32 {vr(QM[0] + 2 + r)}, {vr(QM[1] + r)}")
    g("s_mov_b32 exec_lo, 0")
    for r in range(4):
        g(f"v_mov_b32 {vr(QR[0] + r)}, 0")
    g("s_mov_b32 exec_lo, -1")
    g.wait(vm="all", lg="all")
    g.lds(f"ds_read2st64_b64 {vr(KR[0], 4)}, v7 offset0:0 offset1:6", "k0")
    g.lds(f"ds_read2st64_b64 {vr(KM[0], 4)}, v6 offset0:0 offset1:1", "k0")
    g.wait(lg="all")
    a0, a1 = s_mfmas(0), s_mfmas(1)
    g(a0[0]); g(a1[0]); g(a0[1]); g(a1[1])
    if o.b0_early:
        g("s_barrier")
        G.stamp(5)

    base = {vKm: 0, vKr: 0, vV0: 0, vV1: 0}

    def rebase(reg, off, span, lim):
        if not (0 <= off - base[reg] and off + span - base[reg] <= lim):
            g(f"v_add_u32 {vr(reg)}, {(off - base[reg]) & 0xFFFFFFFF}, {vr(reg)}")
            base[reg] = off
        return off - base[reg]

    def rdKm(t):
        b = rebase(vKm, rec(t), 512, 255 * 512) // 512
        g.lds(f"ds_read2st64_b64 {vr(KM[t & 1], 4)}, {vr(vKm)} offset0:{b} offset1:{b + 1}", ("km", t))

    def rdKr(t):
        b = rebase(vKr, rec(t), REC, 255 * 512) // 512
        g.lds(f"ds_read2st64_b64 {vr(KR[(t >> 1) & 1], 4)}, {vr(vKr)} offset0:{b} offset1:{b + 6}", ("kr", t))

    def rdV(t, u):
        r = (vV0, vV1)[u]
        g.lds(f"ds_read_b128 {vr(VF[t & 1] + 4 * u, 4)}, {vr(r)} offset:{rebase(r, rec(t), 0, 65535)}", ("v", t))

    def after_b0():
        rdKr(0); rdKm(0); rdKm(1)
        G.const_write(vCA, vCD, [0, 1, 2])
        for k in range(2):
            g.lds(f"ds_write_b128 v1, {vr(HX + 4 * k, 4)} offset:{1024 * k}", "hx")
        g.lds(f"ds_write_b64 v1, {vr(vOm, 2)} offset:8192", "hx")

    if o.b0_early:
        after_b0()
        g("s_nop 1")
    else:
        g("s_nop 10")
    for qt in range(2):
        row_max(g, SB[qt], 6 + 2 * qt, None)
    for qt in range(2):
        both_halves(g, 6 + 2 * qt, 7 + 2 * qt)
    for qt in range(2):
        g(f"v_max_f32 {vr(6 + 2 * qt)}, {vr(6 + 2 * qt)}, {vr(7 + 2 * qt)}")
    g("s_mov_b32 exec_lo, 0")
    for qt in range(2):
        g(f"v_cvt_pk_bf16_f32 {vr(QR[qt])}, -{vr(6 + 2 * qt)}, 0")
    g("s_mov_b32 exec_lo, -1")
    if not o.b0_early:
        g("s_barrier")
        G.stamp(5)
        after_b0()
    g(f"s_setprio {o.prio}")
    g.wait(lg=("km", 0))
    g(a0[0]); g(a0[1])
    g.wait(lg="hx")
    for r in range(8):
        g(f"v_mov_b32 {vr(HX + r)}, 0")
    g("s_nop 1\ns_cmp_lg_u32 0, 0\n;PADBEGIN at")
    for n in range(128):
        qt, t = n & 1, n >> 1
        cur = SB[n % 4]
        m = (s_mfmas(n + 1) if n < 127 else [None, None]) + (pv_mfmas(n - 1) if n > 0 else [None, None])
        ex = [[], [], [], []]
        if qt == 0:
            ex[1].append(lambda: rdV(t, 0))
            ex[2].append(lambda: rdV(t, 1))
            if t + 1 < 64:
                ex[3].append(lambda: g.wait(lg=[("km", t + 1), ("kr", (t + 1) & ~1)]))
        else:
            ex[1].append(lambda: g.wait(lg=("v", t)))
            if t + 2 < 64:
                if t + 2 in BARS:
                    def bar():
                        g("s_barrier")
                        if t + 2 == 48:
                            for q2 in range(2):
                                g.vmem(f"buffer_load_dword {vr(vG + q2)}, {vr(vGa)}, {sr(SWS, 4)}, {sr(sGb)} offen offset:{q2 * 64} sc1", "g")
                    ex[1].append(bar)
                if (t + 2) % 8 == 0 and o.fine == "att":
                    ex[1].append(lambda: G.stamp(8 + (t + 2) // 8))
                ex[1].append(lambda: rdKm(t + 2))
                if t % 2 == 0:
                    ex[2].append(lambda: rdKr(t + 2))
        if M32_FIRST:
            ex[0], ex[1] = ex[1], []
        e = 0
        for i in range(4):
            if m[i]:
                g(m[i])
            for f in ex[i]:
                f()
            for _ in range(split[i]):
                g(f"v_exp_f32 {vr(cur + e)}, {vr(cur + e)}"); e += 1
    g(";PADEND")
    m = pv_mfmas(127)
    g(m[0]); g("s_nop 0"); g(m[1])
    g("s_nop 0")
    g.wait(vm="g")
    G.stamp(6)
    g("v_mov_b32 v8, 0\nv_mov_b32 v9, 0\ns_nop 1")
    for qt in range(2):
        g(f"v_mov_b32 {vr(12 + 2 * qt)}, {vr(OA[qt] + 8)}\nv_mov_b32 {vr(13 + 2 * qt)}, {vr(OA[qt] + 8)}")
        for r in range(0, 12, 2):
            g(f"v_pk_fma_f32 v[8:9], {vr(OA[qt] + r, 2)}, 0, v[8:9] op_sel_hi:[1,0,1]")
        g(f"v_permlane32_swap_b32 {vr(12 + 2 * qt)}, {vr(13 + 2 * qt)}")
    g(f"""
    v_add_f32 v8, v8, v9
    v_min_f32 v2, v13, v15
    v_max_f32 v3, v13, v15
    v_add_f32 v2, v2, v8
    v_cmp_nle_f32 vcc, {f32hex(2.0 ** -30)}, v2
    s_mov_b64 {sr(sA + 2, 2)}, vcc
    v_cmp_nge_f32 vcc, {f32hex(2.0 ** 60)}, v3
    s_or_b64 vcc, vcc, {sr(sA + 2, 2)}
    """)
    g("s_branch Lfallback" if o.force_fallback else "s_cbranch_vccnz Lfallback")
    g.label("Lnorm")
    for qt in range(2):
        g(f"v_rcp_f32 {vr(12 + 2 * qt)}, {vr(13 + 2 * qt)}")
    g("s_nop 0")
    for qt in range(2):
        g(f"v_mul_f32 {vr(12 + 2 * qt)}, {vr(12 + 2 * qt)}, {vr(vG + qt)}")
    for qt in range(2):
        a = OA[qt]
        for r in range(0, 12, 2):
            g(f"v_pk_mul_f32 {vr(a + r, 2)}, {vr(a + r, 2)}, {vr(12 + 2 * qt, 2)} op_sel_hi:[1,0]")
        for q in range(6):
            g(f"v_cvt_pk_bf16_f32 {vr(a + q)}, {vr(a + 2 * q)}, {vr(a + 2 * q + 1)}")
        g(f"buffer_store_dwordx4 {vr(a, 4)}, {vr(vOm)}, {sr(SWS, 4)}, {sr((sO0, sO1)[qt])} offen sc1")
    g("s_mov_b32 exec_hi, 0")
    for qt in range(2):
        g(f"buffer_store_dwordx2 {vr(OA[qt] + 4, 2)}, {vr(vOr)}, {sr(SWS, 4)}, {sr((sO0, sO1)[qt])} offen sc1")
    g("s_mov_b32 exec_hi, -1\ns_barrier")
    if not o.tags:
        g("s_waitcnt vmcnt(0)")
        G.set_flag(f"s_mov_b32 {sr(sT1)}, {sr(sFO)}", 2, 3)
    G.stamp(7)
    G.dump_stamps()
    g("s_endpgm")
    fallback(G)


def fallback(G):
    g = G.g
    sK, sN = sA, sA + 1
    vMx = (20, 22)
    g.label("Lfallback")
    koff_code(g, 24, 2, 3)
    g(f"""
    v_lshrrev_b32 v6, 5, v0
    v_and_b32 v13, 31, v0
    v_lshl_add_u32 v25, v6, 8, v24
    v_mul_u32_u24 v26, 320, v6
    v_lshl_add_u32 v26, v13, 4, v26
    v_cmp_gt_u32 vcc, 20, v13
    s_mov_b64 {sr(sA + 4, 2)}, vcc
    v_cmp_eq_u32 vcc, 20, v13
    v_mov_b32 v2, 0x3f803f80
    v_mov_b32 v20, 0xff800000
    v_mov_b32 v22, 0xff800000
    """)
    for r in range(8):
        g(f"v_cndmask_b32 {vr(VF[0] + r)}, 0, v2, vcc")
    g("s_mov_b32 exec_lo, 0")
    for r in range(4):
        g(f"v_mov_b32 {vr(QR[0] + r)}, 0")
    g("s_mov_b32 exec_lo, -1")
    for r in range(32):
        g(f"v_mov_b32 {vr(OA[0] + r)}, 0")
    for ps in range(2):
        L = G.lab("fb")
        g(f"s_mul_i32 {sr(sK)}, {sr(sH)}, {64 * 2560}\ns_add_u32 {sr(sK)}, {sr(sK)}, {KVOFF}\ns_mov_b32 {sr(sN)}, 64")
        g.label(L)
        for u in range(2):
            g(f"buffer_load_dwordx2 {vr(KM[0] + 2 * u, 2)}, v25, {sr(SWS, 4)}, {sr(sK)} offen offset:{512 * u} sc1")
        g(f"buffer_load_dwordx2 {vr(KR[0], 2)}, v24, {sr(SWS, 4)}, {sr(sK)} offen offset:1024 sc1")
        if ps:
            g(f"s_mov_b64 exec, {sr(sA + 4, 2)}")
            for u in range(2):
                g(f"buffer_load_dwordx4 {vr(VF[0] + 4 * u, 4)}, v26, {sr(SWS, 4)}, {sr(sK)} offen offset:{1280 + 640 * u} sc1")
            g("s_mov_b64 exec, -1")
        g("s_waitcnt vmcnt(0)")
        a0, a1 = s_mfmas(0), s_mfmas(1)
        g(a0[0]); g(a1[0]); g(a0[1]); g(a1[1])
        g("s_nop 11")
        for qt in range(2):
            if ps == 0:
                row_max(g, SB[qt], 2, None)
                g(f"v_max_f32 {vr(vMx[qt])}, {vr(vMx[qt])}, v2")
            else:
                for r in range(16):
                    g(f"v_sub_f32 {vr(SB[qt] + r)}, {vr(SB[qt] + r)}, {vr(vMx[qt])}")
                for r in range(16):
                    g(f"v_exp_f32 {vr(SB[qt] + r)}, {vr(SB[qt] + r)}")
                g("s_nop 1")
                for x in pv_mfmas(qt):
                    g(x)
        g(f"s_add_u32 {sr(sK)}, {sr(sK)}, 2560\ns_sub_u32 {sr(sN)}, {sr(sN)}, 1\ns_cmp_lg_u32 {sr(sN)}, 0\ns_cbranch_scc1 {L}")
        if ps == 0:
            for qt in range(2):
                both_halves(g, vMx[qt], vMx[qt] + 1)
                g(f"v_max_f32 {vr(vMx[qt])}, {vr(vMx[qt])}, {vr(vMx[qt] + 1)}")
    g("s_nop 11")
    for qt in range(2):
        g(f"v_mov_b32 {vr(12 + 2 * qt)}, {vr(OA[qt] + 8)}")
        both_halves(g, 12 + 2 * qt, 13 + 2 * qt)
    g("s_branch Lnorm")


GA, BI = 64, 4
RING = [r for r in range(24, 64, 4)] + [r for r in range(144, 248, 4)]
vL, vLb, vGG = 248, 249, 252
sWp, sgKV, sgPair, sgRec, sHb = sTT, 73, 74, 75, 76
sPa, sPb, sPc, sPd, sPdst, sPcol, sOwn, sFH = 96, 97, 98, 99, 48, 49, 50, 51
SPK = SCODE
vgFL, vgPK = 11, 3


def gemm_setup(G, part=None):
    if part != 1:
        gemm_setup0(G)
    if part != 0:
        gemm_setup1(G)


def gemm_setup0(G):
    g, o = G.g, G.o
    kv_scalar(G, sgKV, sgPair, sgRec, 4)
    kv_columns(G, 28, 30)
    g(f"""
    v_lshrrev_b32 v28, 2, v0
    v_min_u32 v28, 6, v28
    v_lshlrev_b32 v28, 2, v28
    v_add_u32 v28, {sr(sgPair)}, v28
    v_and_b32 v28, 31, v28
    v_lshl_add_u32 v28, v30, 5, v28
    v_lshlrev_b32 {vr(vgFL)}, 7, v28
    v_mul_u32_u24 v28, 26, v0
    v_lshrrev_b32 v28, 8, v28
    v_mul_u32_u24 v28, {1280 - 160}, v28
    v_lshl_add_u32 {vr(vgPK)}, v0, 4, v28
    s_add_u32 {sr(sOwn)}, {sr(sWp)}, {sr(sCP) if o.orot else 0}
    s_and_b32 {sr(sOwn)}, {sr(sOwn)}, 3
    """)
    for sg in range(4):
        g(f"""
        s_add_u32 {sr(sT0)}, {sr(sOwn)}, {1 + sg}
        s_and_b32 {sr(sT0)}, {sr(sT0)}, 3
        s_lshl_b32 {sr(sT1)}, {sr(sRT)}, 2
        s_add_u32 {sr(sHb + sg)}, {sr(sT0)}, {sr(sT1)}
        """)


def gemm_setup1(G):
    g = G.g
    LW, LJ = G.lab("pw2"), G.lab("pj")
    g(f"""
    s_lshl_b32 {sr(sT0)}, {sr(sCS)}, 4
    s_add_u32 {sr(sT0)}, {sr(sT0)}, {sr(sRB)}
    s_lshl_b32 {sr(sFH)}, {sr(sT0)}, 2
    s_add_u32 {sr(sFH)}, {sr(sFH)}, {sr(sWp)}
    s_lshl_b32 {sr(sFH)}, {sr(sFH)}, 7
    s_add_u32 {sr(sFH)}, {sr(sFH)}, {FH}
    s_sub_u32 {sr(sT0)}, 255, {sr(sT0)}
    s_lshr_b32 {sr(sT1)}, {sr(sT0)}, 1
    s_and_b32 {sr(sT0)}, {sr(sT0)}, 1
    s_lshl_b32 {sr(sT0)}, {sr(sT0)}, 2
    s_add_u32 {sr(sT0)}, {sr(sT0)}, {sr(sWp)}
    s_mul_i32 {sr(sPdst)}, {sr(sT1)}, 40960
    s_mul_i32 {sr(sT2)}, {sr(sT0)}, 5120
    s_add_u32 {sr(sPdst)}, {sr(sPdst)}, {sr(sT2)}
    s_add_u32 {sr(sPdst)}, {sr(sPdst)}, {WPOFF}
    s_mul_i32 {sr(sPcol)}, {sr(sT0)}, 160
    s_mov_b32 {sr(SPK + 3)}, 0x20000
    s_cmp_lt_u32 {sr(sT1)}, 54
    s_cbranch_scc1 {LW}
    s_mov_b64 {sr(SPK, 2)}, {sr(SWO, 2)}
    s_mov_b32 {sr(SPK + 2)}, {640 * 1280}
    s_cmp_ge_u32 {sr(sT1)}, 74
    s_cselect_b32 {sr(sPdst)}, {OOB}, {sr(sPdst)}
    s_sub_u32 {sr(sT1)}, {sr(sT1)}, 54
    s_mul_i32 {sr(sT2)}, {sr(sT1)}, 205
    s_lshr_b32 {sr(sT2)}, {sr(sT2)}, 10
    s_mul_i32 {sr(sT3)}, {sr(sT2)}, 5
    s_sub_u32 {sr(sT3)}, {sr(sT1)}, {sr(sT3)}
    s_mul_i32 {sr(sT2)}, {sr(sT2)}, 160
    s_mul_i32 {sr(sT4)}, {sr(sT3)}, 40
    s_cmp_eq_u32 {sr(sT3)}, 4
    s_cselect_b32 {sr(sT4)}, 16, {sr(sT4)}
    s_cselect_b32 {sr(sPa)}, 20, 8
    s_cselect_b32 {sr(sPb)}, 80, 20
    s_cselect_b32 {sr(sPc)}, 40, 4
    s_add_u32 {sr(sPd)}, {sr(sT2)}, {sr(sT4)}
    s_branch {LJ}
    """)
    g.label(LW)
    g(f"""
    s_mov_b64 {sr(SPK, 2)}, {sr(SW2, 2)}
    s_mov_b32 {sr(SPK + 2)}, {1728 * 1280}
    s_mov_b32 {sr(sPa)}, 16
    s_mov_b32 {sr(sPb)}, 8
    s_mov_b32 {sr(sPc)}, 4
    s_lshl_b32 {sr(sPd)}, {sr(sT1)}, 5
    """)
    g.label(LJ)
    for r in (sPa, sPb, sPc, sPd):
        g(f"s_mul_i32 {sr(r)}, {sr(r)}, 1280")
    g(f"""
    s_add_u32 {sr(sPd)}, {sr(sPd)}, {sr(sPcol)}
    s_lshl_b32 {sr(sT0)}, {sr(sRB)}, 3
    s_lshl_b32 {sr(sT1)}, {sr(sTT)}, 1
    s_add_u32 {sr(sT0)}, {sr(sT0)}, {sr(sT1)}
    s_mul_i32 {sr(sT0)}, {sr(sT0)}, 54
    s_lshl_b32 {sr(sT1)}, {sr(sCS)}, 2
    s_add_u32 {sr(sT0)}, {sr(sT0)}, {sr(sT1)}
    s_lshl_b32 {sr(sT0)}, {sr(sT0)}, 10
    s_add_u32 {sr(sT0)}, {sr(sT0)}, {HOFF}
    s_cmp_ge_u32 {sr(sCS)}, 14
    s_cselect_b32 {sr(sHS)}, {OOB}, {sr(sT0)}
    s_cmp_ge_u32 {sr(sCS)}, 13
    s_cselect_b32 {sr(sSCALE)}, {OOB}, {sr(sT0)}
    """)


def gemm(G):
    g, o = G.g, G.o
    steps = [int(x) for x in o.steps.split(",")]
    assert sum(steps) == 14 and len(steps) == 3 and steps[2] <= 4
    sWb, sWl, sWo, sOb = sA, sA + 1, sA + 2, SB1
    kv = lambda groups, tag: kv_load(G, vL, sgKV, sgPair, sgRec, groups, tag)
    g.label("Lgemm")
    vFO, vRR, vFH, vTR, vRW, vOut, vB2, vZ = 0, 1, 4, 5, 250, 251, 8, 10
    g(f"""
    v_lshlrev_b32 {vr(vL)}, 4, v0
    v_add_u32 {vr(vLb)}, 4096, {vr(vL)}
    s_lshl_b32 {sr(sT0)}, {sr(sTT)}, 11
    s_add_u32 {sr(sT0)}, {sr(sT0)}, {HXOFF}
    v_add_u32 v12, {sr(sT0)}, {vr(vL)}
    v_and_b32 v13, 15, v0
    v_lshlrev_b32 v13, 2, v13
    v_mov_b32 v14, 0
    v_mov_b32 v15, 1
    v_mov_b32 v16, -1
    v_mov_b32 v17, -1
    v_mov_b32 v18, -1
    v_mov_b32 v19, -1
    s_barrier
    """)
    G.poll(vgFL, 2, sleep=2)
    G.stamp(4)
    kv([1, 2], "kv1")
    g("s_mov_b32 exec_hi, 0xff")
    for q in range(8):
        g(f"s_mov_b32 {sr(sT1)}, {sr(sPd)}")
        for bit, r in ((4, sPa), (2, sPb), (1, sPc)):
            if q & bit:
                g(f"s_add_u32 {sr(sT1)}, {sr(sT1)}, {sr(r)}")
        G.dma(SPK, vgPK, 0, (40 + (q >> 2)) * REC + (q & 3) * 640, "pk", m0base=sgRec, sbase=sT1)
    g("s_mov_b32 exec_hi, -1")
    g.wait(vm="kv1")
    if o.kv34_early:
        kv([3, 4], "kv2")
    g("s_barrier")
    g.lds("ds_read_b128 v[4:7], v12 offset:1024", "hx")
    g.lds("ds_read_b128 v[0:3], v12", "hx")
    if not o.kv34_early:
        kv([3, 4], "kv2")
    g.wait(vm="pk", lg="hx")
    for n in range(5):
        for u in range(2):
            g.lds(f"ds_read_b64_tr_b16 {vr(96 + 4 * n + 2 * u, 2)}, {vr(vTR)} offset:{u * REC + n * 32}", "pr")
    g.lds(f"ds_read_b64 {vr(vRW, 2)}, v12 offset:1032", "hx")
    g.lds(f"ds_read_b64 v[6:7], v12 offset:8192", "hx")
    g.wait(lg="all")
    kv([5], "kv2")
    G.h_stores(vL)
    for n in range(5):
        g.vmem(f"buffer_store_dwordx4 {vr(96 + 4 * n, 4)}, {vr(vL if n < 4 else vLb)}, {sr(SWS, 4)}, {sr(sPdst)} offen offset:{(n % 4) * 1024} sc1", "ps")
    for sg in range(4):
        g(f"s_lshl_b32 {sr(sT0)}, {sr(sHb + sg)}, 6\ns_add_u32 {sr(sPa + sg)}, {sr(sT0)}, {GOFF}")
        g(f"""
        s_mul_i32 {sr(sT0)}, {sr(sHb + sg)}, 20480
        s_mul_i32 {sr(sT1)}, {sr(sWp)}, 5120
        s_add_u32 {sr(sT0)}, {sr(sT0)}, {sr(sT1)}
        s_add_u32 {sr(sOb + sg)}, {sr(sT0)}, {OOFF}
        s_mul_i32 {sr(sHb + sg)}, {sr(sHb + sg)}, 54
        s_add_u32 {sr(sHb + sg)}, {sr(sHb + sg)}, {sr(sWp)}
        s_lshl_b32 {sr(sHb + sg)}, {sr(sHb + sg)}, 10
        s_add_u32 {sr(sHb + sg)}, {sr(sHb + sg)}, {HOFF}
        """)
    g(f"""
    s_mul_i32 {sr(sWb)}, {sr(sWp)}, 40960
    s_mul_i32 {sr(sT0)}, {sr(sCP)}, 5120
    s_add_u32 {sr(sWb)}, {sr(sWb)}, {sr(sT0)}
    s_add_u32 {sr(sWb)}, {sr(sWb)}, {WPOFF}
    s_mul_i32 {sr(sWo)}, {sr(sWp)}, {4 * 40960}
    s_add_u32 {sr(sWo)}, {sr(sWo)}, {sr(sWb)}
    s_add_u32 {sr(sWo)}, {sr(sWo)}, {54 * 40960}
    s_mul_i32 {sr(sWl)}, {sr(sWp)}, 20480
    """)
    g.wait(vm="all")
    g("s_mov_b64 exec, 1")
    g.vmem(f"buffer_store_dword v15, v14, {sr(SWS, 4)}, {sr(sFH)} offen sc1", "flag")
    g("s_mov_b64 exec, -1")
    G.stamp(11 if o.fine != "B" else 99)
    if o.tags:
        g(f"""
        s_lshl_b32 {sr(sT2)}, {sr(sJ)}, 2
        s_add_u32 {sr(sT2)}, {sr(sT2)}, {sr(sTT)}
        s_mul_i32 {sr(sT3)}, {sr(sT2)}, {4 * 20480}
        s_lshr_b32 {sr(sT4)}, {sr(sH)}, 3
        s_mul_i32 {sr(sT4)}, {sr(sT4)}, 5120
        s_add_u32 {sr(sT3)}, {sr(sT3)}, {sr(sT4)}
        s_add_u32 {sr(sT3)}, {sr(sT3)}, {OOFF}
        s_add_u32 {sr(sT4)}, {sr(sT3)}, 20480
        s_lshl_b32 {sr(sT2)}, {sr(sT2)}, 5
        s_add_u32 {sr(sT2)}, {sr(sT2)}, {sr(sH)}
        s_lshl_b32 {sr(sT2)}, {sr(sT2)}, 7
        s_add_u32 {sr(sFH)}, {sr(sT2)}, {FO}
        """)
        for r in (sT3, sT4):
            g.vmem(f"buffer_store_dwordx4 v[16:19], v6, {sr(SWS, 4)}, {sr(r)} offen sc1", "mark")
        g("s_mov_b32 exec_hi, 0")
        for r in (sT3, sT4):
            g.vmem(f"buffer_store_dwordx2 v[16:17], v7, {sr(SWS, 4)}, {sr(r)} offen sc1", "mark")
        g("s_mov_b32 exec_hi, -1")
    g("s_barrier")

    def frag(i, k):
        return RING[(i % 4) * 9 + k]

    def loads(i):
        L = []
        for n in range(5):
            L.append(lambda n=n: g.vmem(f"buffer_load_dwordx4 {vr(frag(i, n), 4)}, {vr(vL if n < 4 else vLb)}, {sr(SWS, 4)}, {sr(sWb)} offen offset:{(n % 4) * 1024} sc1", ("f", i)))
        for sg in range(4):
            def h(sg=sg):
                g.vmem(f"buffer_load_dwordx4 {vr(frag(i, 5 + sg), 4)}, {vr(vL)}, {sr(SWS, 4)}, {sr(sHb + sg)} offen sc1", ("f", i))
                g(f"s_add_u32 {sr(sHb + sg)}, {sr(sHb + sg)}, 4096")
                if sg == 3:
                    g(f"s_add_u32 {sr(sWb)}, {sr(sWb)}, {4 * 40960}")
            L.append(h)
        return L

    issued = [0]
    extra = []

    def step(i):
        pend = []
        if issued[0] < 14 and issued[0] <= i + 3:
            pend = loads(issued[0]); issued[0] += 1
        g.wait(vm=("f", i))
        L = None
        if i == 13:
            L = G.lab("skip")
            g(f"s_cmp_ge_u32 {sr(sWp)}, 2\ns_cbranch_scc1 {L}")
        k = 0
        for n in range(5):
            for sg in range(4):
                a = GA + 20 * sg + 4 * n
                c = "0" if i == 0 else vr(a, 4)
                if "nomfma" in o.hack and 0 < i < 14 - steps[2]:
                    g("s_nop 9")
                else:
                    g(f"v_mfma_f32_16x16x32_bf16 {vr(a, 4)}, {vr(frag(i, n), 4)}, {vr(frag(i, 5 + sg), 4)}, {c}")
                k += 1
                if k % 2 == 1 and pend:
                    n0 = len(g.lines)
                    pend.pop(0)()
                    if "noload" in o.hack:
                        del g.lines[n0:]
                elif k % 4 == 2 and extra and i < 13:
                    extra.pop(0)()
        if L:
            g.label(L)

    G.poll(vFH, 12, sleep=4)
    G.stamp(5)
    if o.tags:
        g("s_mov_b64 exec, 1")
        g.vmem(f"buffer_store_dword v15, v14, {sr(SWS, 4)}, {sr(sFH)} offen sc1", "flag")
        g("s_mov_b64 exec, -1")
    for i in range(o.ring0):
        for f in loads(i):
            f()
        issued[0] += 1
    done = 0
    for _ in range(steps[0]):
        step(done); done += 1
        if done == 1:
            while issued[0] < 4:
                for f in loads(issued[0]):
                    f()
                issued[0] += 1
        if done == 2:
            kv([6, 7], "kv3")
            for sg in range(4):
                g.vmem(f"buffer_load_dword {vr(vGG + sg)}, v13, {sr(SWS, 4)}, {sr(sPa + sg)} offen sc1", "g")
    g.wait(vm="kv3")
    g("s_barrier")
    for s in range(4):
        for n in range(5):
            extra.append(lambda s=s, n=n: G.dma(SWS, vL, s * 40960 + n * 1024, REDOFF + s * 5120 + n * 1024, "wo", m0base=sWl, sbase=sWo, flags="sc1"))

    def wo4(n):
        g(f"s_add_u32 {sr(sT0)}, {sr(sWo)}, {4 * 40960 + n * 1024}")
        g.vmem(f"buffer_load_dwordx4 {vr(BI + 4 * n, 4)}, {vr(vL)}, {sr(SWS, 4)}, {sr(sT0)} offen sc1", "wo")
    assert steps[0] >= 2
    extra.extend(lambda n=n: wo4(n) for n in range(5))
    for _ in range(steps[1]):
        step(done); done += 1
    while issued[0] < 14:
        for f in loads(issued[0]):
            f()
        issued[0] += 1
    while extra:
        extra.pop(0)()
    g(f"s_mul_i32 {sr(sT1)}, {sr(sCP)}, 160\ns_lshl_b32 {sr(sT2)}, {sr(sTT)}, 11\ns_mov_b64 exec, 0x3ff")
    G.dma(SB2, vL, 0, HXOFF + 9216, "b2", m0base=sT2, sbase=sT1)
    g("s_mov_b64 exec, -1")
    if o.tags:
        G.poll(vFO, vLb, sleep=4)
        g(f"v_add_u32 {vr(vLb)}, 4096, {vr(vL)}")
    g("s_branch Ltail\n;BLOCK tail")
    g.label("Ltail")
    G.stamp(12 if o.fine != "B" else 99)
    g("s_barrier")
    for _ in range(steps[2]):
        step(done); done += 1
    G.stamp(6)
    wof = lambda s, n: (144 + 20 * s if s < 4 else BI) + 4 * n
    of = lambda sg, s: (24, 44, 224)[sg % 3] + 4 * s

    def oload(sg):
        for s in range(5):
            g.vmem(f"buffer_load_dwordx4 {vr(of(sg, s), 4)}, {vr(vL if s < 4 else vLb)}, {sr(SWS, 4)}, {sr(sOb + sg)} offen offset:{(s % 4) * 1024} sc1", ("o", sg, s))

    g.wait(vm="all")
    first = list(range(o.ospin))
    if o.tags:
        for sg in first:
            oload(sg)
    g(f"""
    v_lshrrev_b32 v246, 8, {vr(vL)}
    v_lshlrev_b32 v246, 3, v246
    s_add_u32 {sr(sT2)}, {sr(sT2)}, {HXOFF + 9216}
    v_add_u32 v246, {sr(sT2)}, v246
    """)
    for n in range(5):
        g.lds(f"ds_read_b64 {vr(204 + 2 * n, 2)}, v246 offset:{32 * n}", "b2r")
    for s in range(3):
        for n in range(5):
            g.lds(f"ds_read_b128 {vr(wof(s, n), 4)}, {vr(vRW)} offset:{s * 5120 + n * 1024}", "wor")
    g.wait(lg="b2r")
    for k in range(10):
        a = GA + 60 + 2 * k
        g(f"v_lshlrev_b32 v244, 16, {vr(204 + k)}\nv_and_b32 v245, 0xffff0000, {vr(204 + k)}\nv_pk_add_f32 {vr(a, 2)}, {vr(a, 2)}, v[244:245]")
    for n in range(5):
        g.lds(f"ds_read_b128 {vr(wof(3, n), 4)}, {vr(vRW)} offset:{3 * 5120 + n * 1024}", "wor")
    for sg in range(4):
        g(f"v_sub_f32 v244, 1.0, {vr(vGG + sg)}")
        for r in range(0, 20, 2):
            a = GA + 20 * sg + r
            g(f"v_pk_mul_f32 {vr(a, 2)}, {vr(a, 2)}, {vr(244, 2)} op_sel_hi:[1,0]")
    g.wait(lg="all")
    G.stamp(7)
    if not o.tags:
        G.poll(vFO, 246, sleep=o.osleep)
        G.stamp(8)

    def rwrite(sg):
        return [lambda n=n: g.lds(f"ds_write_b128 {vr(vRW)}, {vr(GA + 20 * sg + 4 * n, 4)} offset:{sg * 5120 + n * 1024}", "rw") for n in range(5)]

    def check_ops(sg):
        r = of(sg, 0)
        ops = [f"v_max3_u32 v247, {vr(r)}, {vr(r + 1)}, {vr(r + 2)}"]
        ops += [f"v_max3_u32 v247, v247, {vr(r + k)}, {vr(r + k + 1)}" for k in range(3, 19, 2)]
        ops += [f"v_max_u32 v247, v247, {vr(r + 19)}", "v_cmp_eq_u32 vcc, -1, v247"]
        return ops

    def spin(sg):
        L, E = G.lab("ospin"), G.lab("odone")
        g(f"s_mov_b32 {sr(sSPIN)}, {SPIN}")
        g.label(L)
        oload(sg)
        g(f"s_sub_u32 {sr(sSPIN)}, {sr(sSPIN)}, 1\ns_waitcnt vmcnt(0)\ns_cbranch_scc1 {E}")
        for x in check_ops(sg):
            g(x)
        g(f"s_cbranch_vccnz {L}")
        g.label(E)
        g.vm_done = len(g.vm)

    retries = []
    if o.tags:
        L, C, E = G.lab("o0spin"), G.lab("o0chk"), G.lab("o0done")
        g(f"s_mov_b32 {sr(sSPIN)}, {SPIN}\ns_branch {C}")
        g.label(L)
        st = g.state()
        for sg in first:
            oload(sg)
        g.restore(st)
        g.label(C)
        g(f"s_sub_u32 {sr(sSPIN)}, {sr(sSPIN)}, 1")
        g.wait(vm=("o", 0, 4))
        g(f"s_cbranch_scc1 {E}")
        for x in check_ops(0):
            g(x)
        g(f"s_cbranch_vccnz {L}")
        g.label(E)
        G.stamp(8)
        for sg in range(o.ospin, 3):
            oload(sg)
    else:
        for sg in range(3):
            oload(sg)
    for sg in range(4):
        pend = rwrite(sg - 1) if sg else []
        chk = check_ops(sg + 1) if o.tags and sg < 3 else []
        k = 0
        order = [(s, n) for s in range(5) for n in range(5)] if not o.tags else [(s, n) for n in range(5) for s in range(5)]
        for s, n in order:
            g.wait(vm=("o", sg, s))
            a = GA + 20 * sg + 4 * n
            g(f"v_mfma_f32_16x16x32_bf16 {vr(a, 4)}, {vr(wof(s, n), 4)}, {vr(of(sg, s), 4)}, {vr(a, 4)}")
            k += 1
            if k >= (4 if o.tags else 8) and pend:
                pend.pop(0)()
            elif k > 25 - o.chk_late and chk:
                g.wait(vm=("o", sg + 1, 4))
                for x in chk[:2]:
                    g(x)
                chk = chk[2:]
            if sg == 3 and k == (11 if o.tags else 15):
                g.wait(lg="all")
                g("s_barrier")
                for x in range(3):
                    for n2 in range(5):
                        g.lds(f"ds_read_b128 {vr(GA + 20 * x + 4 * n2, 4)}, {vr(vRR + x)} offset:{n2 * 1024}", ("rr", x))
        if chk:
            g.wait(vm=("o", sg + 1, 4))
            for x in chk:
                g(x)
        if sg == 0:
            oload(3)
        if o.tags and sg < 3:
            R, B = G.lab("oretry"), G.lab("oback")
            g(f"s_cbranch_vccnz {R}")
            g.label(B)
            retries.append((R, B, sg + 1))
    G.stamp(9)
    g.wait(lg=("rr", 1))
    for r in range(0, 20, 2):
        g(f"v_pk_add_f32 {vr(GA + r, 2)}, {vr(GA + r, 2)}, {vr(GA + 20 + r, 2)}")
    g.wait(lg=("rr", 2))
    for r in range(0, 20, 2):
        g(f"v_pk_add_f32 {vr(GA + r, 2)}, {vr(GA + r, 2)}, {vr(GA + 40 + r, 2)}")
    for n in range(5):
        a = GA + 4 * n
        for r in range(0, 4, 2):
            g(f"v_pk_add_f32 {vr(a + r, 2)}, {vr(a + r, 2)}, {vr(a + 60 + r, 2)}")
        g(f"v_cvt_pk_bf16_f32 {vr(a)}, {vr(a)}, {vr(a + 1)}\nv_cvt_pk_bf16_f32 {vr(a + 1)}, {vr(a + 2)}, {vr(a + 3)}")
        g(f"buffer_store_dwordx2 {vr(a, 2)}, {vr(vOut)}, {sr(SOUT, 4)}, 0 offen offset:{32 * n}")
    if o.stamps:
        g("s_waitcnt vmcnt(0)")
    G.stamp(10)
    G.dump_stamps()
    g("s_endpgm\n;BLOCK retry")
    for R, B, sg in retries:
        g.label(R)
        spin(sg)
        g(f"s_branch {B}")


def phase2(G):
    g = G.g
    st = g.state()
    G.role = 'attn'
    attention(G)
    g.restore(st)
    G.role = 'gemm'
    gemm(G)
```

```python
import sys, math, argparse
from asmlib import *

NAME = "gated_mix__mha_block__dense_activation_squared_relu__prompt_kernel"

FQ, FH, FO, GOFF, TSOFF = 0x0, 0x20000, 0x40000, 0x60000, 0x80000
QOFF, KVOFF, HOFF, OOFF, WPOFF, WS_SIZE = 0x100000, 0x400000, 0x900000, 0x1000000, 0x1280000, 0x1580000
OOB = 0x7F000000
QSCALE = math.log2(math.e) / math.sqrt(20.0)
LDS_BYTES = 163840
NREC, REC = 48, 3072
REDOFF = 16 * REC
SPIN = 1 << 21

sW, sRB, sCS, sJ, sH = 3, 4, 5, 6, 7
SX, SWQ, SW1, SWS, SW2, SWO, SOUT, SB1, SB2, SGW, SDBG, SCODE = (8 + 4 * i for i in range(12))
sM0, sT0, sT1, sT2, sRT, sCP, sTT, sCH = 56, 57, 58, 59, 60, 61, 62, 63
sSPIN, sSCALE, sHS, sT3, sT4, sT5 = 64, 65, 66, 67, 68, 69
sA = 70
sTS = 80


def f32hex(x):
    import struct
    return hex(struct.unpack("<I", struct.pack("<f", x))[0])


class Gen:
    def __init__(self, opt):
        self.o = opt
        self.g = Stream()
        self.nlab = 0
        self.role = ''

    def lab(self, base):
        self.nlab += 1
        return f"L{base}_{self.nlab}"

    def stamp(self, k):
        if self.o.diag:
            g = self.g
            pt, us = (int(x) for x in self.o.diag.split(":"))
            if k == 0:
                g(f"s_memrealtime s[80:81]\ns_waitcnt lgkmcnt(0)\ns_add_u32 s80, s80, {us * 100}")
            if k == pt and (k < 1 or self.role == self.o.diag_role):
                L = self.lab("diag")
                g.label(L)
                g(f"s_memrealtime s[100:101]\ns_waitcnt lgkmcnt(0)\ns_sub_u32 s100, s100, s80\ns_cmp_lt_i32 s100, 0\ns_cbranch_scc1 {L}")
                g.lg_done = len(g.lg)
            return
        if not self.o.stamps or k > 15:
            return
        g = self.g
        g(f"{'s_memtime' if self.o.stamps == 2 else 's_memrealtime'} {sr(100, 2)}\ns_waitcnt lgkmcnt(0)\ns_mov_b32 {sr(sTS + k)}, s100")
        g.lg_done = len(g.lg)

    def dump_stamps(self):
        if not self.o.stamps:
            return
        g = self.g
        g(f"s_lshl_b32 {sr(sT0)}, s2, 3\ns_add_u32 {sr(sT0)}, {sr(sT0)}, {sr(sW)}\ns_lshl_b32 {sr(sT0)}, {sr(sT0)}, 6")
        g(f"s_add_u32 {sr(sT0)}, {sr(sT0)}, {TSOFF}\nv_mov_b32 v1, 0\ns_mov_b64 exec, 1")
        for k in range(16):
            g(f"v_mov_b32 v2, {sr(sTS + k)}")
            g(f"buffer_store_dword v2, v1, {sr(SWS, 4)}, {sr(sT0)} offen offset:{4 * k}")
        g("s_mov_b64 exec, -1")

    def dma(self, srd, vaddr, soff, ldsoff, tag, m0base=sM0, sbase=None, flags=""):
        g = self.g
        g(f"s_add_u32 m0, {sr(m0base)}, {ldsoff}")
        if sbase is None:
            g(f"s_mov_b32 {sr(sT0)}, {soff}")
        else:
            g(f"s_add_u32 {sr(sT0)}, {sr(sbase)}, {soff}")
        g.vmem(f"buffer_load_dwordx4 {vr(vaddr)}, {sr(srd, 4)}, {sr(sT0)} offen {flags} lds", tag)

    def poll(self, vaddr, vtmp, srd=SWS, sleep=0):
        g = self.g
        L, E = self.lab("poll"), self.lab("polld")
        g(f"s_mov_b32 {sr(sSPIN)}, {SPIN}")
        g.label(L)
        g(f"buffer_load_dword {vr(vtmp)}, {vr(vaddr)}, {sr(srd, 4)}, 0 offen sc1")
        g(f"s_sub_u32 {sr(sSPIN)}, {sr(sSPIN)}, 1")
        g(f"s_cbranch_scc1 {E}")
        g("s_waitcnt vmcnt(0)")
        g(f"v_cmp_ne_u32 vcc, 1, {vr(vtmp)}")
        g(f"s_cbranch_vccz {E}")
        if sleep:
            g(f"s_sleep {sleep}")
        g(f"s_branch {L}")
        g.label(E)
        g("s_waitcnt vmcnt(0)")
        g.vm_done = len(g.vm)

    def set_flag(self, sidx_expr_lines, va, vb):
        g = self.g
        g(sidx_expr_lines)
        g(f"v_mov_b32 {vr(va)}, 0\nv_mov_b32 {vr(vb)}, 1\ns_mov_b64 exec, 1")
        g.vmem(f"buffer_store_dword {vr(vb)}, {vr(va)}, {sr(SWS, 4)}, {sr(sT1)} offen sc1", "flag")
        g("s_mov_b64 exec, -1")

    def prologue(self):
        g, o = self.g, self.o
        g("s_cmp_ge_u32 s2, 256\ns_cbranch_scc1 Lend")
        g(f"s_load_dwordx2 {sr(SX, 2)}, s[0:1], 0\ns_load_dwordx2 {sr(SWQ, 2)}, s[0:1], 8\ns_load_dwordx2 {sr(SB1, 2)}, s[0:1], 40")
        self.stamp(0)
        g(f"""
        v_lshrrev_b32 v2, 6, v0
        s_getpc_b64 {sr(SCODE, 2)}
        v_readfirstlane_b32 {sr(sW)}, v2
        s_mov_b32 {sr(SCODE + 2)}, CODE_BYTES
        s_mov_b32 {sr(SCODE + 3)}, 0x20000
        s_lshr_b32 {sr(sT1)}, s2, 3
        s_and_b32 {sr(sT2)}, {sr(sT1)}, 7
        v_and_b32 v0, 63, v0
        """)
        if o.code_prefetch == 1:
            g(f"""
            s_lshl_b32 {sr(sT3)}, {sr(sT2)}, 3
            s_add_u32 {sr(sT3)}, {sr(sT3)}, {sr(sW)}
            s_lshl_b32 {sr(sT3)}, {sr(sT3)}, 10
            v_lshlrev_b32 v1, 7, v0
            s_mov_b64 exec, 0xff
            buffer_load_dword v127, v1, {sr(SCODE, 4)}, {sr(sT3)} offen
            s_mov_b64 exec, -1
            """)
        rot = {0: f"s_mov_b32 {sr(sT0)}, 0",
               3: f"""
        s_add_u32 {sr(sT0)}, {sr(sT2)}, {sr(sT3)}
        s_mul_i32 {sr(sT3)}, {sr(sT0)}, 86
        s_lshr_b32 {sr(sT3)}, {sr(sT3)}, 8
        s_mul_i32 {sr(sT3)}, {sr(sT3)}, 3
        s_sub_u32 {sr(sT0)}, {sr(sT0)}, {sr(sT3)}
        s_mul_i32 {sr(sT0)}, {sr(sT0)}, 7
        s_lshr_b32 {sr(sT0)}, {sr(sT0)}, 1""",
               4: f"""
        s_add_u32 {sr(sT0)}, {sr(sT2)}, {sr(sT3)}
        s_and_b32 {sr(sT0)}, {sr(sT0)}, 3
        s_mul_i32 {sr(sT0)}, {sr(sT0)}, 5
        s_lshr_b32 {sr(sT0)}, {sr(sT0)}, 1""",
               1: f"""
        s_lshr_b32 {sr(sT0)}, {sr(sT2)}, 2
        s_add_u32 {sr(sT0)}, {sr(sT0)}, {sr(sT2)}
        s_mul_i32 {sr(sT3)}, {sr(sT3)}, 5
        s_lshr_b32 {sr(sT3)}, {sr(sT3)}, 1
        s_add_u32 {sr(sT0)}, {sr(sT0)}, {sr(sT3)}
        s_cmp_ge_u32 {sr(sT0)}, 10
        s_cselect_b32 {sr(sT3)}, 10, 0
        s_sub_u32 {sr(sT0)}, {sr(sT0)}, {sr(sT3)}"""}[o.rot]
        g(f"""
        s_and_b32 {sr(sRB)}, s2, 4
        s_lshl_b32 {sr(sRB)}, {sr(sRB)}, 1
        s_add_u32 {sr(sRB)}, {sr(sRB)}, {sr(sT2)}
        s_lshr_b32 {sr(sT3)}, s2, 6
        s_lshl_b32 {sr(sCS)}, {sr(sT3)}, 2
        s_and_b32 {sr(sT4)}, s2, 3
        s_add_u32 {sr(sCS)}, {sr(sCS)}, {sr(sT4)}
        s_and_b32 {sr(sTT)}, {sr(sW)}, 3
        s_lshr_b32 {sr(sCH)}, {sr(sW)}, 2
        s_lshl_b32 {sr(sM0)}, {sr(sTT)}, 10
        {rot}
        s_lshl_b32 {sr(sA)}, {sr(sT0)}, 7
        s_mul_i32 {sr(sA + 1)}, {sr(sT0)}, {64 * 3840}
        s_mul_i32 {sr(sA + 2)}, {sr(sT0)}, {64 * 3456}
        v_lshrrev_b32 v2, 3, v0
        v_lshrrev_b32 v3, 4, v0
        s_lshl_b32 {sr(sT0)}, {sr(sRB)}, 7
        s_lshl_b32 {sr(sT1)}, {sr(sTT)}, 3
        s_add_u32 {sr(sT0)}, {sr(sT0)}, {sr(sT1)}
        v_add_u32 v2, {sr(sT0)}, v2
        v_mul_u32_u24 v4, 1280, v2
        s_lshl_b32 {sr(sT0)}, {sr(sTT)}, 2
        v_add_u32 v2, {sr(sT0)}, v3
        v_xor_b32 v7, v2, v0
        v_and_b32 v7, 7, v7
        v_lshl_add_u32 v4, v7, 4, v4
        s_and_b32 {sr(sT0)}, {sr(sW)}, 2
        s_lshl_b32 {sr(sT0)}, {sr(sT0)}, 2
        v_lshl_add_u32 v7, v3, 1, {sr(sT0)}
        v_xor_b32 v7, v7, v0
        v_and_b32 v7, 15, v7
        s_lshl_b32 {sr(sT0)}, {sr(sCS)}, 8
        v_lshl_add_u32 v7, v7, 4, {sr(sT0)}
        v_mul_u32_u24 v5, 3840, v2
        v_add_u32 v5, v5, v7
        s_mov_b32 {sr(SX + 2)}, {2048 * 1280}
        s_mov_b32 {sr(SX + 3)}, 0x20000
        s_mov_b32 {sr(SWQ + 2)}, {640 * 3840}
        s_mov_b32 {sr(SWQ + 3)}, 0x20000
        s_lshl_b32 {sr(sT1)}, {sr(sCH)}, 13
        s_add_u32 {sr(sT1)}, {sr(sT1)}, {sr(sM0)}
        s_mul_i32 {sr(sT2)}, {sr(sCH)}, {64 * 1280}
        s_add_u32 {sr(sT2)}, {sr(sT2)}, {sr(sA)}
        s_mul_i32 {sr(sT3)}, {sr(sCH)}, {32 * 3840}
        s_add_u32 {sr(sT3)}, {sr(sT3)}, {sr(sA + 1)}
        s_mov_b32 {sr(SB1 + 2)}, 3456
        s_mov_b32 {sr(SB1 + 3)}, 0x20000
        v_lshlrev_b32 v9, 2, v0
        s_mov_b32 {sr(sT5)}, {sr(sT0)}
        s_cmp_eq_u32 {sr(sCS)}, 15
        s_waitcnt lgkmcnt(0)
        s_cbranch_scc1 Lno0
        """)

        for q in range(2):
            self.dma(SX, 4, q * 32 * 1280, q * 4096, ("A", 0), m0base=sT1, sbase=sT2)
        for q in range(2):
            self.dma(SWQ, 5, q * 16 * 3840, 16384 + q * 4096, ("A", 0), m0base=sT1, sbase=sT3)
        g.label("Lno0")
        if o.code_prefetch == 2:
            g(f"""
            s_and_b32 {sr(sT3)}, {sr(sRB)}, 7
            s_lshl_b32 {sr(sT3)}, {sr(sT3)}, 3
            s_add_u32 {sr(sT3)}, {sr(sT3)}, {sr(sW)}
            s_mul_i32 {sr(sT3)}, {sr(sT3)}, 1280
            v_lshlrev_b32 v1, 7, v0
            s_mov_b64 exec, 0x3ff
            """)
            g.vmem(f"buffer_load_dword v127, v1, {sr(SCODE, 4)}, {sr(sT3)} offen", ("A", 0))
            g("s_mov_b64 exec, -1")
        if o.code_prefetch >= 3:
            step = 128 if o.code_prefetch == 3 else 64
            n = -(-o.code_bytes // (step * (64 if step == 128 else 256)))
            g(f"""
            s_lshr_b32 {sr(sT3)}, s2, 3
            s_and_b32 {sr(sT3)}, {sr(sT3)}, {7 if step == 128 else 31}
            s_lshl_b32 {sr(sT3)}, {sr(sT3)}, 3
            s_add_u32 {sr(sT3)}, {sr(sT3)}, {sr(sW)}
            s_mul_i32 {sr(sT3)}, {sr(sT3)}, {n * step}
            s_min_u32 {sr(sT3)}, {sr(sT3)}, {max(o.code_bytes - n * step, 0) & ~3}
            s_add_u32 {sr(SCODE)}, {sr(SCODE)}, {sr(sT3)}
            s_addc_u32 {sr(SCODE + 1)}, {sr(SCODE + 1)}, 0
            """)
            for k in range(n):
                g(f"s_load_dword {sr(sSPIN)}, {sr(SCODE, 2)}, {k * step}")
        if o.fine == "S":
            self.stamp(9)
        self.adv(sA, 128); self.adv(sA + 1, 64 * 3840)
        g(f"s_cmp_eq_u32 {sr(sCS)}, 15\ns_cbranch_scc1 Lgate")

    def rest_setup(self):
        g = self.g
        for srd, slot in ((SW1, 4), (SWS, 11), (SGW, 8), (SDBG, 10), (SW2, 6), (SWO, 2), (SOUT, 9), (SB2, 7)):
            g(f"s_load_dwordx2 {sr(srd, 2)}, s[0:1], {8 * slot}")
        for srd, n in ((SW1, 640 * 3456), (SWS, WS_SIZE), (SGW, 1280),
                       (SDBG, 256), (SW2, 1728 * 1280), (SWO, 640 * 1280), (SOUT, 2048 * 1280), (SB2, 1280)):
            g(f"s_mov_b32 {sr(srd + 2)}, {n}\ns_mov_b32 {sr(srd + 3)}, 0x20000")
        g(f"""
        v_mul_u32_u24 v6, 3456, v2
        v_add_u32 v6, v6, v7
        s_cmp_eq_u32 {sr(sCS)}, 14
        s_cselect_b32 {sr(sT0)}, {OOB}, 0
        v_add_u32 v6, {sr(sT0)}, v6
        s_lshr_b32 {sr(sJ)}, s2, 5
        s_lshr_b32 {sr(sT1)}, s2, 3
        s_and_b32 {sr(sT1)}, {sr(sT1)}, 3
        s_and_b32 {sr(sT0)}, s2, 7
        s_lshl_b32 {sr(sH)}, {sr(sT0)}, 2
        s_add_u32 {sr(sH)}, {sr(sH)}, {sr(sT1)}
        """)
        if self.o.otile == 0:
            g(f"s_mov_b32 {sr(sCP)}, {sr(sJ)}\ns_mov_b32 {sr(sRT)}, {sr(sH)}")
        else:
            g(f"""
            s_lshr_b32 {sr(sRT)}, {sr(sT0)}, 1
            s_lshl_b32 {sr(sRT)}, {sr(sRT)}, 3
            s_add_u32 {sr(sRT)}, {sr(sRT)}, {sr(sJ)}
            s_and_b32 {sr(sCP)}, {sr(sT0)}, 1
            s_lshl_b32 {sr(sCP)}, {sr(sCP)}, 2
            s_add_u32 {sr(sCP)}, {sr(sCP)}, {sr(sT1)}
            """)
        g("s_waitcnt lgkmcnt(0)")

    vXG, vWG, vW1G = 4, 5, 6

    def adv(self, reg, step):
        self.g(f"s_add_u32 {sr(reg)}, {sr(reg)}, {step}\ns_cmp_eq_u32 {sr(reg)}, {10 * step}\ns_cselect_b32 {sr(reg)}, 0, {sr(reg)}")

    def dma4(self, srd, va, sreg, quarter, step, lds, tag, defer=False):
        def one(q):
            self.dma(srd, va, q * quarter, lds + q * 4096, tag, sbase=sreg)
            if q == 3:
                self.adv(sreg, step)
        L = [lambda q=q: one(q) for q in range(4)]
        if defer:
            return L
        for f in L:
            f()

    def dmaX(self, s):
        self.dma4(SX, self.vXG, sA, 32 * 1280, 128, (s % 5) * 32768, ("A", s))

    def dmaW(self, s):
        self.dma4(SWQ, self.vWG, sA + 1, 16 * 3840, 64 * 3840, (s % 5) * 32768 + 16384, ("A", s))

    def dmaB(self, t, defer=False):
        return self.dma4(SW1, self.vW1G, sA + 2, 16 * 3456, 64 * 3456, t * 16384, ("B", t), defer)

    def rd(self, mn, dst, n, areg, off, tag, base):
        g = self.g
        if not (0 <= off - base[areg] <= 65535):
            nb = min(off & ~16383, LDS_BYTES - 65536)
            g(f"v_add_u32 {vr(areg)}, {(nb - base[areg]) & 0xFFFFFFFF}, {vr(areg)}")
            base[areg] = nb
        g.lds(f"{mn} {vr(dst, n)}, {vr(areg)} offset:{off - base[areg]}", tag)

    def x_read_addr(self, d0, d1, srow):
        self.g(f"""
        v_lshrrev_b32 v3, 4, v0
        v_and_b32 v2, 15, v0
        v_add_u32 {vr(d0)}, {sr(srow)}, v2
        v_lshlrev_b32 {vr(d0)}, 7, {vr(d0)}
        v_lshrrev_b32 v20, 1, v2
        v_xor_b32 v20, v20, v3
        v_xor_b32 v21, 4, v20
        v_lshl_add_u32 {vr(d1)}, v21, 4, {vr(d0)}
        v_lshl_add_u32 {vr(d0)}, v20, 4, {vr(d0)}
        """)

    def w_read_addr(self, dsts, sfirst, t):
        g = self.g
        g(f"""
        v_lshrrev_b32 {vr(t)}, 4, v0
        v_bfe_u32 {vr(t + 1)}, v0, 2, 2
        v_and_b32 {vr(t + 2)}, 3, v0
        v_lshl_add_u32 {vr(t + 3)}, {vr(t)}, 3, {vr(t + 1)}
        v_lshlrev_b32 {vr(t + 3)}, 8, {vr(t + 3)}
        v_lshl_add_u32 {vr(t + 3)}, {vr(t + 2)}, 3, {vr(t + 3)}
        v_and_b32 {vr(t)}, 1, {vr(t)}
        v_lshl_add_u32 {vr(t)}, {vr(t)}, 2, {vr(t + 1)}
        """)
        if sfirst is not None:
            g(f"v_xor_b32 {vr(t)}, {sr(sfirst)}, {vr(t)}")
        for n, d in enumerate(dsts):
            g(f"v_xor_b32 {vr(t + 1)}, {n}, {vr(t)}\nv_lshl_add_u32 {vr(d)}, {vr(t + 1)}, 5, {vr(t + 3)}")

    def clean_load(self):
        g = self.g
        g("v_and_b32 v2, 15, v0\nv_lshlrev_b32 v2, 2, v2")
        g.vmem(f"buffer_load_dword v3, v2, {sr(SDBG, 4)}, 0 offen sc1", "clean")

    aXR, aWR, aST, aACC, aBUF = (7, 8), (9, 10, 11, 12), (13, 14, 15, 16), 64, 128

    def a_setup(self):
        g = self.g
        sTH, sAC = sA + 3, sA + 4
        g(f"s_and_b32 {sr(sTH)}, {sr(sW)}, 1\ns_lshr_b32 {sr(sAC)}, {sr(sW)}, 1\ns_lshl_b32 {sr(sT0)}, {sr(sTH)}, 6")
        self.x_read_addr(*self.aXR, sT0)
        g(f"s_lshl_b32 {sr(sT0)}, {sr(sAC)}, 2")
        self.w_read_addr(self.aWR, sT0, 20)
        LV, LD = self.lab("stv"), self.lab("std")
        g(f"""
        s_mul_i32 {sr(sT0)}, {sr(sCS)}, 205
        s_lshr_b32 {sr(sT0)}, {sr(sT0)}, 10
        s_mul_i32 {sr(sT1)}, {sr(sT0)}, 5
        s_sub_u32 {sr(sT1)}, {sr(sCS)}, {sr(sT1)}
        s_lshl_b32 {sr(sT2)}, {sr(sRB)}, 1
        s_add_u32 {sr(sT2)}, {sr(sT2)}, {sr(sTH)}
        s_lshl_b32 {sr(sT2)}, {sr(sT2)}, 1
        s_cmp_eq_u32 {sr(sT0)}, 0
        s_mov_b32 {sr(sA + 5)}, 2560
        s_cselect_b32 {sr(sA + 5)}, 1280, {sr(sA + 5)}
        s_mov_b32 {sr(sT4)}, {KVOFF}
        s_cselect_b32 {sr(sT4)}, {QOFF}, {sr(sT4)}
        s_mul_i32 {sr(sT2)}, {sr(sT2)}, {sr(sA + 5)}
        s_add_u32 {sr(sT4)}, {sr(sT4)}, {sr(sT2)}
        s_lshl_b32 {sr(sT3)}, {sr(sA + 5)}, 6
        s_cmp_eq_u32 {sr(sT0)}, 2
        s_cbranch_scc1 {LV}
        s_lshl_b32 {sr(sT1)}, {sr(sT1)}, 5
        s_lshl_b32 {sr(sT2)}, {sr(sAC)}, 4
        s_add_u32 {sr(sT1)}, {sr(sT1)}, {sr(sT2)}
        v_add_u32 v22, {sr(sT1)}, v3
        v_lshlrev_b32 v17, 4, v2
        v_add_u32 v17, {sr(sT4)}, v17
        """)
        for n in range(4):
            g(f"""
            v_add_u32 v18, {4 * n}, v22
            v_mul_u32_u24 v19, 205, v18
            v_lshrrev_b32 v19, 10, v19
            v_mul_u32_u24 v20, 5, v19
            v_sub_u32 v20, v18, v20
            v_mul_lo_u32 v19, v19, {sr(sT3)}
            v_lshl_add_u32 v19, v20, 8, v19
            v_add_u32 {vr(self.aST[n])}, v19, v17
            """)
        g(f"s_branch {LD}")
        g.label(LV)
        g(f"""
        s_lshl_b32 {sr(sT1)}, {sr(sT1)}, 7
        s_lshl_b32 {sr(sT2)}, {sr(sAC)}, 6
        s_add_u32 {sr(sT1)}, {sr(sT1)}, {sr(sT2)}
        v_add_u32 v22, {sr(sT1)}, v2
        v_mul_u32_u24 v17, 320, v3
        s_add_u32 {sr(sT4)}, {sr(sT4)}, 1280
        v_add_u32 v17, {sr(sT4)}, v17
        """)
        for n in range(4):
            g(f"""
            v_add_u32 v18, {16 * n}, v22
            v_mul_u32_u24 v19, 3277, v18
            v_lshrrev_b32 v19, 16, v19
            v_mul_u32_u24 v20, 20, v19
            v_sub_u32 v20, v18, v20
            v_mul_lo_u32 v19, v19, {sr(sT3)}
            v_lshl_add_u32 v19, v20, 4, v19
            v_add_u32 {vr(self.aST[n])}, v19, v17
            """)
        g.label(LD)

    def flush_epi(self, epi):
        g = self.g
        gained = 0
        for ready, ops in epi:
            short = ready - len(g.lines) - gained
            if short > 0:
                g(f"s_nop {short - 1}")
                gained += short - 1
            for x in ops:
                g(x)

    def a_epi_ops(self, n, t, scale):
        a = self.aACC + (n * 4 + t) * 4
        d = self.aACC + 16 * n + 8 * (t >> 1) + 2 * (t & 1)
        ops = [f"v_mul_f32 {vr(a + r)}, {sr(sSCALE)}, {vr(a + r)}" for r in range(4)] if scale else []
        return ops + [f"v_cvt_pk_bf16_f32 {vr(d + q)}, {vr(a + 2 * q)}, {vr(a + 2 * q + 1)}" for q in range(2)]

    def a_pass(self, swap):
        g, o = self.g, self.o
        base = {r: 0 for r in self.aXR + self.aWR}
        xreg = lambda s, kk, t: self.aBUF + 64 * (s % 2) + (kk * 4 + t) * 4
        wreg = lambda s, n, kk: self.aBUF + 64 * (s % 2) + 32 + n * 8 + kk * 4

        def reads(s):
            q = (s % 5) * 32768
            X = [lambda kk=kk, t=t: self.rd("ds_read_b128", xreg(s, kk, t), 4, self.aXR[kk], q + t * 2048, ("x", s, t), base)
                 for t in range(4) for kk in range(2)]
            W = [lambda n=n, kk=kk, u=u: self.rd("ds_read_b64_tr_b16", wreg(s, n, kk) + 2 * u, 2, self.aWR[n], q + 16384 + kk * 8192 + u * 1024, ("w", s, n), base)
                 for n in range(4) for kk in range(2) for u in range(2)]
            return W[:4] + X + W[4:]

        g.wait(vm=("A", 0))
        g("s_barrier")
        self.stamp(1)
        for f in reads(0):
            f()
        if o.a_split == 1:
            from gen2 import attn_setup
            attn_setup(self, 1)
        for s in range(10):
            pos = 32 if s < o.early else o.barpos
            pend = []
            epi = []
            k = 0
            for n in range(4):
                for t in range(4):
                    for kk in range(2):
                        if k == pos and s < 9:
                            g.wait(lg="all", vm="all")
                            g("s_barrier")
                            pend = reads(s + 1)
                        if k == 0 and o.fine == "A" and s in (0, 1, 2, 4, 6, 8, 9):
                            self.stamp(9 + (0, 1, 2, 4, 6, 8, 9).index(s))
                        g.wait(lg=[("w", s, n), ("x", s, t)])
                        a = self.aACC + (n * 4 + t) * 4
                        w, x = vr(wreg(s, n, kk), 4), vr(xreg(s, kk, t), 4)
                        A, B = (x, w) if swap else (w, x)
                        g(f"v_mfma_f32_16x16x32_bf16 {vr(a, 4)}, {A}, {B}, {'0' if s == 0 and kk == 0 else vr(a, 4)}")
                        mline = len(g.lines)
                        k += 1
                        if pend:
                            pend.pop(0)()
                        if s == 9:
                            if kk == 1:
                                epi.append([mline + 8, self.a_epi_ops(n, t, not swap)])
                            budget = o.epi_rate
                            while budget and epi and epi[0][0] <= len(g.lines):
                                g(epi[0][1].pop(0)); budget -= 1
                                if not epi[0][1]:
                                    epi.pop(0)
            if s == 9:
                g("s_barrier")
                self.stamp(2)
                self.clean_load()
                for t in range(o.b2_stage - o.a_pre, o.b2_stage):
                    self.dmaB(t)
                self.flush_epi(epi)
            if pos == 32 and s < 9:
                if s == 0 and o.a_split == 2:
                    from gen2 import attn_setup
                    attn_setup(self, 1)
                g.wait(lg="all", vm="all")
                g("s_barrier")
                pend = reads(s + 1)
            for f in pend:
                f()

    def a_phase1(self):
        g, o = self.g, self.o
        g(";BLOCK a1")
        g.label("La1")
        self.rest_setup()
        g("v_mov_b32 v125, v4\nv_mov_b32 v126, v5")
        self.a_setup()
        for t in range(o.b2_stage - o.a_pre):
            self.adv(sA + 2, 64 * 3456)
        g(f"s_cmp_lt_u32 {sr(sCS)}, 5\ns_cselect_b32 {sr(sSCALE)}, {f32hex(QSCALE)}, 1.0")
        g(f"""
        s_lshl_b32 {sr(sT1)}, {sr(sCS)}, 1
        s_add_u32 {sr(sT1)}, {sr(sT1)}, {sr(sA + 4)}
        s_lshl_b32 {sr(sT1)}, {sr(sT1)}, 5
        s_lshl_b32 {sr(sT2)}, {sr(sRB)}, 1
        s_add_u32 {sr(sT1)}, {sr(sT1)}, {sr(sT2)}
        s_add_u32 {sr(sT1)}, {sr(sT1)}, {sr(sA + 3)}
        s_lshl_b32 {sr(sHS)}, {sr(sT1)}, 7""")
        from gen2 import attn_setup
        attn_setup(self, 0 if o.a_split else None)
        if o.fine == "S":
            self.stamp(10)
        if o.a_st1:
            self.vXG, self.vWG = 125, 126
            self.dmaX(1); self.dmaW(1)
            self.vXG, self.vWG = 4, 5
        if o.aprio:
            g(f"s_setprio {o.aprio}")
        g(f"s_cmp_ge_u32 {sr(sCS)}, 10\ns_cbranch_scc1 LpassA_v")
        st = g.state()
        self.a_pass(False)
        self.a_publish()
        g.restore(st)
        g(";BLOCK av")
        g.label("LpassA_v")
        self.a_pass(True)
        self.a_publish()

    def a_publish(self):
        g, o = self.g, self.o
        late = sum([self.dmaB(t, True) for t in range(o.b2_stage, 10)], [])
        for n in range(4):
            for T in range(2):
                a = self.aACC + 16 * n + 8 * T
                g.vmem(f"buffer_store_dwordx4 {vr(a, 4)}, {vr(self.aST[n])}, {sr(SWS, 4)}, {sr(sA + 5) if T else 0} offen sc1", "stA")
                for f in late[:o.ilv]:
                    f()
                late = late[o.ilv:]
                if o.b1_stage < o.b2_stage and 2 * n + T + 1 == o.b1_pos:
                    if o.a_pre:
                        g.wait(vm=("B", o.b2_stage - 1))
                    g("s_barrier")
        for f in late:
            f()
        if o.b3_stage < 10:
            g.wait(vm=("B", o.b3_stage - 1))
            g("s_barrier")
        g.wait(vm="stA")
        self.check_clean()
        self.set_flag(f"s_mov_b32 {sr(sT1)}, {sr(sHS)}", 2, 3)
        self.stamp(3)
        g("s_branch Lattn0")

    gXR, gWR, gACC, gX = (7, 8), (1, 2, 4, 5, 7, 8, 9, 10), 32, 96

    def gx(self, s, kk, t):
        return self.gX + ((2 * s + kk) * 2 + t) * 4

    def gacc(self, n, t):
        return self.gACC + ((n >> 1) * 2 + t) * 8 + (n & 1) * 4

    def g_phase1(self):
        g, o = self.g, self.o
        fn = {"x": self.dmaX, "w": self.dmaW, "b": self.dmaB}
        sched = [[it for it in grp.split(",") if it] for grp in o.order.split("/")]
        assert len(sched) == 12 and (o.b3_stage if o.b3_stage < 10 else o.b2_stage) >= 6
        for k, grp in enumerate(sched):
            for it in grp:
                st_ = int(it[1]) if it[0] != "b" else 10 + int(it[1]) // 2
                assert st_ <= max(4, k + 3), (k, it)
        assert sorted(sum(sched, [])) == sorted([f"x{i}" for i in range(10)] + [f"w{i}" for i in range(10)] + [f"b{i}" for i in range(o.b2_stage - o.a_pre)])
        def issue(k):
            for it in sched[k]:
                if it in ("x0", "w0"):
                    pass
                elif o.a_st1 and it in ("x1", "w1"):
                    self.adv(*((sA, 128) if it == "x1" else (sA + 1, 64 * 3840)))
                else:
                    fn[it[0]](int(it[1]))
        if o.gprio:
            g(f"s_setprio {o.gprio}")
        from gen2 import gemm_setup

        def bias():
            g.wait(vm="b1")
            for n in range(8):
                for hf in range(2):
                    g.lds(f"ds_bpermute_b32 {vr(12 + 2 * n + hf)}, v9, v10 offset:{32 * n + 4 * hf}", ("b1p", n))
            for n in range(8):
                g.wait(lg=("b1p", n))
                for hf in range(2):
                    g(f"v_lshlrev_b32 {vr(self.gacc(n, 0) + 2 * hf)}, 16, {vr(12 + 2 * n + hf)}")
                    g(f"v_and_b32 {vr(self.gacc(n, 0) + 2 * hf + 1)}, 0xffff0000, {vr(12 + 2 * n + hf)}")
        chunks = {}
        for k, f in zip((int(x) for x in o.gchunks.split(",")), (bias, lambda: gemm_setup(self, 0), lambda: gemm_setup(self, 1))):
            chunks.setdefault(k, []).append(f)
        g.vmem(f"buffer_load_dword v10, v9, {sr(SB1, 4)}, {sr(sT5)} offen", "b1")
        issue(0)
        if o.fine == "S":
            self.stamp(13)
        self.rest_setup()
        g(f"s_lshl_b32 {sr(sT0)}, {sr(sTT)}, 5")
        self.x_read_addr(*self.gXR, sT0)
        g("v_lshlrev_b32 v9, 3, v3")
        for f in chunks.get(0, []):
            f()
        if o.fine == "S":
            self.stamp(14)
        base = {r: 0 for r in self.gXR + self.gWR}
        for s in range(10):
            g.wait(vm=("A", s) if not (o.a_st1 and s == 1) else None, lg="all")
            if o.fine == "S" and s == 0:
                self.stamp(15)
            g("s_barrier")
            for t in range(2):
                for kk in range(2):
                    self.rd("ds_read_b128", self.gx(s, kk, t), 4, self.gXR[kk], (s % 5) * 32768 + t * 2048, ("x", s), base)
            issue(s + 1)
            for f in chunks.get(s + 1, []):
                f()
            if s == o.gwarm:
                g(";WARM gb")
        self.w_read_addr(self.gWR, None, 12)
        for r in self.gWR:
            base[r] = 0
        g("s_branch Lpb\n;BLOCK pb")
        g.label("Lpb")
        g.wait(vm=("B", o.b1_stage - 1), lg="all")
        g("s_barrier")
        issue(11)
        self.stamp(2)
        g(f"s_setprio {o.bprio}")
        g(f"s_cmp_eq_u32 {sr(sCS)}, 14\ns_cbranch_scc1 Lgatez")
        NM = o.nmaj
        groups = [(s, n) for s in range(NM) for n in range(8)] + [(s, n) for n in range(8) for s in range(NM, 10)]
        assert NM >= max(o.b2_stage, o.b3_stage if o.b3_stage < 10 else 0)
        frs = [(s, n, kk) for s, n in groups for kk in range(2)]
        free, where, nxt, half = [12, 16, 20, 24, 28], {}, 0, None

        def issue_read():
            nonlocal nxt, half
            if half is None:
                if nxt >= len(frs) or not free or len(where) >= o.wdepth:
                    return False
                s, n, kk = frs[nxt]
                if n == 0 and kk == 0 and s == o.b1_stage and o.b1_stage < o.b2_stage:
                    g.wait(vm=("B", o.b2_stage - o.a_pre - 1))
                    g("s_barrier")
                if n == 0 and kk == 0 and s in (o.b2_stage, o.b3_stage):
                    g("s_barrier")

                where[frs[nxt]] = free.pop(0)
                half = 0
            s, n, kk = frs[nxt]
            self.rd("ds_read_b64_tr_b16", where[frs[nxt]] + 2 * half, 2, self.gWR[n], s * 16384 + kk * 8192 + half * 1024, ("w", s, n, kk), base)
            if half == 1:
                half = None; nxt += 1
            else:
                half = 1
            return True

        g("s_cmp_lg_u32 0, 0\n;PADBEGIN gb")
        while issue_read():
            pass
        epi, k = [], 0
        for s, n in groups:
            if o.fine == "B" and k % 64 == 32:
                self.stamp(11 + k // 64)
            for m in range(4):
                t, kk = 1 - (m >> 1), m & 1
                while (s, n, kk) not in where or (nxt < len(frs) and frs[nxt] == (s, n, kk)):
                    assert issue_read()
                if m == 0 and (s, n, 1) in where and not (nxt < len(frs) and frs[nxt] == (s, n, 1)):
                    g.wait(lg=("w", s, n, 1))
                else:
                    g.wait(lg=("w", s, n, kk))
                a = self.gacc(n, t)
                g(f"v_mfma_f32_16x16x32_bf16 {vr(a, 4)}, {vr(where[(s, n, kk)], 4)}, {vr(self.gx(s, kk, t), 4)}, {vr(self.gacc(n, 0) if s == 0 and kk == 0 else a, 4)}")
                mline = len(g.lines)
                k += 1
                if t == 0:
                    free.append(where.pop((s, n, kk)))
                did = issue_read()
                if len(where) < o.wdepth - 1:
                    issue_read()
                if s == 9 and kk == 1:
                    d = a - 2 * (n & 1)
                    epi.append([mline + 8, [f"v_max_f32 {vr(a + r)}, 0, {vr(a + r)}" for r in range(4)] +
                                [f"v_mul_f32 {vr(a + r)}, {vr(a + r)}, {vr(a + r)}" for r in range(4)] +
                                [f"v_cvt_pk_bf16_f32 {vr(d + q)}, {vr(a + 2 * q)}, {vr(a + 2 * q + 1)}" for q in range(2)]])
                budget = (2 if not did or m == 1 else 1) if o.gepi else 0
                while budget and epi and epi[0][0] <= len(g.lines):
                    g(epi[0][1].pop(0)); budget -= 1
                    if not epi[0][1]:
                        epi.pop(0)
            if n == 7 and s < NM:
                free.extend(self.gx(s, kk, t) for kk in range(2) for t in range(2))
        g(";PADEND")
        self.stamp(3)
        self.flush_epi(epi)
        g("s_setprio 0")
        g("s_branch Lgemm")
        g(";BLOCK gatez")
        g.label("Lgatez")
        g("s_setprio 0\ns_waitcnt vmcnt(0)")
        for _ in range(1 + (o.b1_stage < o.b2_stage) + (o.b3_stage < 10)):
            g("s_barrier")
        g(f"v_lshlrev_b32 v4, 4, v0\ns_lshl_b32 {sr(sT1)}, {sr(sM0)}, 2\ns_add_u32 {sr(sT1)}, {sr(sT1)}, {5 * 16384}")
        for src, dst in ((0, 0), (256, 256), (0, 1280), (256, 1536)):
            self.dma(SGW, 4, src, dst, "gw", m0base=sT1)
        g(f"s_add_u32 {sr(sT1)}, {sr(sT1)}, {sr(sA)}")
        g(f"v_lshrrev_b32 v5, 4, v0\nv_lshlrev_b32 v5, 4, v5\nv_add_u32 v5, {sr(sT1)}, v5")
        g("s_waitcnt vmcnt(0)")
        for half in range(2):
            for k in range(10):
                g(f"ds_read_b128 {vr(32 + 4 * k, 4)}, v5 offset:{64 * (10 * half + k)}")
            g("s_waitcnt lgkmcnt(0)")
            for k in range(10):
                kk = 10 * half + k
                for t in range(2):
                    g(f"v_mfma_f32_16x16x32_bf16 {vr(80 + 4 * t, 4)}, {vr(32 + 4 * k, 4)}, {vr(self.gx(kk >> 1, kk & 1, t), 4)}, {'0' if kk == 0 else vr(80 + 4 * t, 4)}")
        g(f"""
        s_nop 7
        v_cmp_gt_u32 vcc, 16, v0
        v_lshlrev_b32 v4, 2, v0
        s_lshl_b32 {sr(sT0)}, {sr(sRB)}, 9
        v_cndmask_b32 v80, v84, v80, vcc
        v_mul_f32 v80, {f32hex(-math.log2(math.e))}, v80
        v_exp_f32 v80, v80
        s_lshl_b32 {sr(sT1)}, {sr(sTT)}, 7
        v_add_f32 v80, 1.0, v80
        v_rcp_f32 v80, v80
        s_add_u32 {sr(sT0)}, {sr(sT0)}, {sr(sT1)}
        s_add_u32 {sr(sT0)}, {sr(sT0)}, {GOFF}
        s_mov_b32 exec_hi, 0
        buffer_store_dword v80, v4, {sr(SWS, 4)}, {sr(sT0)} offen sc1
        s_mov_b32 exec_hi, -1
        s_branch Lgemm
        """)

    def phase1(self):
        g = self.g
        g(f"s_cmp_lt_u32 {sr(sW)}, 4\ns_cbranch_scc1 La1")
        st = g.state()
        self.role = "gemm"
        self.g_phase1()
        g.restore(st)
        self.role = "attn"
        self.a_phase1()

    def check_clean(self):
        g = self.g
        L = self.lab("clean")
        g(f"v_cmp_ne_u32 vcc, 1, v3\ns_cbranch_vccz {L}")
        st = g.state()
        self.poll(2, 3, SDBG)
        g.restore(st)
        g.label(L)

    def const_regs(self, a, d):
        self.g(f"""
        v_and_b32 {vr(d + 2)}, 31, v0
        v_lshrrev_b32 {vr(d + 3)}, 5, v0
        s_lshl_b32 {sr(sT0)}, {sr(sTT)}, 1
        v_add_u32 {vr(d + 3)}, {sr(sT0)}, {vr(d + 3)}
        v_mul_u32_u24 {vr(d + 3)}, {REC}, {vr(d + 3)}
        v_lshl_add_u32 {vr(a)}, {vr(d + 2)}, 4, {vr(d + 3)}
        v_and_b32 {vr(d + 3)}, 23, {vr(d + 2)}
        v_cmp_eq_u32 vcc, 16, {vr(d + 3)}
        v_mov_b32 {vr(d + 3)}, 0x3f803f80
        v_mov_b32 {vr(d)}, 0x3f80
        v_cndmask_b32 {vr(d + 1)}, 0, {vr(d + 3)}, vcc
        v_cmp_eq_u32 vcc, 20, {vr(d + 2)}
        v_mov_b32 {vr(d + 2)}, {vr(d + 1)}
        v_mov_b32 {vr(d + 3)}, {vr(d + 1)}
        v_cndmask_b32 {vr(d)}, {vr(d + 1)}, {vr(d)}, vcc
        """)

    def const_write(self, a, d, groups):
        g = self.g
        cur = 0
        for grp in groups:
            if (grp - cur) * 8 * REC + 2560 > 65535:
                g(f"v_add_u32 {vr(a)}, {(grp - cur) * 8 * REC}, {vr(a)}")
                cur = grp
            g.lds(f"ds_write_b128 {vr(a)}, {vr(d, 4)} offset:{2560 + (grp - cur) * 8 * REC}", "cw")

    def gate(self):
        g = self.g
        g(";BLOCK gate")
        g.label("Lgate")
        self.rest_setup()
        g(f"""
        s_mul_i32 {sr(sT0)}, {sr(sRB)}, {192 * 128}
        s_mul_i32 {sr(sT1)}, {sr(sW)}, {24 * 128}
        s_add_u32 {sr(sT0)}, {sr(sT0)}, {sr(sT1)}
        v_lshlrev_b32 v2, 7, v0
        v_mov_b32 v3, 0
        s_mov_b64 exec, 0xffffff
        buffer_store_dword v3, v2, {sr(SWS, 4)}, {sr(sT0)} offen sc1
        s_mov_b64 exec, -1
        s_waitcnt vmcnt(0)
        s_barrier
        s_cmp_ge_u32 {sr(sW)}, 4
        s_cbranch_scc1 Lgate_g
        s_lshl_b32 {sr(sT1)}, {sr(sRB)}, 2
        s_cmp_lg_u32 {sr(sW)}, 0
        s_cselect_b32 {sr(sT1)}, {OOB}, {sr(sT1)}
        v_mov_b32 v2, 1
        s_mov_b64 exec, 1
        buffer_store_dword v2, v3, {sr(SDBG, 4)}, {sr(sT1)} offen sc1
        s_mov_b64 exec, -1
        """)
        from gen2 import attn_setup
        attn_setup(self)
        g("v_and_b32 v2, 15, v0\nv_lshlrev_b32 v2, 2, v2")
        self.poll(2, 3, SDBG, sleep=32)
        self.poll(18, 3, sleep=8)
        g("s_branch Lattn")
        g.label("Lgate_g")
        if self.o.warm:
            g(f"""
            s_lshl_b32 {sr(sT1)}, {sr(sRB)}, 2
            s_add_u32 {sr(sT1)}, {sr(sT1)}, {sr(sTT)}
            s_lshl_b32 {sr(sT1)}, {sr(sT1)}, 13
            """)
            for srd, n in ((SW1, 5), (SW2, 5), (SWO, 2))[:self.o.warm]:
                for k in range(n):
                    g(f"s_add_u32 {sr(sT0)}, {sr(sT1)}, {k << 19}\nbuffer_load_dword v127, v2, {sr(srd, 4)}, {sr(sT0)} offen")
            g("s_waitcnt vmcnt(0)")
        from gen2 import gemm_setup
        gemm_setup(self)
        g("s_branch Lgemm")

    def h_stores(self, vl16):
        g = self.g
        for b in range(8):
            s2, t = b >> 1, b & 1
            g(f"s_add_u32 {sr(sT0)}, {sr(sHS if s2 < 2 else sSCALE)}, {(t * 54 + s2) * 1024}")
            g.vmem(f"buffer_store_dwordx4 {vr(self.gACC + 8 * b, 4)}, {vr(vl16)}, {sr(SWS, 4)}, {sr(sT0)} offen sc1", "stH")

    def layout(self, lines):
        ins = lambda l: not (l.endswith(":") or l.startswith((".", ";")))
        sizes = iter(instr_sizes([l for l in lines]))
        blocks, cur = {"main": []}, "main"
        for l in lines:
            if l.startswith(";BLOCK"):
                cur = l.split()[1]; blocks[cur] = []
            else:
                blocks[cur].append((l, next(sizes) if ins(l) else 0))
        if not self.o.layout:
            return [l for b in blocks.values() for l, _ in b if not l.startswith(";")]
        assert blocks["pb"][-1][0] == "s_branch Lgemm"
        blocks["pb"] = blocks["pb"][:-1] + blocks.pop("gemm")
        pads = {}

        def place(name, start):
            out, off, chain, want = [], start, None, None
            for l, n in blocks[name]:
                if l.startswith(";PADBEGIN"):
                    chain = l.split()[1]; pads.setdefault(chain, [])
                elif l.startswith(";PADEND"):
                    assert want is None
                    chain = None
                elif l.startswith(";WARM"):
                    out.append((l, 8)); off += 8
                else:
                    if chain and n and (off + n) // 4096 != off // 4096:
                        want = (off + n) // 4096 * 4096
                    out.append((l, n)); off += n
                    good = l.startswith(("v_smfmac", "v_mfma_f32_32x32x16", "v_mfma_f32_16x16"))
                    if want is not None and (good or off - want >= 48):
                        lab = f"Lpad_{chain}_{len(pads[chain])}"
                        pads[chain].append(lab)
                        out += [(lab + ":", 0), (f";PAD {chain} {len(pads[chain]) - 1}", 4)]
                        off += 4; want = None
            return out, off
        size = lambda name: sum(n for _, n in blocks[name])
        fill = sorted(["gatez", "gate", "fallback", "retry", "end"], key=size, reverse=True)
        out, _ = place("main", 768)
        off = 0
        out.append((".p2align 12", 0))
        for name, mode in (("a1", "end"), ("av", "end"), ("pb", "start"), ("tail", "start"), ("attn", "start")):
            gap = (-off if mode == "start" else -(off + size(name))) % 4096
            for f in list(fill):
                if size(f) <= gap:
                    o2, off = place(f, off); out += o2; gap -= size(f); fill.remove(f)
            if gap:
                out.append((f".fill {gap // 4}, 4, 0xbf800000", gap)); off += gap
            o2, off = place(name, off); out += o2
        for f in fill:
            o2, off = place(f, off); out += o2
        res = []
        for l, _ in out:
            if l.startswith(";WARM"):
                c = l.split()[1]
                res += ["s_cmp_eq_u32 0, 0", f"s_branch {pads[c][0]}" if pads.get(c) else "s_nop 0", f"Lwarm_{c}:"]
            elif l.startswith(";PAD "):
                _, c, k = l.split(); k = int(k)
                res.append(f"s_cbranch_scc1 {pads[c][k + 1] if k + 1 < len(pads[c]) else 'Lwarm_' + c}")
            else:
                res.append(l)
        return res

    def build(self):
        g = self.g
        self.prologue()
        self.phase1()
        self.gate()
        g.vm, g.lg, g.vm_done, g.lg_done = [], [], 0, 0
        from gen2 import phase2
        phase2(self)
        g(";BLOCK end")
        g.label("Lend")
        g("s_endpgm")
        g.lines = self.layout(g.lines)
        bad = hazard_check(g.lines)
        for b in bad[:3]:
            print("HAZARD", b, file=sys.stderr)
        head = open("gated_mix__mha_block__dense_activation_squared_relu__prompt.s.ref").read().split("; Override launch")[0]
        txt = head + f"; @launch grid=(256,1,1) block=(512,1,1) lds={LDS_BYTES}\n"
        txt += f""".amdgcn_target "amdgcn-amd-amdhsa--gfx950"
.text
.globl {NAME}
.p2align 12
.p2align 8
.type {NAME},@function
{NAME}:
"""
        body = g.text().replace("CODE_BYTES", str(self.o.code_bytes))
        txt += body
        txt += f""".section .rodata,"a"
.p2align 6
.amdhsa_kernel {NAME}
  .amdhsa_next_free_vgpr 256
  .amdhsa_next_free_sgpr 102
  .amdhsa_accum_offset 256
  .amdhsa_group_segment_fixed_size 0
  .amdhsa_kernarg_size 96
  .amdhsa_user_sgpr_count 2
  .amdhsa_user_sgpr_kernarg_segment_ptr 1
  .amdhsa_system_sgpr_workgroup_id_x 1
.end_amdhsa_kernel
"""
        return txt, bad


def options(argv=None):
    p = argparse.ArgumentParser()
    p.add_argument("-o", default="gated_mix__mha_block__dense_activation_squared_relu__prompt.s")
    p.add_argument("--stamps", type=int, default=0)
    p.add_argument("--code_prefetch", type=int, default=2)
    p.add_argument("--order", default="x0,w0,x1,w1/x2,w2/x3,w3/x4,w4/x5,w5/x6,w6/x7,w7/x8,w8/x9,w9/b0,b1/b2,b3/")
    p.add_argument("--rot", type=int, default=1)
    p.add_argument("--aprio", type=int, default=1)
    p.add_argument("--gprio", type=int, default=2)
    p.add_argument("--bprio", type=int, default=2)
    p.add_argument("--wdepth", type=int, default=7)
    p.add_argument("--chk_late", type=int, default=6)
    p.add_argument("--ospin", type=int, default=1)
    p.add_argument("--b3_stage", type=int, default=10)
    p.add_argument("--a_pre", type=int, default=2)
    p.add_argument("--epi_rate", type=int, default=3)
    p.add_argument("--nmaj", type=int, default=7)
    p.add_argument("--gepi", type=int, default=1)
    p.add_argument("--m32first", type=int, default=0)
    p.add_argument("--layout", type=int, default=1)
    p.add_argument("--gwarm", type=int, default=4)
    p.add_argument("--otile", type=int, default=0)
    p.add_argument("--warm", type=int, default=0)
    p.add_argument("--ring0", type=int, default=2)
    p.add_argument("--ilv", type=int, default=0)
    p.add_argument("--b1_pos", type=int, default=8)
    p.add_argument("--tags", type=int, default=1)
    p.add_argument("--a_st1", type=int, default=0)
    p.add_argument("--a_split", type=int, default=0)
    p.add_argument("--early", type=int, default=1)
    p.add_argument("--barpos", type=int, default=0)
    p.add_argument("--gchunks", default="1,2,3")
    p.add_argument("--b0_early", type=int, default=1)
    p.add_argument("--b10_early", type=int, default=1)
    p.add_argument("--b0_stage", type=int, default=10)
    p.add_argument("--b1_stage", type=int, default=2)
    p.add_argument("--b2_stage", type=int, default=6)
    p.add_argument("--steps", default="5,5,4")
    p.add_argument("--kv34_early", type=int, default=0)
    p.add_argument("--hfirst", type=int, default=0)
    p.add_argument("--force_fallback", type=int, default=0)
    p.add_argument("--split", default="4,4,4,4")
    p.add_argument("--orot", type=int, default=1)
    p.add_argument("--qsleep", type=int, default=1)
    p.add_argument("--osleep", type=int, default=1)
    p.add_argument("--diag", default="")
    p.add_argument("--diag_role", default="gemm")
    p.add_argument("--tlb", type=int, default=0)
    p.add_argument("--hack", default="")
    p.add_argument("--fine", default="att")
    p.add_argument("--prio", type=int, default=1)
    o = p.parse_args(argv)
    o.code_bytes = 0
    return o


def instr_sizes(lines):
    import subprocess, tempfile, re
    d = tempfile.mkdtemp()
    open(d + "/k.s", "w").write('.amdgcn_target "amdgcn-amd-amdhsa--gfx950"\n.text\n' + "\n".join(lines).replace("CODE_BYTES", "55000") + "\n")
    r = subprocess.run(["clang", "-x", "assembler", "-target", "amdgcn-amd-amdhsa", "-mcpu=gfx950", "-c", d + "/k.s", "-o", d + "/k.o"],
                       capture_output=True, text=True)
    if r.returncode:
        print(r.stderr[:3000]); raise SystemExit(1)
    r = subprocess.run(["llvm-objdump", "-d", "--mcpu=gfx950", d + "/k.o"], capture_output=True, text=True)
    return [4 * len(m.group(1).split()) for m in re.finditer(r"// [0-9A-F]+: ((?:[0-9A-F]{8} ?)+)", r.stdout)]


def code_size(txt):
    import subprocess, tempfile, os, re
    d = tempfile.mkdtemp()
    open(d + "/k.s", "w").write(txt)
    r = subprocess.run(["clang", "-x", "assembler", "-target", "amdgcn-amd-amdhsa", "-mcpu=gfx950", "-c", d + "/k.s", "-o", d + "/k.o"],
                       capture_output=True, text=True)
    if r.returncode:
        print(r.stderr[:3000]); raise SystemExit(1)
    r = subprocess.run(["llvm-readelf", "-S", d + "/k.o"], capture_output=True, text=True)
    m = re.search(r"\.text\s+PROGBITS\s+\S+\s+\S+\s+(\S+)", r.stdout)
    return int(m.group(1), 16)


if __name__ == "__main__":
    o = options()
    o.code_bytes = 55000
    txt, _ = Gen(o).build()
    sz = code_size(txt)
    o.code_bytes = (sz - 1024) & ~3
    txt, bad = Gen(o).build()
    if bad:
        raise SystemExit("hazards: nothing written")
    open(o.o, "w").write(txt)
    print(f"wrote {o.o}: code {sz} bytes, {len(txt)} chars, hazards {len(bad)}")
```
